```python
import torch

def _softmax(x, axis=-1):
    return torch.softmax(x, dim=axis)
def _gelu(x):
    return torch.nn.functional.gelu(x, approximate="tanh")
def _silu(x):
    return torch.nn.functional.silu(x)
def _sigmoid(x):
    return torch.sigmoid(x)
def _layernorm(x, axis=-1, eps=1e-5):
    m = x.mean(dim=axis, keepdim=True)
    v = x.var(dim=axis, keepdim=True, unbiased=False)
    return (x - m) / torch.sqrt(v + eps)
def _scatter_add(tgt, idx, src, axis=0):
    return tgt.clone().index_add_(axis, idx, src)
def _segment_sum(src, seg, n):
    out = torch.zeros((n,) + src.shape[1:], dtype=src.dtype)
    return out.index_add_(0, seg, src)
def _pad(x, pw):
    flat = tuple(v for pair in reversed(pw) for v in pair)
    return torch.nn.functional.pad(x, flat)

kernel_name = 'interleave_layers__mha_block__dense_activation_silu__prompt'

def setup_inputs():

    _w = (lambda a: (lambda t: t.to(torch.bfloat16) if t.is_floating_point() else t)(torch.as_tensor(a)))
    def _A_setup():
        B, S, D, H = 1, 2048, 640, 32
        return {
            "x": _w((lambda *s: torch.randn(*s, dtype=torch.bfloat16) * 0.05)(B, S, D)),
            "wqkv": _w((lambda *s: torch.randn(*s, dtype=torch.bfloat16) * 0.05)(D, 3 * D)),
            "wo": _w((lambda *s: torch.randn(*s, dtype=torch.bfloat16) * 0.05)(D, D)),
        }
    _A_in = _A_setup()

    def _B_setup():
        B, S, D, F = 1, 2048, 640, 1728
        return {
            "x": _w((lambda *s: torch.randn(*s, dtype=torch.bfloat16) * 0.05)(B, S, D)),
            "w1": _w((lambda *s: torch.randn(*s, dtype=torch.bfloat16) * 0.8)(D, F) * (D ** -0.5)),
            "w2": _w((lambda *s: torch.randn(*s, dtype=torch.bfloat16) * 0.8)(F, D) * (F ** -0.5)),
        }
    _B_in = _B_setup()

    return {
        "A_x": _A_in["x"],
        "A_wqkv": _A_in["wqkv"],
        "A_wo": _A_in["wo"],
        "B_x": _B_in["x"],
        "B_w1": _B_in["w1"],
        "B_w2": _B_in["w2"],
    }

def reference(A_x, A_wqkv, A_wo, B_x, B_w1, B_w2):
    def _A_ref(x, wqkv, wo):
        B, S, D = x.shape
        H = 32
        Dh = D // H
        qkv = (lambda x, *d: x.permute(*d))((x @ wqkv).reshape(B, S, 3, H, Dh), 2, 0, 3, 1, 4)
        q, k, v = qkv[0], qkv[1], qkv[2]
        scores = torch.einsum("bhqd,bhkd->bhqk", q, k) * (Dh ** -0.5)
        p = _softmax(scores, axis=-1)
        o = torch.einsum("bhqk,bhkd->bhqd", p, v)
        return (lambda x, *d: x.permute(*d))(o, 0, 2, 1, 3).reshape(B, S, D) @ wo

    def _B_ref(x, w1, w2):
        h = torch.einsum("bsd,df->bsf", x, w1)
        h = _silu(h)
        out = torch.einsum("bsf,fd->bsd", h, w2)
        return out

    x = A_x
    x = x + _A_ref(_layernorm(x, axis=-1), A_wqkv, A_wo)
    x = x + _B_ref(_layernorm(x, axis=-1), B_w1, B_w2)
    x = x + _A_ref(_layernorm(x, axis=-1), A_wqkv, A_wo)
    x = x + _B_ref(_layernorm(x, axis=-1), B_w1, B_w2)
    return x
```

```python
class Asm:
    def __init__(self):
        self.lines = []
    def __call__(self, s=""):
        for l in s.split("\n"):
            l = l.rstrip()
            if l.strip() == "": continue
            if l.strip().endswith(":") and not l.startswith(" "):
                self.lines.append(l)
            else:
                self.lines.append("    " + l.strip())
    def label(self, name): self.lines.append(name + ":")
    def c(self, text): self.lines.append("    ; " + text)
    def text(self): return "\n".join(self.lines) + "\n"

def vr(base, n=1):
    return f"v{base}" if n == 1 else f"v[{base}:{base+n-1}]"
def ar(base, n=1):
    return f"a{base}" if n == 1 else f"a[{base}:{base+n-1}]"
def sr(base, n=1):
    return f"s{base}" if n == 1 else f"s[{base}:{base+n-1}]"

def srd(a, d, ptr, off, size):
    if off:
        a(f"s_add_u32 s{d}, s{ptr}, {off}")
        a(f"s_addc_u32 s{d+1}, s{ptr+1}, 0")
        a(f"s_and_b32 s{d+1}, s{d+1}, 0xffff")
    else:
        a(f"s_mov_b32 s{d}, s{ptr}")
        a(f"s_and_b32 s{d+1}, s{ptr+1}, 0xffff")
    a(f"s_mov_b32 s{d+2}, {size}")
    a(f"s_mov_b32 s{d+3}, 0x20000")

def kernel_header(a, name):
    a.lines.append(".text")
    a.lines.append(f".globl {name}")
    a.lines.append(".p2align 8")
    a.lines.append(f".type {name},@function")
    a.lines.append(f"{name}:")

def kernel_desc(name, vgpr, agpr=0, sgpr=102):
    acc = (vgpr + 3) // 4 * 4
    nfv = acc + agpr if agpr else vgpr
    return f""".amdhsa_kernel {name}
  .amdhsa_next_free_vgpr {nfv}
  .amdhsa_next_free_sgpr {sgpr}
  .amdhsa_accum_offset {acc}
  .amdhsa_group_segment_fixed_size 0
  .amdhsa_kernarg_size 72
  .amdhsa_user_sgpr_count 2
  .amdhsa_user_sgpr_kernarg_segment_ptr 1
  .amdhsa_system_sgpr_workgroup_id_x 1
  .amdhsa_float_denorm_mode_32 3
.end_amdhsa_kernel
"""
```

```python
from asm import *
from layout import *

V_LANE = 1; V_TOK = 2; V_H = 3
V_KA = 4
V_K2A = 5
V_VA = 6
V_T = 8
V_Q = 16
V_K = 40
V_V = 52
V_S = 68
V_P = 100
V_O = 116
V_X = 180
NV = 192
S_W = 16; S_HH = 17; S_KQ = 18; S_P = 19; S_QB = 20; S_PASS = 21
LDS_RED = 8 * 4 * 3 * 1024
LDS_MX = LDS_RED
LDS_FLAG = LDS_MX + 4096
LDS_ATT = LDS_FLAG + 64

def Qf(t): return V_Q + 6*t
def Kf(b): return V_K + 6*b
def Vf(b): return V_V + 8*b
def Sb(b): return V_S + 16*b
def Pb(b): return V_P + 8*b
def Oa(t): return V_O + 16*t

M16 = "v_mfma_f32_32x32x16_bf16"
M8 = "v_mfma_f32_32x32x8_bf16"

def gen_attn(a, name):
    kernel_header(a, name)
    n = name
    a(f"""
    s_cmp_ge_u32 s2, 256
    s_cbranch_scc1 {n}_end
    s_load_dwordx2 s[6:7], s[0:1], 64
    s_and_b32 s8, s2, 7
    s_lshr_b32 s9, s2, 3
    s_and_b32 s10, s9, 1
    s_lshl_b32 s10, s10, 3
    s_add_u32 s{S_P}, s8, s10
    s_lshr_b32 s{S_QB}, s2, 4
    v_and_b32 v{V_LANE}, 63, v0
    v_lshrrev_b32 v{V_T}, 6, v0
    v_and_b32 v{V_TOK}, 31, v0
    v_readfirstlane_b32 s{S_W}, v{V_T}
    v_bfe_u32 v{V_H}, v0, 5, 1
    v_lshlrev_b32 v{V_KA}, 4, v{V_LANE}
    s_nop 0
    s_lshr_b32 s{S_HH}, s{S_W}, 2
    s_and_b32 s{S_KQ}, s{S_W}, 3
    s_lshl_b32 s22, s{S_P}, 1
    s_add_u32 s22, s22, s{S_HH}                 ; head
    v_lshlrev_b32 v{V_K2A}, 4, v{V_TOK}
    s_lshl_b32 s23, s{S_HH}, 3
    v_add_u32 v{V_K2A}, s23, v{V_K2A}
    v_mul_u32_u24 v{V_VA}, 320, v{V_H}
    v_lshl_add_u32 v{V_VA}, v{V_TOK}, 4, v{V_VA}
    s_mov_b32 s24, 0xffffffff
    s_mov_b32 s25, 0
    s_mov_b32 s26, 0x000fffff
    s_mov_b32 s27, 0x000fffff
    s_waitcnt lgkmcnt(0)
    """)
    srd(a, 28, 6, ws.Q, ws.Q_SZ)
    srd(a, 32, 6, ws.K, ws.K_SZ)
    srd(a, 36, 6, ws.V, ws.V_SZ)
    srd(a, 40, 6, ws.O, ws.O_SZ)
    for t in range(4):
        a(f"v_mov_b32 v{Qf(t)+4}, 0")
        a(f"v_mov_b32 v{Qf(t)+5}, 0")
    for b in range(2):
        a(f"v_mov_b32 v{Kf(b)+4}, 0x3f803f80")
        a(f"v_mov_b32 v{Kf(b)+5}, 0x00003f80")
        for i in range(8):
            a(f"v_mov_b32 v{Vf(b)+i}, 0x3f803f80")
    a(f"""
    s_lshl_b32 s44, s22, 6                      ; head*64
    s_lshl_b32 s45, s{S_QB}, 2
    s_add_u32 s46, s44, s45
    s_lshl_b32 s46, s46, 10                     ; Q1 offset
    s_lshl_b32 s47, s{S_P}, 6
    s_add_u32 s47, s47, s45
    s_lshl_b32 s47, s47, 9
    s_add_u32 s47, s47, {QK1_SZ}                ; Q2 offset
    """)
    for t in range(4):
        a(f"buffer_load_dwordx4 v[{Qf(t)}:{Qf(t)+3}], v{V_KA}, s[28:31], s46 offen offset:{t*1024}")
    a("s_mov_b64 exec, s[24:25]")
    for t in range(4):
        a(f"buffer_load_dwordx2 v[{Qf(t)+4}:{Qf(t)+5}], v{V_K2A}, s[28:31], s47 offen offset:{t*512}")
    a("s_mov_b64 exec, -1")
    a(f"""
    s_lshl_b32 s48, s{S_KQ}, 4
    s_add_u32 s49, s44, s48
    s_lshl_b32 s50, s49, 10                     ; K1 base
    s_mul_i32 s51, s49, 1280                    ; V base
    s_lshl_b32 s52, s{S_P}, 6
    s_add_u32 s52, s52, s48
    s_lshl_b32 s52, s52, 9
    s_add_u32 s52, s52, {QK1_SZ}                ; K2 base
    s_mov_b32 s{S_PASS}, 0
    """)
    def load_kv(b, with_v=True):
        a(f"buffer_load_dwordx4 v[{Kf(b)}:{Kf(b)+3}], v{V_KA}, s[32:35], s53 offen")
        a("s_mov_b64 exec, s[24:25]")
        a(f"buffer_load_dwordx2 v[{Kf(b)+4}:{Kf(b)+5}], v{V_K2A}, s[32:35], s55 offen")
        if with_v:
            a("s_mov_b64 exec, s[26:27]")
            a(f"buffer_load_dwordx4 v[{Vf(b)}:{Vf(b)+3}], v{V_VA}, s[36:39], s54 offen")
            a(f"buffer_load_dwordx4 v[{Vf(b)+4}:{Vf(b)+7}], v{V_VA}, s[36:39], s54 offen offset:640")
        a("s_mov_b64 exec, -1")
        a("s_add_u32 s53, s53, 1024")
        a("s_add_u32 s54, s54, 1280")
        a("s_add_u32 s55, s55, 512")
    def qk(t, b, sb):
        return [f"{M16} v[{Sb(sb)}:{Sb(sb)+15}], v[{Kf(b)}:{Kf(b)+3}], v[{Qf(t)}:{Qf(t)+3}], 0",
                f"{M8} v[{Sb(sb)}:{Sb(sb)+15}], v[{Kf(b)+4}:{Kf(b)+5}], v[{Qf(t)+4}:{Qf(t)+5}], v[{Sb(sb)}:{Sb(sb)+15}]"]
    def pv(t, b, pb, m, first=False):
        c = f"v[{Oa(t)}:{Oa(t)+15}]"
        return f"{M16} {c}, v[{Vf(b)+4*m}:{Vf(b)+4*m+3}], v[{Pb(pb)+4*m}:{Pb(pb)+4*m+3}], {c}"

    a.label(f"{n}_main")
    a("""
    s_mov_b32 s53, s50
    s_mov_b32 s54, s51
    s_mov_b32 s55, s52
    """)
    for t in range(4):
        for i in range(16):
            a(f"v_mov_b32 v{Oa(t)+i}, 0")
    for i in range(4, 8):
        a(f"v_mov_b32 v{Pb(1)+i}, 0")
    load_kv(0)
    a("s_waitcnt vmcnt(0)")
    for l in qk(0, 0, 0): a(l)
    a("s_nop 7")
    a("s_nop 3")
    a("s_mov_b32 s56, 8")
    a.lines.append(".p2align 6")
    a.label(f"{n}_loop")
    for b in range(2):
        for t in range(4):
            sb = t & 1; nsb = sb ^ 1; pb = t & 1
            S = Sb(sb); P = Pb(pb)
            if t < 3:
                nq = qk(t+1, b, nsb)
            else:
                nq = qk(0, b ^ 1, nsb)
            if t > 0: prev = pv(t-1, b, pb ^ 1, 1)
            else:     prev = pv(3, b ^ 1, pb ^ 1, 1)
            E = [f"v_exp_f32 v{S+i}, v{S+i}" for i in range(16)]
            C = [f"v_cvt_pk_bf16_f32 v{P+i}, v{S+2*i}, v{S+2*i+1}" for i in range(8)]
            if t == 3:
                a("s_waitcnt vmcnt(0)")
            a(nq[0])
            a(E[0]); a(E[1])
            first_iter_guard = (b == 0 and t == 0)
            if first_iter_guard:
                pass
            a(prev)
            if t == 0:
                pass
            a(E[2]); a(E[3])
            a(nq[1])
            a(C[0]); a(C[1])
            a(E[4]); a(E[5]); a(E[6]); a(E[7])
            a(C[2]); a(C[3])
            a(E[8]); a(E[9])
            a(pv(t, b, pb, 0))
            if t == 0:
                load_kv(b ^ 1)
            a(E[10]); a(E[11])
            a(C[4]); a(C[5])
            a(E[12]); a(E[13]); a(E[14]); a(E[15])
            a(C[6]); a(C[7])
    a("""
    s_sub_u32 s56, s56, 1
    s_cmp_lg_u32 s56, 0
    """)
    a(f"s_cbranch_scc1 {n}_loop")
    a("s_nop 1")
    a(pv(3, 1, 1, 1))
    a("s_waitcnt vmcnt(0)")
    a(f"""
    s_mul_i32 s57, s{S_W}, 12288
    v_add_u32 v{V_T}, s57, v{V_KA}
    s_nop 7
    s_nop 3
    """)
    for t in range(4):
        for q in range(3):
            a(f"ds_write_b128 v{V_T}, v[{Oa(t)+4*q}:{Oa(t)+4*q+3}] offset:{(t*3+q)*1024}")
    a(f"""
    s_waitcnt lgkmcnt(0)
    s_barrier
    s_mul_i32 s57, s{S_HH}, 49152
    s_mul_i32 s58, s{S_KQ}, 3072
    s_add_u32 s57, s57, s58
    v_add_u32 v{V_T}, s57, v{V_KA}
    """)
    R = V_S
    for kq in range(4):
        for q in range(3):
            a(f"ds_read_b128 v[{R+12*kq+4*q}:{R+12*kq+4*q+3}], v{V_T} offset:{kq*12288+q*1024}")
    a("s_waitcnt lgkmcnt(0)")
    for i in range(12):
        a(f"v_add_f32 v{R+i}, v{R+i}, v{R+12+i}")
        a(f"v_add_f32 v{R+24+i}, v{R+24+i}, v{R+36+i}")
    for i in range(12):
        a(f"v_add_f32 v{R+i}, v{R+i}, v{R+24+i}")
    X = V_X
    a(f"""
    v_mov_b32 v{X}, v{R+8}
    v_mov_b32 v{X+1}, v{R+8}
    s_nop 1
    v_permlane32_swap_b32 v{X}, v{X+1}
    v_rcp_f32 v{X+2}, v{X+1}
    """)
    a(f"""
    v_mov_b32 v{X+3}, 0
    """)
    for i in range(12):
        a(f"v_and_b32 v{X+4}, 0x7fffffff, v{R+i}")
        a(f"v_max_u32 v{X+3}, v{X+3}, v{X+4}") if not (i >= 8) else None
    a(f"""
    v_cmp_eq_u32 vcc, 0, v{V_H}
    s_nop 0
    """)
    for i in range(8, 12):
        a(f"v_and_b32 v{X+4}, 0x7fffffff, v{R+i}")
        a(f"v_cndmask_b32 v{X+4}, 0, v{X+4}, vcc")
        a(f"v_max_u32 v{X+3}, v{X+3}, v{X+4}")
    a(f"""
    s_mov_b32 s59, 0x7f000000
    v_cmp_le_u32 s[60:61], s59, v{X+3}
    s_mov_b32 s59, 0x21800000                   ; 2^-60
    v_cmp_nle_f32 s[62:63], s59, v{X+1}         ; !(2^-60 <= l)
    s_mov_b32 s59, 0x5d800000                   ; 2^60
    v_cmp_nge_f32 s[64:65], s59, v{X+1}         ; !(2^60 >= l)
    s_or_b64 s[60:61], s[60:61], s[62:63]
    s_or_b64 s[60:61], s[60:61], s[64:65]
    s_cmp_lg_u64 s[60:61], 0
    s_cselect_b32 s59, 1, 0
    s_cmp_lg_u32 s{S_PASS}, 0
    s_cselect_b32 s59, 0, s59
    v_mov_b32 v{X+4}, s59
    s_lshl_b32 s57, s{S_W}, 2
    s_add_u32 s57, s57, {LDS_FLAG}
    v_mov_b32 v{X+5}, s57
    ds_write_b32 v{X+5}, v{X+4}
    """)
    for i in range(12):
        a(f"v_mul_f32 v{R+i}, v{R+i}, v{X+2}")
    for i in range(6):
        a(f"v_cvt_pk_bf16_f32 v{R+12+i}, v{R+2*i}, v{R+2*i+1}")
    a(f"""
    s_mul_i32 s57, s{S_P}, 5
    s_lshl_b32 s58, s{S_HH}, 1
    s_add_u32 s58, s58, s57
    v_add_u32 v{X+6}, s58, v{V_H}
    v_lshlrev_b32 v{X+6}, 15, v{X+6}
    v_lshl_add_u32 v{X+6}, v{V_TOK}, 4, v{X+6}
    s_lshl_b32 s58, s{S_QB}, 2
    s_add_u32 s58, s58, s{S_KQ}
    s_lshl_b32 s58, s58, 9
    buffer_store_dwordx4 v[{R+12}:{R+15}], v{X+6}, s[40:43], s58 offen
    s_add_u32 s57, s57, 4
    s_lshl_b32 s57, s57, 15
    s_add_u32 s57, s57, s58
    s_mov_b64 exec, s[24:25]
    buffer_store_dwordx2 v[{R+16}:{R+17}], v{V_K2A}, s[40:43], s57 offen
    s_mov_b64 exec, -1
    s_waitcnt lgkmcnt(0)
    s_barrier
    v_mov_b32 v{X+5}, {LDS_FLAG}
    ds_read_b128 v[{X+6}:{X+9}], v{X+5}
    ds_read_b128 v[{X+2}:{X+5}], v{X+5} offset:16
    s_waitcnt lgkmcnt(0)
    """)
    a(f"""
    v_or_b32 v{X+6}, v{X+6}, v{X+7}
    v_or_b32 v{X+8}, v{X+8}, v{X+9}
    v_or_b32 v{X+2}, v{X+2}, v{X+3}
    v_or_b32 v{X+4}, v{X+4}, v{X+5}
    v_or_b32 v{X+6}, v{X+6}, v{X+8}
    v_or_b32 v{X+2}, v{X+2}, v{X+4}
    v_or_b32 v{X+6}, v{X+6}, v{X+2}
    s_nop 0
    v_readfirstlane_b32 s59, v{X+6}
    s_nop 3
    s_cmp_eq_u32 s59, 0
    s_cbranch_scc1 {n}_end
    """)
    a.c("fallback: exact row maxima over all keys")
    a("""
    s_barrier
    s_mov_b32 s53, s50
    s_mov_b32 s54, s51
    s_mov_b32 s55, s52
    """)
    for t in range(4):
        a(f"v_mov_b32 v{Qf(t)+4}, 0") if False else None
    MX = V_P
    for t in range(4):
        a(f"v_mov_b32 v{MX+t}, 0xff800000")
    a("s_mov_b32 s56, 16")
    a.label(f"{n}_mxloop")
    load_kv(0, with_v=False)
    a("s_waitcnt vmcnt(0)")
    for t in range(4):
        for l in qk(t, 0, 0): a(l)
        a("s_nop 7")
        a("s_nop 3")
        S = Sb(0)
        for i in range(0, 16, 2):
            a(f"v_max3_f32 v{MX+t}, v{MX+t}, v{S+i}, v{S+i+1}")
    a("""
    s_sub_u32 s56, s56, 1
    s_cmp_lg_u32 s56, 0
    """)
    a(f"s_cbranch_scc1 {n}_mxloop")
    for t in range(4):
        a(f"""
        v_mov_b32 v{X}, v{MX+t}
        v_mov_b32 v{X+1}, v{MX+t}
        s_nop 1
        v_permlane32_swap_b32 v{X}, v{X+1}
        v_max_f32 v{MX+t}, v{X}, v{X+1}
        """)
    a(f"""
    s_lshl_b32 s57, s{S_W}, 9
    s_add_u32 s57, s57, {LDS_MX}
    v_lshl_add_u32 v{X}, v{V_TOK}, 2, s57
    """)
    for t in range(4):
        a(f"ds_write_b32 v{X}, v{MX+t} offset:{t*128}")
    a(f"""
    s_waitcnt lgkmcnt(0)
    s_barrier
    s_lshl_b32 s57, s{S_HH}, 11
    s_add_u32 s57, s57, {LDS_MX}
    v_lshl_add_u32 v{X}, v{V_TOK}, 2, s57
    """)
    for t in range(4):
        for kq in range(4):
            a(f"ds_read_b32 v{S+4*t+kq}, v{X} offset:{kq*512+t*128}")
    a("s_waitcnt lgkmcnt(0)")
    a(f"v_cmp_ne_u32 vcc, 0, v{V_H}")
    for t in range(4):
        m = X + 1
        a(f"""
        v_max3_f32 v{m}, v{S+4*t}, v{S+4*t+1}, v{S+4*t+2}
        v_max_f32 v{m}, v{m}, v{S+4*t+3}
        v_sub_f32 v{m}, 0, v{m}                     ; -max
        v_and_b32 v{m+1}, 0xffff0000, v{m}          ; hi
        v_sub_f32 v{m}, v{m}, v{m+1}
        v_and_b32 v{m+2}, 0xffff0000, v{m}          ; mid
        v_sub_f32 v{m}, v{m}, v{m+2}
        v_lshrrev_b32 v{m+1}, 16, v{m+1}
        v_or_b32 v{m+1}, v{m+1}, v{m+2}
        v_lshrrev_b32 v{m}, 16, v{m}                ; (lo, 0)
        v_cndmask_b32 v{Qf(t)+4}, v{Qf(t)+4}, v{m+1}, vcc
        v_cndmask_b32 v{Qf(t)+5}, v{Qf(t)+5}, v{m}, vcc
        """)
    a(f"""
    s_mov_b32 s{S_PASS}, 1
    s_barrier
    s_branch {n}_main
    """)
    a.label(f"{n}_end")
    a("s_endpgm")
    return kernel_desc(name, NV, 0, 72)
```

```python
from asm import *
from layout import *
import math

LDS_X = 9 * 16384
LDS_MISC = LDS_X
LDS_LN = LDS_X + 1024 + 512
QSCALE = (DH ** -0.5) * math.log2(math.e)
LOG2E = math.log2(math.e)

def f32hex(x):
    import struct
    return "0x%08x" % struct.unpack("<I", struct.pack("<f", x))[0]

V_LANE = 1; V_TOK = 2; V_H = 3
V_DE = 4; V_DO = 5
V_WOFF = 6
V_R = 8
V_T = 20
V_XF = 32
V_ACC = 64
V_E = 128
S_W = 16; S_MB = 17; S_NB = 18; S_SL = 19

def gen_lngemm(a, mode, entries):
    base = f"ln_{mode}"
    NB = 15 if mode == "qkv" else 14
    for name, layer in entries:
        kernel_header(a, name)
        a(f"s_mov_b32 s3, {layer}")
        a(f"s_branch {base}_common")
    a.lines.append(".p2align 8")
    a.label(f"{base}_common")
    a(f"""
    s_cmp_ge_u32 s2, 256
    s_cbranch_scc1 {base}_end
    s_load_dwordx2 s[4:5], s[0:1], 0
    s_load_dwordx2 s[6:7], s[0:1], 64
    s_and_b32 s8, s2, 7
    s_lshr_b32 s9, s2, 3
    s_and_b32 s10, s8, 3
    s_lshl_b32 s10, s10, 2
    s_and_b32 s11, s9, 3
    s_add_u32 s{S_MB}, s10, s11
    s_lshr_b32 s10, s8, 2
    s_lshl_b32 s10, s10, 3
    s_lshr_b32 s11, s9, 2
    s_add_u32 s{S_NB}, s10, s11
    s_cmp_ge_u32 s{S_NB}, {NB}
    s_cbranch_scc1 {base}_end
    v_and_b32 v{V_LANE}, 63, v0
    v_lshrrev_b32 v{V_T}, 6, v0
    v_and_b32 v{V_TOK}, 31, v0
    v_readfirstlane_b32 s{S_W}, v{V_T}
    v_bfe_u32 v{V_H}, v0, 5, 1
    v_lshlrev_b32 v{V_WOFF}, 4, v{V_LANE}
    v_lshrrev_b32 v{V_T}, 3, v{V_LANE}          ; lane>>3
    v_mul_u32_u24 v{V_T}, 1280, v{V_T}
    v_and_b32 v{V_T+1}, 7, v{V_LANE}
    v_lshrrev_b32 v{V_T+2}, 4, v{V_LANE}
    v_xor_b32 v{V_T+1}, v{V_T+1}, v{V_T+2}
    v_lshl_add_u32 v{V_DE}, v{V_T+1}, 4, v{V_T}
    v_xor_b32 v{V_DO}, 64, v{V_DE}
    v_bfe_u32 v{V_T}, v{V_TOK}, 1, 3            ; swz
    v_lshlrev_b32 v{V_T+1}, 7, v{V_TOK}         ; tok*128
    """)
    for sp in range(4):
        a(f"""
        v_or_b32 v{V_T+2}, {2*sp}, v{V_H}
        v_xor_b32 v{V_T+2}, v{V_T+2}, v{V_T}
        v_lshl_add_u32 v{V_R+sp}, v{V_T+2}, 4, v{V_T+1}
        v_add_u32 v{V_R+4+sp}, 0x10000, v{V_R+sp}
        v_add_u32 v{V_R+8+sp}, 0x20000, v{V_R+sp}
        """)
    a(f"""
    s_lshl_b32 s{S_SL}, s{S_NB}, 2
    s_add_u32 s{S_SL}, s{S_SL}, s{S_W}          ; slice
    s_waitcnt lgkmcnt(0)
    """)
    if mode == "qkv":
        a(f"""
        s_add_u32 s12, s6, {ws.X2}
        s_addc_u32 s13, s7, 0
        s_cmp_eq_u32 s3, 0
        s_cselect_b32 s12, s4, s12
        s_cselect_b32 s13, s5, s13
        s_mov_b32 s14, {ws.ST2}
        s_cselect_b32 s14, {ws.ST0}, s14
        """)
        wt, wtsz, cs, cssz = ws.WQKV, ws.WQKV_SZ, ws.CSQ, ws.CSQ_SZ
    else:
        a(f"""
        s_cmp_eq_u32 s3, 0
        s_mov_b32 s15, {ws.X3}
        s_cselect_b32 s15, {ws.X1}, s15
        s_mov_b32 s14, {ws.ST3}
        s_cselect_b32 s14, {ws.ST1}, s14
        s_add_u32 s12, s6, s15
        s_addc_u32 s13, s7, 0
        """)
        wt, wtsz, cs, cssz = ws.W1, ws.W1_SZ, ws.CS1, ws.CS1_SZ
    srd(a, 20, 12, 0, M * D * 2)
    srd(a, 24, 6, wt, wtsz)
    a(f"""
    s_add_u32 s28, s6, s14
    s_addc_u32 s29, s7, 0
    s_and_b32 s29, s29, 0xffff
    s_mov_b32 s30, {M*64}
    s_mov_b32 s31, 0x20000
    """)
    srd(a, 32, 6, cs, cssz)
    a(f"""
    s_lshl_b32 s36, s{S_MB}, 7
    s_lshl_b32 s37, s{S_W}, 5
    s_add_u32 s36, s36, s37
    v_add_u32 v{V_T}, s36, v{V_TOK}
    v_lshlrev_b32 v{V_T}, 6, v{V_T}
    v_lshl_add_u32 v{V_T}, v{V_H}, 5, v{V_T}
    buffer_load_dwordx4 v[{V_E}:{V_E+3}], v{V_T}, s[28:31], 0 offen
    buffer_load_dwordx4 v[{V_E+4}:{V_E+7}], v{V_T}, s[28:31], 0 offen offset:16
    s_lshl_b32 s37, s{S_SL}, 5
    v_add_u32 v{V_T+1}, s37, v{V_TOK}
    v_lshlrev_b32 v{V_T+1}, 4, v{V_T+1}
    buffer_load_dwordx4 v[{V_E+8}:{V_E+11}], v{V_T+1}, s[32:35], 0 offen
    s_mul_i32 s38, s36, 1280
    s_mul_i32 s39, s{S_SL}, 40960
    s_lshl_b32 s40, s{S_W}, 12
    """)
    ops = ["S", "S", "C"]
    def issue_group(g):
        slot = g % 9
        a.c(f"issue group {g}")
        a(f"s_add_u32 s41, s39, {g*4096}")
        for i in range(4):
            n = 4*g + i
            a(f"buffer_load_dwordx4 a[{4*n}:{4*n+3}], v{V_WOFF}, s[24:27], s41 offen offset:{i*1024}")
            ops.append(("W", g))
        for j in range(4):
            a(f"s_add_u32 s42, s38, {j*10240 + g*128}")
            a(f"s_add_u32 m0, s40, {slot*16384 + j*1024}")
            a("s_nop 0")
            a(f"buffer_load_dwordx4 v{V_DE if j%2==0 else V_DO}, s[20:23], s42 offen lds")
            ops.append(("D", g))
    def wait_group(g):
        last = max(i for i, o in enumerate(ops) if o == ("D", g))
        n = len(ops) - 1 - last
        a(f"s_waitcnt vmcnt({n})")
    DEPTH = 7
    for g in range(DEPTH): issue_group(g)
    next_g = DEPTH
    wait_group(0)
    e = V_E
    a(f"""
    v_add_f32 v{e}, v{e}, v{e+2}
    v_add_f32 v{e+1}, v{e+1}, v{e+3}
    v_add_f32 v{e+4}, v{e+4}, v{e+6}
    v_add_f32 v{e+5}, v{e+5}, v{e+7}
    v_add_f32 v{e}, v{e}, v{e+4}
    v_add_f32 v{e+1}, v{e+1}, v{e+5}
    v_add_f32 v{e+8}, v{e+8}, v{e+9}
    v_add_f32 v{e+10}, v{e+10}, v{e+11}
    v_mov_b32 v{e+2}, v{e}
    v_mov_b32 v{e+3}, v{e+1}
    v_add_f32 v{e+12}, v{e+8}, v{e+10}
    s_nop 0
    v_permlane32_swap_b32 v{e}, v{e+2}
    v_permlane32_swap_b32 v{e+1}, v{e+3}
    v_add_f32 v{e}, v{e}, v{e+2}
    v_add_f32 v{e+1}, v{e+1}, v{e+3}
    v_mul_f32 v{e}, {f32hex(1.0/D)}, v{e}       ; mean
    v_mul_f32 v{e+1}, {f32hex(1.0/D)}, v{e+1}
    v_fma_f32 v{e+1}, -v{e}, v{e}, v{e+1}       ; var
    v_max_f32 v{e+1}, 0, v{e+1}
    v_add_f32 v{e+1}, {f32hex(EPS)}, v{e+1}
    v_rsq_f32 v{e+1}, v{e+1}                    ; rstd
    s_lshl_b32 s43, s{S_W}, 7
    v_lshl_add_u32 v{e+4}, v{V_TOK}, 2, s43     ; (32w+tok)*4
    v_mul_f32 v{e+2}, v{e}, v{e+1}
    v_sub_f32 v{e+2}, 0, v{e+2}
    v_add_u32 v{e+4}, {LDS_MISC}, v{e+4}
    ds_write_b32 v{e+4}, v{e+1}
    ds_write_b32 v{e+4}, v{e+2} offset:512
    ds_write_b32 v{e+4}, v{e+12} offset:1024
    s_waitcnt lgkmcnt(0)
    s_barrier
    """)
    body_forms = ["ct", "c"] if mode == "qkv" else ["ct"]
    if mode == "qkv":
        a(f"s_cmp_ge_u32 s{S_NB}, 10")
        a(f"s_cbranch_scc1 {base}_loop_c")
    saved_ops = list(ops); saved_next = next_g
    for form in body_forms:
        ops[:] = list(saved_ops); next_g = saved_next
        a.label(f"{base}_loop_{form}")
        def reads(n):
            g = n >> 2; sp = n & 3; slot = g % 9
            q = slot >> 2; so = (slot & 3) * 16384
            buf = V_XF + 16 * (n & 1)
            for t in range(4):
                a(f"ds_read_b128 v[{buf+4*t}:{buf+4*t+3}], v{V_R+4*q+sp} offset:{so + t*4096}")
        reads(0)
        for n in range(40):
            if n + 1 < 40:
                if (n + 1) % 4 == 0:
                    wait_group((n + 1) >> 2)
                    a("s_barrier")
                    if next_g < 10:
                        issue_group(next_g); next_g += 1
                reads(n + 1)
                a("s_waitcnt lgkmcnt(4)")
            else:
                a("s_waitcnt lgkmcnt(0)")
            buf = V_XF + 16 * (n & 1)
            for t in range(4):
                acc = f"v[{V_ACC+16*t}:{V_ACC+16*t+15}]"
                c = "0" if n == 0 else acc
                wf = f"a[{4*n}:{4*n+3}]"; xf = f"v[{buf+4*t}:{buf+4*t+3}]"
                if form == "ct":
                    a(f"v_mfma_f32_32x32x16_bf16 {acc}, {wf}, {xf}, {c}")
                else:
                    a(f"v_mfma_f32_32x32x16_bf16 {acc}, {xf}, {wf}, {c}")
        if form == "ct":
            epilogue_ct(a, mode, base)
        else:
            epilogue_v(a, base)
    a.label(f"{base}_end")
    a("s_endpgm")
    return "".join(kernel_desc(name, 192, 160, 64) for name, _ in entries)

def epilogue_ct(a, mode, base):
    e = V_E
    a(f"""
    v_lshlrev_b32 v{V_T}, 2, v{V_TOK}
    v_add_u32 v{V_T}, {LDS_MISC}, v{V_T}
    s_lshl_b32 s43, s{S_W}, 7
    v_lshlrev_b32 v{V_T+1}, 4, v{V_H}
    v_add_u32 v{V_T+1}, s43, v{V_T+1}
    v_add_u32 v{V_T+1}, {LDS_MISC+1024}, v{V_T+1}
    """)
    for t in range(4):
        a(f"ds_read_b32 v{e+2*t}, v{V_T} offset:{t*128}")
        a(f"ds_read_b32 v{e+2*t+1}, v{V_T} offset:{512+t*128}")
    for jj in range(4):
        a(f"ds_read_b128 v[{e+8+4*jj}:{e+11+4*jj}], v{V_T+1} offset:{jj*32}")
    CS = e + 8
    if mode == "qkv":
        a(f"""
        s_cmp_ge_u32 s{S_SL}, 20
        s_mov_b32 s44, {ws.Q}
        s_cselect_b32 s44, {ws.K}, s44
        s_cselect_b32 s45, 20, 0
        s_cselect_b32 s46, 1.0, {f32hex(QSCALE)}
        s_add_u32 s48, s6, s44
        s_addc_u32 s49, s7, 0
        s_and_b32 s49, s49, 0xffff
        s_mov_b32 s50, {ws.Q_SZ}
        s_mov_b32 s51, 0x20000
        s_sub_u32 s45, s{S_SL}, s45
        s_lshl_b32 s45, s45, 2
        s_lshl_b32 s47, s{S_MB}, 2                  ; first T
        """)
        for u in range(2):
            t0 = V_T + 2
            a(f"""
            v_add_u32 v{t0}, s45, v{V_H}
            v_add_u32 v{t0}, {2*u}, v{t0}               ; chunk
            v_mul_u32_u24 v{t0+1}, 205, v{t0}
            v_lshrrev_b32 v{t0+1}, 10, v{t0+1}          ; p
            v_mul_u32_u24 v{t0+2}, 5, v{t0+1}
            v_sub_u32 v{t0+2}, v{t0}, v{t0+2}           ; r
            v_lshrrev_b32 v{t0+3}, 1, v{t0+2}
            v_lshl_add_u32 v{t0+3}, v{t0+1}, 1, v{t0+3} ; head
            v_lshlrev_b32 v{t0+3}, 6, v{t0+3}
            v_add_u32 v{t0+3}, s47, v{t0+3}             ; head*64+T0
            v_lshlrev_b32 v{t0+3}, 10, v{t0+3}
            v_and_b32 v{t0+4}, 1, v{t0+2}
            v_lshl_add_u32 v{t0+3}, v{t0+4}, 9, v{t0+3} ; + half*512
            v_lshl_add_u32 v{t0+3}, v{V_TOK}, 4, v{t0+3}; + key*16     (type-1 address)
            v_lshlrev_b32 v{t0+4}, 6, v{t0+1}
            v_add_u32 v{t0+4}, s47, v{t0+4}             ; p*64 + T0
            v_lshlrev_b32 v{t0+4}, 9, v{t0+4}           ; (p*2048 + 32*T0)*16
            v_lshl_add_u32 v{t0+4}, v{V_TOK}, 4, v{t0+4}
            v_add_u32 v{t0+4}, {QK1_SZ}, v{t0+4}
            v_cmp_eq_u32 vcc, 4, v{t0+2}
            v_mov_b32 v{t0+5}, 1024
            v_mov_b32 v{t0+6}, 512
            v_cndmask_b32 v{e+24+2*u}, v{t0+3}, v{t0+4}, vcc
            v_cndmask_b32 v{e+25+2*u}, v{t0+5}, v{t0+6}, vcc
            """)
        a("s_waitcnt lgkmcnt(0)")
        for t in range(4):
            a(f"v_mul_f32 v{e+2*t}, s46, v{e+2*t}")
            a(f"v_mul_f32 v{e+2*t+1}, s46, v{e+2*t+1}")
    else:
        a(f"""
        s_add_u32 s48, s6, {ws.HH}
        s_addc_u32 s49, s7, 0
        s_and_b32 s49, s49, 0xffff
        s_mov_b32 s50, {ws.HH_SZ}
        s_mov_b32 s51, 0x20000
        s_lshl_b32 s45, s{S_SL}, 2
        v_add_u32 v{V_T+2}, s45, v{V_H}             ; chunk (u=0)
        v_lshlrev_b32 v{V_T+2}, 15, v{V_T+2}        ; *2048*16
        s_lshl_b32 s47, s{S_MB}, 11                 ; 128 tokens*16
        v_lshl_add_u32 v{V_T+2}, v{V_TOK}, 4, v{V_T+2}
        v_add_u32 v{e+24}, s47, v{V_T+2}
        v_add_u32 v{e+26}, 0x10000, v{e+24}         ; u=1: +2 chunks
        v_mov_b32 v{V_T+3}, {f32hex(-LOG2E)}
        s_waitcnt lgkmcnt(0)
        """)
    a("s_nop 4")
    T = e + 32
    for t in range(4):
        A = e + 2*t; B = e + 2*t + 1
        for u in range(2):
            accb = V_ACC + 16*t + 8*u
            csb = CS + 8*u
            for pr in range(4):
                a(f"v_pk_mul_f32 v[{T+2*pr}:{T+2*pr+1}], v[{csb+2*pr}:{csb+2*pr+1}], v[{A}:{A+1}] op_sel:[0,1] op_sel_hi:[1,1]")
            for pr in range(4):
                a(f"v_pk_fma_f32 v[{T+2*pr}:{T+2*pr+1}], v[{accb+2*pr}:{accb+2*pr+1}], v[{A}:{A+1}], v[{T+2*pr}:{T+2*pr+1}] op_sel_hi:[1,0,1]")
            if mode == "w1":
                NL = V_T + 3
                for i in range(8):
                    a(f"v_mul_f32 v{T+8+i}, v{T+i}, v{NL}")
                for i in range(8):
                    a(f"v_exp_f32 v{T+8+i}, v{T+8+i}")
                for i in range(8):
                    a(f"v_add_f32 v{T+8+i}, 1.0, v{T+8+i}")
                for i in range(8):
                    a(f"v_rcp_f32 v{T+8+i}, v{T+8+i}")
                for i in range(8):
                    a(f"v_mul_f32 v{T+i}, v{T+i}, v{T+8+i}")
            P = T + 16 + 4 * ((2*t + u) & 1)
            for pr in range(4):
                a(f"v_cvt_pk_bf16_f32 v{P+pr}, v{T+2*pr}, v{T+2*pr+1}")
            if mode == "qkv":
                a(f"buffer_store_dwordx4 v[{P}:{P+3}], v{e+24+2*u}, s[48:51], 0 offen")
                if t < 3: a(f"v_add_u32 v{e+24+2*u}, v{e+24+2*u}, v{e+25+2*u}")
            else:
                a(f"buffer_store_dwordx4 v[{P}:{P+3}], v{e+24+2*u}, s[48:51], 0 offen offset:{t*512}")
    a("s_endpgm")

def epilogue_v(a, base):
    e = V_E
    a(f"""
    s_add_u32 s48, s6, {ws.V}
    s_addc_u32 s49, s7, 0
    s_and_b32 s49, s49, 0xffff
    s_mov_b32 s50, {ws.V_SZ}
    s_mov_b32 s51, 0x20000
    s_sub_u32 s45, s{S_SL}, 40
    s_lshl_b32 s45, s45, 5
    v_add_u32 v{V_T}, s45, v{V_TOK}             ; f
    v_mul_u32_u24 v{V_T+1}, 3277, v{V_T}
    v_lshrrev_b32 v{V_T+1}, 16, v{V_T+1}        ; head = f/20
    v_mul_u32_u24 v{V_T+2}, 20, v{V_T+1}
    v_sub_u32 v{V_T+2}, v{V_T}, v{V_T+2}        ; d
    v_bfe_u32 v{V_T+3}, v{V_T+2}, 2, 1
    v_lshlrev_b32 v{V_T+3}, 3, v{V_T+3}         ; 8*((d>>2)&1)
    v_bfe_u32 v{V_T+4}, v{V_T+2}, 3, 1
    v_lshl_add_u32 v{V_T+3}, v{V_T+4}, 2, v{V_T+3}
    v_and_b32 v{V_T+4}, 3, v{V_T+2}
    v_add_u32 v{V_T+3}, v{V_T+3}, v{V_T+4}
    v_cmp_le_u32 vcc, 16, v{V_T+2}
    s_lshl_b32 s47, s{S_MB}, 2
    v_lshlrev_b32 v{V_T+1}, 6, v{V_T+1}
    v_cndmask_b32 v{V_T+3}, v{V_T+3}, v{V_T+2}, vcc
    v_add_u32 v{V_T+1}, s47, v{V_T+1}           ; head*64 + T0
    v_mul_u32_u24 v{V_T+1}, 1280, v{V_T+1}
    v_mul_u32_u24 v{V_T+4}, 320, v{V_H}
    v_add_u32 v{V_T+1}, v{V_T+1}, v{V_T+4}
    v_lshl_add_u32 v{e+24}, v{V_T+3}, 4, v{V_T+1}
    v_lshlrev_b32 v{V_T+5}, 4, v{V_H}
    v_add_u32 v{V_T+5}, {LDS_MISC}, v{V_T+5}    ; misc + 4h*4
    v_lshl_add_u32 v{V_T+6}, v{V_TOK}, 2, 0
    s_lshl_b32 s43, s{S_W}, 7
    v_add_u32 v{V_T+6}, s43, v{V_T+6}
    v_add_u32 v{V_T+6}, {LDS_MISC+1024}, v{V_T+6}
    ds_read_b32 v{e+26}, v{V_T+6}
    """)
    T = e + 32
    AB = e + 56
    for t in range(4):
        for m in range(2):
            for q in range(2):
                jj = 2*m + q
                a(f"ds_read_b128 v[{AB+4*q}:{AB+4*q+3}], v{V_T+5} offset:{(32*t+8*jj)*4}")
                a(f"ds_read_b128 v[{AB+8+4*q}:{AB+8+4*q+3}], v{V_T+5} offset:{512+(32*t+8*jj)*4}")
            a("s_waitcnt lgkmcnt(0)")
            if t == 0 and m == 0: a("s_nop 4")
            accb = V_ACC + 16*t + 8*m
            for pr in range(4):
                a(f"v_pk_mul_f32 v[{T+2*pr}:{T+2*pr+1}], v[{AB+8+2*pr}:{AB+9+2*pr}], v[{e+26}:{e+27}] op_sel_hi:[1,0]")
            for pr in range(4):
                a(f"v_pk_fma_f32 v[{T+2*pr}:{T+2*pr+1}], v[{accb+2*pr}:{accb+2*pr+1}], v[{AB+2*pr}:{AB+2*pr+1}], v[{T+2*pr}:{T+2*pr+1}]")
            P = T + 16 + 4 * m
            for pr in range(4):
                a(f"v_cvt_pk_bf16_f32 v{P+pr}, v{T+2*pr}, v{T+2*pr+1}")
            if m == 0: a(f"s_movk_i32 s52, {t*1280}")
            a(f"buffer_store_dwordx4 v[{P}:{P+3}], v{e+24}, s[48:51], s52 offen offset:{m*640}")
    a("s_endpgm")
```

```python
from asm import *
from layout import *

NWG_PREP = 396
LDS_PREP = 40960

def gen_prep(a, name):
    kernel_header(a, name)
    a(f"""
    s_cmp_ge_u32 s2, {NWG_PREP}
    s_cbranch_scc1 {name}_end
    s_load_dwordx4 s[4:7], s[0:1], 0        ; x, wqkv
    s_load_dwordx2 s[8:9], s[0:1], 16       ; wo
    s_load_dwordx4 s[12:15], s[0:1], 32     ; w1, w2
    s_load_dwordx2 s[10:11], s[0:1], 64     ; ws
    v_and_b32 v1, 63, v0                    ; lane
    v_lshrrev_b32 v2, 6, v0                 ; wave
    s_nop 0
    v_readfirstlane_b32 s16, v2             ; s16 = wave
    s_cmp_lt_u32 s2, 116
    s_cbranch_scc1 {name}_A
    s_cmp_lt_u32 s2, 268
    s_cbranch_scc1 {name}_B
    s_branch {name}_C
    """)
    a.label(f"{name}_A")
    a("""
    v_and_b32 v3, 31, v0                    ; qd
    v_lshrrev_b32 v4, 5, v0                 ; r0
    v_lshrrev_b32 v5, 3, v3                 ; sigma
    v_and_b32 v6, 7, v3                     ; Q
    s_waitcnt lgkmcnt(0)
    s_cmp_lt_u32 s2, 60
    """)
    a(f"s_cbranch_scc0 {name}_A_w1")
    a("""
    s_lshr_b32 s17, s2, 2                   ; nt
    s_and_b32 s18, s2, 3                    ; kq
    s_movk_i32 s19, 1920
    """)
    srd(a, 20, 6, 0, 640 * 1920 * 2)
    srd(a, 24, 10, ws.WQKV, ws.WQKV_SZ)
    srd(a, 28, 10, ws.CSQ, ws.CSQ_SZ)
    a("""
    s_lshl_b32 s33, s17, 2
    v_add_u32 v7, s33, v5                   ; slice
    s_cmp_ge_u32 s17, 10
    """)
    a(f"s_cbranch_scc1 {name}_A_vcol")
    a("""
    v_lshrrev_b32 v8, 2, v6
    v_lshlrev_b32 v8, 1, v8
    v_and_b32 v9, 1, v6
    v_add_u32 v8, v8, v9                    ; cidx
    v_bfe_u32 v9, v6, 1, 1                  ; eh
    v_cmp_le_u32 vcc, 20, v7
    s_nop 1
    v_cndmask_b32 v10, 0, 1, vcc            ; sec
    v_mul_u32_u24 v11, 20, v10
    v_sub_u32 v11, v7, v11                  ; slice % 20
    v_lshl_add_u32 v11, v11, 2, v8          ; chunk
    v_mul_u32_u24 v12, 205, v11
    v_lshrrev_b32 v12, 10, v12              ; p
    v_mul_u32_u24 v13, 5, v12
    v_sub_u32 v13, v11, v13                 ; r
    v_lshrrev_b32 v14, 1, v13               ; r>>1
    v_and_b32 v15, 1, v13
    v_lshlrev_b32 v15, 3, v15               ; 8*(r&1)
    v_lshl_add_u32 v15, v9, 2, v15          ; d = 8*(r&1)+4*eh
    v_cmp_eq_u32 vcc, 4, v13
    s_nop 1
    v_cndmask_b32 v14, v14, v9, vcc
    v_mov_b32 v16, 16
    v_cndmask_b32 v15, v15, v16, vcc        ; d
    v_lshl_add_u32 v14, v12, 1, v14         ; head
    v_mul_u32_u24 v14, 20, v14
    v_add_u32 v14, v14, v15
    v_mul_u32_u24 v10, 640, v10
    v_add_u32 v8, v14, v10                  ; col
    """)
    a(f"s_branch {name}_A_go")
    a.label(f"{name}_A_vcol")
    a("""
    v_lshlrev_b32 v8, 5, v7
    v_lshl_add_u32 v8, v6, 2, v8
    """)
    a(f"s_branch {name}_A_go")
    a.label(f"{name}_A_w1")
    a("""
    s_sub_u32 s33, s2, 60
    s_lshr_b32 s17, s33, 2
    s_and_b32 s18, s33, 3
    s_movk_i32 s19, 1728
    """)
    srd(a, 20, 12, 0, 640 * 1728 * 2)
    srd(a, 24, 10, ws.W1, ws.W1_SZ)
    srd(a, 28, 10, ws.CS1, ws.CS1_SZ)
    a("""
    s_lshl_b32 s33, s17, 2
    v_add_u32 v7, s33, v5                   ; slice
    v_lshlrev_b32 v8, 5, v7
    v_lshrrev_b32 v9, 2, v6
    v_lshl_add_u32 v8, v9, 4, v8            ; +16*(Q>>2)
    v_and_b32 v9, 1, v6
    v_lshl_add_u32 v8, v9, 3, v8            ; +8*(Q&1)
    v_bfe_u32 v9, v6, 1, 1
    v_lshl_add_u32 v8, v9, 2, v8            ; +4*((Q>>1)&1)
    """)
    a.label(f"{name}_A_go")
    a("""
    v_mul_lo_u32 v9, v4, s19
    v_add_u32 v9, v9, v8
    v_lshlrev_b32 v9, 1, v9                 ; voffset
    s_mul_i32 s34, s18, 160
    s_mul_i32 s34, s34, s19
    s_lshl_b32 s34, s34, 1                  ; soffset
    s_lshl_b32 s35, s19, 4                  ; 8 rows * N * 2
    """)
    for p in range(20):
        a(f"buffer_load_dwordx2 v[{20+2*p}:{21+2*p}], v9, s[20:23], s34 offen")
        if p < 19: a("s_add_u32 s34, s34, s35")
    a("v_lshlrev_b32 v10, 3, v0")
    for p in range(20):
        a(f"s_waitcnt vmcnt({19-p})")
        a(f"ds_write_b64 v10, v[{20+2*p}:{21+2*p}] offset:{p*2048}")
    a("""
    v_lshrrev_b32 v11, 4, v1                ; G
    v_bfe_u32 v12, v1, 2, 2                 ; r
    v_and_b32 v13, 3, v1                    ; c'
    v_lshrrev_b32 v14, 1, v11               ; h
    v_lshl_add_u32 v14, v14, 3, v12         ; 8h + r
    v_lshlrev_b32 v14, 8, v14               ; *256
    v_and_b32 v15, 1, v11
    v_lshl_add_u32 v15, v15, 2, v13         ; 4*(G&1)+c'
    v_lshl_add_u32 v15, v2, 3, v15          ; + 8*w
    v_lshl_add_u32 v14, v15, 3, v14         ; addr
    v_mov_b32 v16, 0x3f803f80
    v_mov_b32 v17, 0x3f803f80
    v_mov_b32 v18, 0x3f803f80
    v_mov_b32 v19, 0x3f803f80
    s_waitcnt lgkmcnt(0)
    s_barrier
    """)
    for ks in range(10):
        for u in range(2):
            a(f"ds_read_b64_tr_b16 v[{20+4*ks+2*u}:{21+4*ks+2*u}], v14 offset:{ks*4096+u*1024}")
    a("""
    s_lshl_b32 s33, s17, 2
    s_add_u32 s33, s33, s16
    s_mul_i32 s34, s33, 40
    s_mul_i32 s35, s18, 10
    s_add_u32 s34, s34, s35
    s_lshl_b32 s34, s34, 10                 ; soffset
    v_lshlrev_b32 v10, 4, v1
    """)
    for ks in range(10):
        a(f"s_waitcnt lgkmcnt({min(15, 18-2*ks)})" if ks < 9 else "s_waitcnt lgkmcnt(0)")
        a(f"buffer_store_dwordx4 v[{20+4*ks}:{23+4*ks}], v10, s[24:27], s34 offen")
        c = "0" if ks == 0 else "v[64:79]"
        a(f"v_mfma_f32_32x32x16_bf16 v[64:79], v[16:19], v[{20+4*ks}:{23+4*ks}], {c}")
        if ks < 9: a("s_add_u32 s34, s34, 1024")
    a("""
    v_and_b32 v11, 31, v1
    s_lshl_b32 s33, s33, 5
    v_add_u32 v11, s33, v11
    v_lshlrev_b32 v11, 4, v11
    s_lshl_b32 s35, s18, 2
    s_nop 15
    buffer_store_dword v64, v11, s[28:31], s35 offen
    s_endpgm
    """)
    a.label(f"{name}_B")
    a("""
    s_sub_u32 s33, s2, 116
    s_waitcnt lgkmcnt(0)
    s_cmp_lt_u32 s33, 112
    """)
    a(f"s_cbranch_scc0 {name}_B_wo")
    a("""
    s_mul_i32 s17, s33, 4682
    s_lshr_b32 s17, s17, 16                 ; j
    s_mul_i32 s18, s17, 14
    s_sub_u32 s18, s33, s18                 ; kr
    s_movk_i32 s19, 54
    """)
    srd(a, 20, 14, 0, 1728 * 640 * 2)
    srd(a, 24, 10, ws.W2, ws.W2_SZ)
    a("s_mov_b32 s36, 0")
    a(f"s_branch {name}_B_go")
    a.label(f"{name}_B_wo")
    a("""
    s_sub_u32 s33, s33, 112
    s_mul_i32 s17, s33, 205
    s_lshr_b32 s17, s17, 10                 ; j
    s_mul_i32 s18, s17, 5
    s_sub_u32 s18, s33, s18                 ; kr
    s_movk_i32 s19, 20
    """)
    srd(a, 20, 8, 0, 640 * 640 * 2)
    srd(a, 24, 10, ws.WO, ws.WO_SZ)
    a("s_mov_b32 s36, 1")
    a.label(f"{name}_B_go")
    a("""
    s_lshl_b32 s34, s18, 7                  ; 128*kr
    s_mul_i32 s35, s17, 160
    """)
    for p in range(5):
        a(f"""
        v_add_u32 v3, {256*p}, v0               ; i
        v_mul_u32_u24 v4, 6554, v3
        v_lshrrev_b32 v4, 16, v4                ; row
        v_mul_u32_u24 v5, 10, v4
        v_sub_u32 v5, v3, v5                    ; pc
        v_add_u32 v6, s34, v4                   ; k
        s_cmp_eq_u32 s36, 0
        s_cbranch_scc1 {name}_B_row{p}
        v_lshrrev_b32 v7, 3, v6                 ; c
        v_and_b32 v8, 7, v6                     ; e
        v_mul_u32_u24 v9, 205, v7
        v_lshrrev_b32 v9, 10, v9                ; p
        v_mul_u32_u24 v10, 5, v9
        v_sub_u32 v10, v7, v10                  ; r
        v_lshrrev_b32 v11, 1, v10
        v_and_b32 v12, 1, v10
        v_lshl_add_u32 v12, v12, 3, v8          ; d (r<4)
        v_lshrrev_b32 v13, 2, v8
        v_and_b32 v14, 3, v8
        v_add_u32 v14, 16, v14
        v_cmp_eq_u32 vcc, 4, v10
        s_nop 1
        v_cndmask_b32 v11, v11, v13, vcc
        v_cndmask_b32 v12, v12, v14, vcc
        v_lshl_add_u32 v11, v9, 1, v11          ; head
        v_mul_u32_u24 v11, 20, v11
        v_add_u32 v6, v11, v12
        """)
        a.label(f"{name}_B_row{p}")
        a(f"""
        v_mul_u32_u24 v6, 1280, v6
        v_lshl_add_u32 v6, v5, 4, v6
        buffer_load_dwordx4 v[{20+4*p}:{23+4*p}], v6, s[20:23], s35 offen
        """)
    a("v_lshlrev_b32 v10, 4, v0")
    for p in range(5):
        a(f"s_waitcnt vmcnt({4-p})")
        a(f"ds_write_b128 v10, v[{20+4*p}:{23+4*p}] offset:{p*4096}")
    a("""
    v_lshrrev_b32 v11, 4, v1                ; kg
    v_bfe_u32 v12, v1, 2, 2                 ; r
    v_and_b32 v13, 3, v1                    ; c'
    v_lshl_add_u32 v12, v11, 3, v12         ; 8kg + r
    v_lshl_add_u32 v12, v2, 5, v12          ; + 32 w
    v_mul_u32_u24 v12, 160, v12
    v_mul_u32_u24 v13, 40, v13
    v_add_u32 v14, v12, v13
    s_lshl_b32 s33, s18, 2
    s_add_u32 s33, s33, s16                 ; kstep
    s_waitcnt lgkmcnt(0)
    s_barrier
    s_cmp_ge_u32 s33, s19
    """)
    a(f"s_cbranch_scc1 {name}_end")
    for ft in range(5):
        for u in range(2):
            a(f"ds_read_b64_tr_b16 v[{20+4*ft+2*u}:{21+4*ft+2*u}], v14 offset:{u*640+ft*8}")
    a("""
    s_mul_i32 s34, s17, s19
    s_add_u32 s34, s34, s33
    s_mul_i32 s34, s34, 5120
    v_lshlrev_b32 v10, 4, v1
    """)
    for ft in range(5):
        a(f"s_waitcnt lgkmcnt({8-2*ft})")
        a(f"buffer_store_dwordx4 v[{20+4*ft}:{23+4*ft}], v10, s[24:27], s34 offen")
        if ft < 4: a("s_add_u32 s34, s34, 1024")
    a("s_endpgm")
    a.label(f"{name}_C")
    a("""
    s_sub_u32 s33, s2, 268
    s_lshl_b32 s33, s33, 4
    s_lshl_b32 s34, s16, 2
    s_add_u32 s33, s33, s34
    v_lshrrev_b32 v3, 4, v1
    v_add_u32 v3, s33, v3                   ; row
    v_and_b32 v4, 15, v1                    ; sub
    v_mul_u32_u24 v5, 1280, v3
    v_lshl_add_u32 v5, v4, 4, v5
    s_waitcnt lgkmcnt(0)
    """)
    srd(a, 20, 4, 0, M * D * 2)
    srd(a, 24, 10, ws.ST0, ws.ST0_SZ)
    for i in range(5):
        a(f"buffer_load_dwordx4 v[{20+4*i}:{23+4*i}], v5, s[20:23], 0 offen offset:{256*i}")
    a("""
    v_mov_b32 v6, 0
    v_mov_b32 v7, 0
    """)
    for i in range(5):
        a(f"s_waitcnt vmcnt({4-i})")
        for q in range(4):
            r = 20 + 4*i + q
            a(f"""
            v_lshlrev_b32 v8, 16, v{r}
            v_and_b32 v9, 0xffff0000, v{r}
            v_add_f32 v6, v6, v8
            v_fmac_f32 v7, v8, v8
            v_add_f32 v6, v6, v9
            v_fmac_f32 v7, v9, v9
            """)
    for rot in (8, 4, 2, 1):
        a(f"""
        s_nop 1
        v_add_f32_dpp v6, v6, v6 row_ror:{rot} row_mask:0xf bank_mask:0xf
        v_add_f32_dpp v7, v7, v7 row_ror:{rot} row_mask:0xf bank_mask:0xf
        """)
    a("""
    v_cmp_eq_u32 vcc, 0, v4
    s_nop 1
    v_cndmask_b32 v12, 0, v6, vcc
    v_cndmask_b32 v13, 0, v7, vcc
    v_mov_b32 v14, 0
    v_mov_b32 v15, 0
    v_lshlrev_b32 v10, 6, v3
    v_lshl_add_u32 v10, v4, 4, v10
    v_mov_b32 v11, 0x7ffffff0
    v_cmp_gt_u32 vcc, 4, v4
    s_nop 1
    v_cndmask_b32 v10, v11, v10, vcc
    buffer_store_dwordx4 v[12:15], v10, s[24:27], 0 offen
    """)
    a.label(f"{name}_end")
    a("s_endpgm")
    return kernel_desc(name, 80, 0, 48)
```

```python
from asm import *
from layout import *

V_LANE = 1; V_TOK = 2; V_G = 3
V_WOFF = 4
V_AOFF = 5
V_XOFF = 6
V_R = 8
V_T = 12
V_XO = 20
V_WF = 32
V_ACC = 72
V_E = 96
S_W = 16; S_RB = 17; S_J = 18
SLOT = 20480
NSLOT = 7
LDS_RES_W2 = NSLOT * SLOT
LDS_RES_WO = 5 * SLOT

def gen_resgemm(a, mode, entries):
    base = f"res_{mode}"
    NKS = 20 if mode == "wo" else 54
    NG = (NKS + 3) // 4
    for name, layer in entries:
        kernel_header(a, name)
        a(f"s_mov_b32 s3, {layer}")
        a(f"s_branch {base}_common")
    a.lines.append(".p2align 8")
    a.label(f"{base}_common")
    a(f"""
    s_cmp_ge_u32 s2, 256
    s_cbranch_scc1 {base}_end
    s_load_dwordx2 s[4:5], s[0:1], 0
    s_load_dwordx2 s[6:7], s[0:1], 64
    s_load_dwordx2 s[8:9], s[0:1], 48
    s_and_b32 s10, s2, 7
    s_lshr_b32 s11, s2, 3
    s_and_b32 s12, s10, 3
    s_lshl_b32 s12, s12, 3
    s_and_b32 s13, s11, 7
    s_add_u32 s{S_RB}, s12, s13
    s_lshr_b32 s12, s10, 2
    s_lshl_b32 s12, s12, 2
    s_lshr_b32 s13, s11, 3
    s_add_u32 s{S_J}, s12, s13
    v_and_b32 v{V_LANE}, 63, v0
    v_lshrrev_b32 v{V_T}, 6, v0
    v_and_b32 v{V_TOK}, 15, v0
    v_readfirstlane_b32 s{S_W}, v{V_T}
    v_bfe_u32 v{V_G}, v0, 4, 2
    v_lshlrev_b32 v{V_WOFF}, 4, v{V_LANE}
    v_mov_b32 v{V_R}, v{V_WOFF}
    v_add_u32 v{V_R+1}, 0x10000, v{V_WOFF}
    v_add_u32 v{V_R+2}, 0x20000, v{V_WOFF}
    v_lshlrev_b32 v{V_AOFF}, 15, v{V_G}
    v_lshl_add_u32 v{V_AOFF}, v{V_TOK}, 4, v{V_AOFF}
    s_lshl_b32 s19, s{S_RB}, 6
    s_lshl_b32 s20, s{S_W}, 4
    s_add_u32 s19, s19, s20
    v_add_u32 v{V_T}, s19, v{V_TOK}
    v_mul_u32_u24 v{V_XOFF}, 1280, v{V_T}
    v_mul_u32_u24 v{V_T+1}, 40, v{V_G}
    v_add_u32 v{V_XOFF}, v{V_XOFF}, v{V_T+1}
    s_mul_i32 s20, s{S_J}, 160
    v_add_u32 v{V_XOFF}, s20, v{V_XOFF}
    s_waitcnt lgkmcnt(0)
    """)
    if mode == "wo":
        a(f"""
        s_add_u32 s12, s6, {ws.X2}
        s_addc_u32 s13, s7, 0
        s_cmp_eq_u32 s3, 0
        s_cselect_b32 s12, s4, s12
        s_cselect_b32 s13, s5, s13
        s_mov_b32 s21, {ws.X3}
        s_cselect_b32 s21, {ws.X1}, s21
        s_mov_b32 s22, {ws.ST3}
        s_cselect_b32 s22, {ws.ST1}, s22
        s_add_u32 s14, s6, s21
        s_addc_u32 s15, s7, 0
        """)
        act, actsz, wt, wtsz = ws.O, ws.O_SZ, ws.WO, ws.WO_SZ
    else:
        a(f"""
        s_cmp_eq_u32 s3, 0
        s_mov_b32 s21, {ws.X3}
        s_cselect_b32 s21, {ws.X1}, s21
        s_add_u32 s12, s6, s21
        s_addc_u32 s13, s7, 0
        s_add_u32 s14, s6, {ws.X2}
        s_addc_u32 s15, s7, 0
        s_cmp_eq_u32 s3, 0
        s_cselect_b32 s14, s14, s8
        s_cselect_b32 s15, s15, s9
        s_mov_b32 s22, {ws.ST2}
        """)
        act, actsz, wt, wtsz = ws.HH, ws.HH_SZ, ws.W2, ws.W2_SZ
    srd(a, 24, 12, 0, M * D * 2)
    srd(a, 28, 14, 0, M * D * 2)
    srd(a, 32, 6, act, actsz)
    srd(a, 36, 6, wt, wtsz)
    a(f"""
    s_add_u32 s40, s6, s22
    s_addc_u32 s41, s7, 0
    s_and_b32 s41, s41, 0xffff
    s_mov_b32 s42, {M*64}
    s_mov_b32 s43, 0x20000
    s_lshl_b32 s44, s19, 4
    s_mul_i32 s45, s{S_J}, {NKS*5120}
    s_mul_i32 s46, s{S_W}, 5120
    s_add_u32 s45, s45, s46
    s_mul_i32 s47, s{S_W}, 3072
    s_mul_i32 s48, s{S_J}, {NKS*5120}
    s_add_u32 s48, s48, s47
    buffer_load_dwordx4 v[{V_XO}:{V_XO+3}], v{V_XOFF}, s[24:27], 0 offen
    buffer_load_dwordx4 v[{V_XO+4}:{V_XO+7}], v{V_XOFF}, s[24:27], 0 offen offset:16
    buffer_load_dwordx2 v[{V_XO+8}:{V_XO+9}], v{V_XOFF}, s[24:27], 0 offen offset:32
    """)
    ops = ["X", "X", "X"]
    def issue_group(g):
        slot = g % NSLOT
        nk = min(4, NKS - 4*g)
        a.c(f"issue group {g}")
        for i in range(nk):
            n = 4*g + i
            a(f"s_add_u32 s49, s44, {n*4*32768}")
            a(f"buffer_load_dwordx4 a[{4*n}:{4*n+3}], v{V_AOFF}, s[32:35], s49 offen")
            ops.append(("A", g))
        if nk == 4:
            for j in range(5):
                a(f"s_add_u32 s49, s45, {g*SLOT + j*1024}")
                a(f"s_add_u32 m0, s46, {slot*SLOT + j*1024}")
                a("s_nop 0")
                a(f"buffer_load_dwordx4 v{V_WOFF}, s[36:39], s49 offen lds")
                ops.append(("D", g))
        else:
            for j in range(3):
                a(f"s_add_u32 s49, s48, {g*SLOT + j*1024}")
                a(f"s_add_u32 m0, s47, {slot*SLOT + j*1024}")
                a("s_nop 0")
                a(f"buffer_load_dwordx4 v{V_WOFF}, s[36:39], s49 offen lds")
                ops.append(("D", g))
    def wait_group(g):
        last = max(i for i, o in enumerate(ops) if o == ("D", g))
        a(f"s_waitcnt vmcnt({len(ops) - 1 - last})")
    DEPTH = min(NG, 6)
    for g in range(DEPTH): issue_group(g)
    next_g = DEPTH
    wait_group(0)
    a("s_barrier")
    def reads(n):
        g = n >> 2; slot = g % NSLOT
        off = slot*SLOT + (n & 3)*5120
        buf = V_WF + 20*(n & 1)
        for ft in range(5):
            o = off + ft*1024
            a(f"ds_read_b128 v[{buf+4*ft}:{buf+4*ft+3}], v{V_R+(o>>16)} offset:{o & 0xffff}")
    reads(0)
    for n in range(NKS):
        if n + 1 < NKS:
            if (n + 1) % 4 == 0:
                wait_group((n + 1) >> 2)
                a("s_barrier")
                if next_g < NG:
                    issue_group(next_g); next_g += 1
            reads(n + 1)
            a("s_waitcnt lgkmcnt(5)")
        else:
            a("s_waitcnt lgkmcnt(0)")
        buf = V_WF + 20*(n & 1)
        for ft in range(5):
            acc = f"v[{V_ACC+4*ft}:{V_ACC+4*ft+3}]"
            c = "0" if n == 0 else acc
            a(f"v_mfma_f32_16x16x32_bf16 {acc}, v[{buf+4*ft}:{buf+4*ft+3}], a[{4*n}:{4*n+3}], {c}")
    e = V_E
    a("s_nop 7")
    for q in range(10):
        ft, half = divmod(q, 2)
        a(f"v_lshlrev_b32 v{e+2*q}, 16, v{V_XO+q}")
        a(f"v_and_b32 v{e+2*q+1}, 0xffff0000, v{V_XO+q}")
    for i in range(20):
        a(f"v_add_f32 v{e+i}, v{e+i}, v{V_ACC+i}")
    for q in range(10):
        a(f"v_cvt_pk_bf16_f32 v{e+24+q}, v{e+2*q}, v{e+2*q+1}")
    a(f"""
    buffer_store_dwordx4 v[{e+24}:{e+27}], v{V_XOFF}, s[28:31], 0 offen
    buffer_store_dwordx4 v[{e+28}:{e+31}], v{V_XOFF}, s[28:31], 0 offen offset:16
    buffer_store_dwordx2 v[{e+32}:{e+33}], v{V_XOFF}, s[28:31], 0 offen offset:32
    """)
    if mode == "w2":
        a(f"s_cmp_lg_u32 s3, 0")
        a(f"s_cbranch_scc1 {base}_end")
    for q in range(10):
        a(f"v_lshlrev_b32 v{e+2*q}, 16, v{e+24+q}")
        a(f"v_and_b32 v{e+2*q+1}, 0xffff0000, v{e+24+q}")
    a(f"v_mov_b32 v{e+40}, 0")
    a(f"v_mov_b32 v{e+41}, 0")
    for i in range(20):
        a(f"v_add_f32 v{e+40}, v{e+40}, v{e+i}")
        a(f"v_fmac_f32 v{e+41}, v{e+i}, v{e+i}")
    a(f"""
    v_mov_b32 v{e+42}, v{e+40}
    v_mov_b32 v{e+43}, v{e+41}
    s_nop 1
    v_permlane32_swap_b32 v{e+40}, v{e+42}
    v_permlane32_swap_b32 v{e+41}, v{e+43}
    v_add_f32 v{e+40}, v{e+40}, v{e+42}
    v_add_f32 v{e+41}, v{e+41}, v{e+43}
    v_mov_b32 v{e+42}, v{e+40}
    v_mov_b32 v{e+43}, v{e+41}
    s_nop 1
    v_permlane16_swap_b32 v{e+40}, v{e+42}
    v_permlane16_swap_b32 v{e+41}, v{e+43}
    v_add_f32 v{e+40}, v{e+40}, v{e+42}
    v_add_f32 v{e+41}, v{e+41}, v{e+43}
    v_add_u32 v{V_T}, s19, v{V_TOK}
    v_lshlrev_b32 v{V_T}, 6, v{V_T}
    s_lshl_b32 s49, s{S_J}, 3
    v_mov_b32 v{V_T+1}, 0x7ffffff0
    v_cmp_eq_u32 vcc, 0, v{V_G}
    s_nop 1
    v_cndmask_b32 v{V_T}, v{V_T+1}, v{V_T}, vcc
    buffer_store_dwordx2 v[{e+40}:{e+41}], v{V_T}, s[40:43], s49 offen
    """)
    a.label(f"{base}_end")
    a("s_endpgm")
    agpr = 4 * NKS
    return "".join(kernel_desc(name, 144, agpr, 64) for name, _ in entries)
```

```python
M = 2048; D = 640; H = 32; DH = 20; F = 1728
EPS = 1e-5

def al(x, a=4096): return (x + a - 1) // a * a

class WS: pass
ws = WS()
_off = 0
def _alloc(name, size):
    global _off
    setattr(ws, name, _off)
    setattr(ws, name + "_SZ", size)
    _off = al(_off + size)

_alloc("WQKV", 60 * 40 * 1024)
_alloc("W1",   54 * 40 * 1024)
_alloc("WO",   8 * 20 * 5120)
_alloc("W2",   8 * 54 * 5120)
_alloc("CSQ",  1920 * 16)
_alloc("CS1",  1728 * 16)
_alloc("ST0",  M * 64)
_alloc("ST1",  M * 64)
_alloc("ST2",  M * 64)
_alloc("ST3",  M * 64)
QK1_SZ = 32 * 64 * 1024
QK2_SZ = 16 * 2048 * 16
_alloc("Q", QK1_SZ + QK2_SZ)
_alloc("K", QK1_SZ + QK2_SZ)
_alloc("V", 32 * 64 * 1280)
_alloc("O", 80 * M * 16)
_alloc("HH", 216 * M * 16)
_alloc("X1", M * D * 2)
_alloc("X2", M * D * 2)
_alloc("X3", M * D * 2)
WS_USED = _off

def chunk_to_hd(c, e):
    p, r = divmod(c, 5)
    if r < 4:
        return 2 * p + (r >> 1), 8 * (r & 1) + e
    return 2 * p + (e >> 2), 16 + (e & 3)

def rho_to_ce(rho):
    return 2 * (rho >> 4) + ((rho >> 2) & 1), 4 * ((rho >> 3) & 1) + (rho & 3)

def qkv_col(slice_, rho):
    if slice_ >= 40:
        return 1280 + 32 * (slice_ - 40) + rho
    c, e = rho_to_ce(rho)
    head, d = chunk_to_hd(4 * (slice_ % 20) + c, e)
    return 640 * (slice_ // 20) + 20 * head + d

def w1_col(slice_, rho):
    c, e = rho_to_ce(rho)
    return 32 * slice_ + 8 * c + e

def res_feat(j, ft, rho16):
    return 80 * j + 20 * (rho16 >> 2) + 4 * ft + (rho16 & 3)

def wo_row(k):
    head, d = chunk_to_hd(k >> 3, k & 7)
    return 20 * head + d

def v_rho(d):
    if d >= 16: return d
    return 8 * ((d >> 2) & 1) + 4 * (d >> 3) + (d & 3)

if __name__ == "__main__":
    for k, v in vars(ws).items(): print(k, v)
    print("used", WS_USED)
```

```python
import sys, os
sys.path.insert(0, os.path.dirname(os.path.abspath(__file__)))
from asm import *
from layout import *
import k_prep, k_lngemm, k_attn, k_resgemm

NAME = "interleave_layers__mha_block__dense_activation_silu__prompt"
HDR = """; Kernarg layout for this problem (72 bytes, ptrs only, base s[0:1]):
"""
def build(launches=None):
    a = Asm()
    descs = []
    descs.append(k_prep.gen_prep(a, "prep_kernel"))
    descs.append(k_lngemm.gen_lngemm(a, "qkv", [("qkv1_kernel", 0), ("qkv2_kernel", 1)]))
    descs.append(k_attn.gen_attn(a, "attn_kernel"))
    descs.append(k_resgemm.gen_resgemm(a, "wo", [("wo1_kernel", 0), ("wo2_kernel", 1)]))
    descs.append(k_lngemm.gen_lngemm(a, "w1", [("up1_kernel", 0), ("up2_kernel", 1)]))
    descs.append(k_resgemm.gen_resgemm(a, "w2", [("down1_kernel", 0), ("down2_kernel", 1)]))
    L = {
     "prep": ("prep_kernel", k_prep.NWG_PREP, 256, k_prep.LDS_PREP),
     "qkv1": ("qkv1_kernel", 256, 256, k_lngemm.LDS_LN),
     "qkv2": ("qkv2_kernel", 256, 256, k_lngemm.LDS_LN),
     "attn": ("attn_kernel", 256, 512, k_attn.LDS_ATT),
     "wo1": ("wo1_kernel", 256, 256, k_resgemm.LDS_RES_WO),
     "wo2": ("wo2_kernel", 256, 256, k_resgemm.LDS_RES_WO),
     "up1": ("up1_kernel", 256, 256, k_lngemm.LDS_LN),
     "up2": ("up2_kernel", 256, 256, k_lngemm.LDS_LN),
     "down1": ("down1_kernel", 256, 256, k_resgemm.LDS_RES_W2),
     "down2": ("down2_kernel", 256, 256, k_resgemm.LDS_RES_W2),
    }
    order = launches or ["prep", "qkv1", "attn", "wo1", "up1", "down1", "qkv2", "attn", "wo2", "up2", "down2"]
    hdr = HDR
    for k in order:
        n, g, b, l = L[k]
        hdr += f"; @launch kernel={n} grid=({g},1,1) block=({b},1,1) lds={l}\n"
    out = hdr + '.amdgcn_target "amdgcn-amd-amdhsa--gfx950"\n' + a.text()
    out += '.section .rodata,"a"\n'
    for d in descs:
        for blk in d.split(".amdhsa_kernel ")[1:]:
            out += ".p2align 6\n.amdhsa_kernel " + blk
    return out

if __name__ == "__main__":
    dst = sys.argv[1] if len(sys.argv) > 1 else f"cdna_kernels/{NAME}.s"
    open(dst, "w").write(build())
    print("wrote", dst, os.path.getsize(dst))
```

```python
class Asm:
    def __init__(self):
        self.lines = []
    def __call__(self, s=""):
        for l in s.split("\n"):
            l = l.rstrip()
            if l.strip() == "": continue
            if l.strip().endswith(":") and not l.startswith(" "):
                self.lines.append(l)
            else:
                self.lines.append("    " + l.strip())
    def label(self, name): self.lines.append(name + ":")
    def c(self, text): self.lines.append("    ; " + text)
    def text(self): return "\n".join(self.lines) + "\n"

def vr(base, n=1):
    return f"v{base}" if n == 1 else f"v[{base}:{base+n-1}]"
def ar(base, n=1):
    return f"a{base}" if n == 1 else f"a[{base}:{base+n-1}]"
def sr(base, n=1):
    return f"s{base}" if n == 1 else f"s[{base}:{base+n-1}]"

def srd(a, d, ptr, off, size):
    if off:
        a(f"s_add_u32 s{d}, s{ptr}, {off}")
        a(f"s_addc_u32 s{d+1}, s{ptr+1}, 0")
        a(f"s_and_b32 s{d+1}, s{d+1}, 0xffff")
    else:
        a(f"s_mov_b32 s{d}, s{ptr}")
        a(f"s_and_b32 s{d+1}, s{ptr+1}, 0xffff")
    a(f"s_mov_b32 s{d+2}, {size}")
    a(f"s_mov_b32 s{d+3}, 0x20000")

def kernel_header(a, name):
    a.lines.append(".text")
    a.lines.append(f".globl {name}")
    a.lines.append(".p2align 8")
    a.lines.append(f".type {name},@function")
    a.lines.append(f"{name}:")

def kernel_desc(name, vgpr, agpr=0, sgpr=102):
    acc = (vgpr + 3) // 4 * 4
    nfv = acc + agpr if agpr else vgpr
    return f""".amdhsa_kernel {name}
  .amdhsa_next_free_vgpr {nfv}
  .amdhsa_next_free_sgpr {sgpr}
  .amdhsa_accum_offset {acc}
  .amdhsa_group_segment_fixed_size 0
  .amdhsa_kernarg_size 72
  .amdhsa_user_sgpr_count 2
  .amdhsa_user_sgpr_kernarg_segment_ptr 1
  .amdhsa_system_sgpr_workgroup_id_x 1
  .amdhsa_float_denorm_mode_32 3
.end_amdhsa_kernel
"""

STAMPS = False
STAMP_BASE = 70
STAMP_WS = 48 << 20
import os
STAMPSET = os.environ.get("STAMPSET", "main")
def stamp(a, i, set_="main"):
    if not STAMPS or (set_ != STAMPSET and not (i == 0)): return
    a(f"s_memtime s[{STAMP_BASE+2*i}:{STAMP_BASE+2*i+1}]")
    if i == 0:
        a("s_memrealtime s[90:91]")
        for k in range(1, 7): a(f"s_mov_b64 s[{STAMP_BASE+2*k}:{STAMP_BASE+2*k+1}], 0")
    a("s_waitcnt lgkmcnt(0)")
def stamp_dump(a, n, slot_expr_sgpr, wsptr=6):
    if not STAMPS: return
    n = 7
    a("s_waitcnt vmcnt(0)")
    a(f"s_memtime s[{STAMP_BASE+2*n}:{STAMP_BASE+2*n+1}]")
    a(f"s_memrealtime s[96:97]")
    a("s_waitcnt lgkmcnt(0)")
    a(f"s_add_u32 s98, s{wsptr}, {STAMP_WS}")
    a(f"s_addc_u32 s99, s{wsptr+1}, 0")
    a(f"s_lshl_b32 s94, s2, 10")
    a(f"s_mul_i32 s95, {slot_expr_sgpr}, 524288")
    a(f"s_add_u32 s94, s94, s95")
    a(f"s_lshl_b32 s95, s16, 7")
    a(f"s_add_u32 s94, s94, s95")
    a("v_and_b32 v4, 63, v0")
    a("v_cmp_eq_u32 vcc, 0, v4")
    a("s_nop 1")
    a("s_and_saveexec_b64 s[100:101], vcc")
    a("s_cbranch_execz .+0") if False else None
    for i in range(n + 1):
        a(f"v_mov_b32 v4, s{STAMP_BASE+2*i}")
        a(f"v_mov_b32 v5, s{STAMP_BASE+2*i+1}")
        a(f"v_mov_b32 v6, s94")
        a(f"global_store_dwordx2 v6, v[4:5], s[98:99] offset:{8*i}")
        a("s_nop 1")
    a("v_mov_b32 v4, s96")
    a("v_mov_b32 v5, s97")
    a("v_mov_b32 v6, s94")
    a("global_store_dwordx2 v6, v[4:5], s[98:99] offset:120")
    a("s_nop 1")
    a("v_mov_b32 v4, s90")
    a("v_mov_b32 v5, s91")
    a("global_store_dwordx2 v6, v[4:5], s[98:99] offset:112")
    a("s_mov_b64 exec, s[100:101]")
```

```python
from asm import *
from layout import *
import asm as ASM

V_LANE = 1; V_TOK = 2; V_H = 3
V_KA = 4
V_K2A = 5
V_VA = 6
V_T = 8
V_Q = 16
V_K = 40
V_V = 52
V_S = 68
V_P = 100
V_O = 116
V_X = 180
NV = 192
S_W = 16; S_HH = 17; S_KQ = 18; S_P = 19; S_QB = 20; S_PASS = 21
LDS_RED = 8 * 4 * 3 * 1024
LDS_MX = LDS_RED
LDS_FLAG = LDS_MX + 4096
LDS_ATT = LDS_FLAG + 64

def Qf(t): return V_Q + 6*t
def Kf(b): return V_K + 6*b
def Vf(b): return V_V + 8*b
def Sb(b): return V_S + 16*b
def Pb(b): return V_P + 8*b
def Oa(t): return V_O + 16*t

M16 = "v_mfma_f32_32x32x16_bf16"
M8 = "v_mfma_f32_32x32x8_bf16"

def gen_attn(a, name):
    kernel_header(a, name)
    n = name
    a(f"""
    s_cmp_ge_u32 s2, 256
    s_cbranch_scc1 {n}_end
    s_load_dwordx2 s[6:7], s[0:1], 64
    """)
    stamp(a, 0)
    a(f"""
    s_and_b32 s8, s2, 7
    s_lshr_b32 s9, s2, 3
    s_and_b32 s10, s9, 1
    s_lshl_b32 s10, s10, 3
    s_add_u32 s{S_P}, s8, s10
    s_lshr_b32 s{S_QB}, s2, 4
    v_and_b32 v{V_LANE}, 63, v0
    v_lshrrev_b32 v{V_T}, 6, v0
    v_and_b32 v{V_TOK}, 31, v0
    v_readfirstlane_b32 s{S_W}, v{V_T}
    v_bfe_u32 v{V_H}, v0, 5, 1
    v_lshlrev_b32 v{V_KA}, 4, v{V_LANE}
    s_nop 0
    s_lshr_b32 s{S_HH}, s{S_W}, 2
    s_and_b32 s{S_KQ}, s{S_W}, 3
    s_lshl_b32 s22, s{S_P}, 1
    s_add_u32 s22, s22, s{S_HH}                 ; head
    v_lshlrev_b32 v{V_K2A}, 4, v{V_TOK}
    s_lshl_b32 s23, s{S_HH}, 3
    v_add_u32 v{V_K2A}, s23, v{V_K2A}
    v_mul_u32_u24 v{V_VA}, 320, v{V_H}
    v_lshl_add_u32 v{V_VA}, v{V_TOK}, 4, v{V_VA}
    s_mov_b32 s24, 0xffffffff
    s_mov_b32 s25, 0
    s_mov_b32 s26, 0x000fffff
    s_mov_b32 s27, 0x000fffff
    s_waitcnt lgkmcnt(0)
    """)
    srd(a, 28, 6, ws.Q, ws.Q_SZ)
    srd(a, 32, 6, ws.K, ws.K_SZ)
    srd(a, 36, 6, ws.V, ws.V_SZ)
    srd(a, 40, 6, ws.O, ws.O_SZ)
    for t in range(4):
        a(f"v_mov_b32 v{Qf(t)+4}, 0")
        a(f"v_mov_b32 v{Qf(t)+5}, 0")
    for b in range(2):
        a(f"v_mov_b32 v{Kf(b)+4}, 0x3f803f80")
        a(f"v_mov_b32 v{Kf(b)+5}, 0x00003f80")
        for i in range(8):
            a(f"v_mov_b32 v{Vf(b)+i}, 0x3f803f80")
    a(f"""
    s_lshl_b32 s44, s22, 6                      ; head*64
    s_lshl_b32 s45, s{S_QB}, 2
    s_add_u32 s46, s44, s45
    s_lshl_b32 s46, s46, 10                     ; Q1 offset
    s_lshl_b32 s47, s{S_P}, 6
    s_add_u32 s47, s47, s45
    s_lshl_b32 s47, s47, 9
    s_add_u32 s47, s47, {QK1_SZ}                ; Q2 offset
    """)
    for t in range(4):
        a(f"buffer_load_dwordx4 v[{Qf(t)}:{Qf(t)+3}], v{V_KA}, s[28:31], s46 offen offset:{t*1024}")
    a("s_mov_b64 exec, s[24:25]")
    for t in range(4):
        a(f"buffer_load_dwordx2 v[{Qf(t)+4}:{Qf(t)+5}], v{V_K2A}, s[28:31], s47 offen offset:{t*512}")
    a("s_mov_b64 exec, -1")
    a(f"""
    s_lshl_b32 s48, s{S_KQ}, 4
    s_add_u32 s49, s44, s48
    s_lshl_b32 s50, s49, 10                     ; K1 base
    s_mul_i32 s51, s49, 1280                    ; V base
    s_lshl_b32 s52, s{S_P}, 6
    s_add_u32 s52, s52, s48
    s_lshl_b32 s52, s52, 9
    s_add_u32 s52, s52, {QK1_SZ}                ; K2 base
    s_mov_b32 s{S_PASS}, 0
    """)
    def load_kv(b, with_v=True):
        a(f"buffer_load_dwordx4 v[{Kf(b)}:{Kf(b)+3}], v{V_KA}, s[32:35], s53 offen")
        a("s_mov_b64 exec, s[24:25]")
        a(f"buffer_load_dwordx2 v[{Kf(b)+4}:{Kf(b)+5}], v{V_K2A}, s[32:35], s55 offen")
        if with_v:
            a("s_mov_b64 exec, s[26:27]")
            a(f"buffer_load_dwordx4 v[{Vf(b)}:{Vf(b)+3}], v{V_VA}, s[36:39], s54 offen")
            a(f"buffer_load_dwordx4 v[{Vf(b)+4}:{Vf(b)+7}], v{V_VA}, s[36:39], s54 offen offset:640")
        a("s_mov_b64 exec, -1")
        a("s_add_u32 s53, s53, 1024")
        a("s_add_u32 s54, s54, 1280")
        a("s_add_u32 s55, s55, 512")
    def qk(t, b, sb):
        return [f"{M16} v[{Sb(sb)}:{Sb(sb)+15}], v[{Kf(b)}:{Kf(b)+3}], v[{Qf(t)}:{Qf(t)+3}], 0",
                f"{M8} v[{Sb(sb)}:{Sb(sb)+15}], v[{Kf(b)+4}:{Kf(b)+5}], v[{Qf(t)+4}:{Qf(t)+5}], v[{Sb(sb)}:{Sb(sb)+15}]"]
    def pv(t, b, pb, m, first=False):
        c = f"v[{Oa(t)}:{Oa(t)+15}]"
        return f"{M16} {c}, v[{Vf(b)+4*m}:{Vf(b)+4*m+3}], v[{Pb(pb)+4*m}:{Pb(pb)+4*m+3}], {c}"

    a.label(f"{n}_main")
    a("""
    s_mov_b32 s53, s50
    s_mov_b32 s54, s51
    s_mov_b32 s55, s52
    """)
    for t in range(4):
        for i in range(16):
            a(f"v_mov_b32 v{Oa(t)+i}, 0")
    for i in range(4, 8):
        a(f"v_mov_b32 v{Pb(1)+i}, 0")
    load_kv(0)
    a("s_waitcnt vmcnt(0)")
    for l in qk(0, 0, 0): a(l)
    a("s_nop 7")
    a("s_nop 3")
    stamp(a, 1)
    a("s_mov_b32 s56, 8")
    a.lines.append(".p2align 6")
    a.label(f"{n}_loop")
    for b in range(2):
        for t in range(4):
            sb = t & 1; nsb = sb ^ 1; pb = t & 1
            S = Sb(sb); P = Pb(pb)
            if t < 3:
                nq = qk(t+1, b, nsb)
            else:
                nq = qk(0, b ^ 1, nsb)
            if t > 0: prev = pv(t-1, b, pb ^ 1, 1)
            else:     prev = pv(3, b ^ 1, pb ^ 1, 1)
            E = [f"v_exp_f32 v{S+i}, v{S+i}" for i in range(16)]
            C = [f"v_cvt_pk_bf16_f32 v{P+i}, v{S+2*i}, v{S+2*i+1}" for i in range(8)]
            if t == 3:
                a("s_waitcnt vmcnt(0)")
            a(nq[0])
            a(E[0]); a(E[1])
            first_iter_guard = (b == 0 and t == 0)
            if first_iter_guard:
                pass
            a(prev)
            if t == 0:
                pass
            a(E[2]); a(E[3])
            a(nq[1])
            a(C[0]); a(C[1])
            a(E[4]); a(E[5]); a(E[6]); a(E[7])
            a(C[2]); a(C[3])
            a(E[8]); a(E[9])
            a(pv(t, b, pb, 0))
            if t == 0:
                load_kv(b ^ 1)
            a(E[10]); a(E[11])
            a(C[4]); a(C[5])
            a(E[12]); a(E[13]); a(E[14]); a(E[15])
            a(C[6]); a(C[7])
    a("""
    s_sub_u32 s56, s56, 1
    s_cmp_lg_u32 s56, 0
    """)
    a(f"s_cbranch_scc1 {n}_loop")
    a("s_nop 1")
    a(pv(3, 1, 1, 1))
    a("s_waitcnt vmcnt(0)")
    stamp(a, 2)
    a(f"""
    s_mul_i32 s57, s{S_W}, 12288
    v_add_u32 v{V_T}, s57, v{V_KA}
    s_nop 7
    s_nop 3
    """)
    for t in range(4):
        for q in range(3):
            a(f"ds_write_b128 v{V_T}, v[{Oa(t)+4*q}:{Oa(t)+4*q+3}] offset:{(t*3+q)*1024}")
    a(f"""
    s_waitcnt lgkmcnt(0)
    s_barrier
    s_mul_i32 s57, s{S_HH}, 49152
    s_mul_i32 s58, s{S_KQ}, 3072
    s_add_u32 s57, s57, s58
    v_add_u32 v{V_T}, s57, v{V_KA}
    """)
    stamp(a, 3)
    R = V_S
    for kq in range(4):
        for q in range(3):
            a(f"ds_read_b128 v[{R+12*kq+4*q}:{R+12*kq+4*q+3}], v{V_T} offset:{kq*12288+q*1024}")
    a("s_waitcnt lgkmcnt(0)")
    for i in range(12):
        a(f"v_add_f32 v{R+i}, v{R+i}, v{R+12+i}")
        a(f"v_add_f32 v{R+24+i}, v{R+24+i}, v{R+36+i}")
    for i in range(12):
        a(f"v_add_f32 v{R+i}, v{R+i}, v{R+24+i}")
    X = V_X
    a(f"""
    v_mov_b32 v{X}, v{R+8}
    v_mov_b32 v{X+1}, v{R+8}
    s_nop 1
    v_permlane32_swap_b32 v{X}, v{X+1}
    v_rcp_f32 v{X+2}, v{X+1}
    """)
    a(f"""
    v_mov_b32 v{X+3}, 0
    """)
    for i in range(12):
        a(f"v_and_b32 v{X+4}, 0x7fffffff, v{R+i}")
        a(f"v_max_u32 v{X+3}, v{X+3}, v{X+4}") if not (i >= 8) else None
    a(f"""
    v_cmp_eq_u32 vcc, 0, v{V_H}
    s_nop 0
    """)
    for i in range(8, 12):
        a(f"v_and_b32 v{X+4}, 0x7fffffff, v{R+i}")
        a(f"v_cndmask_b32 v{X+4}, 0, v{X+4}, vcc")
        a(f"v_max_u32 v{X+3}, v{X+3}, v{X+4}")
    a(f"""
    s_mov_b32 s59, 0x7f000000
    v_cmp_le_u32 s[60:61], s59, v{X+3}
    s_mov_b32 s59, 0x21800000                   ; 2^-60
    v_cmp_nle_f32 s[62:63], s59, v{X+1}         ; !(2^-60 <= l)
    s_mov_b32 s59, 0x5d800000                   ; 2^60
    v_cmp_nge_f32 s[64:65], s59, v{X+1}         ; !(2^60 >= l)
    s_or_b64 s[60:61], s[60:61], s[62:63]
    s_or_b64 s[60:61], s[60:61], s[64:65]
    s_cmp_lg_u64 s[60:61], 0
    s_cselect_b32 s59, 1, 0
    s_cmp_lg_u32 s{S_PASS}, 0
    s_cselect_b32 s59, 0, s59
    v_mov_b32 v{X+4}, s59
    s_lshl_b32 s57, s{S_W}, 2
    s_add_u32 s57, s57, {LDS_FLAG}
    v_mov_b32 v{X+5}, s57
    ds_write_b32 v{X+5}, v{X+4}
    """)
    for i in range(12):
        a(f"v_mul_f32 v{R+i}, v{R+i}, v{X+2}")
    for i in range(6):
        a(f"v_cvt_pk_bf16_f32 v{R+12+i}, v{R+2*i}, v{R+2*i+1}")
    a(f"""
    s_mul_i32 s57, s{S_P}, 5
    s_lshl_b32 s58, s{S_HH}, 1
    s_add_u32 s58, s58, s57
    v_add_u32 v{X+6}, s58, v{V_H}
    v_lshlrev_b32 v{X+6}, 15, v{X+6}
    v_lshl_add_u32 v{X+6}, v{V_TOK}, 4, v{X+6}
    s_lshl_b32 s58, s{S_QB}, 2
    s_add_u32 s58, s58, s{S_KQ}
    s_lshl_b32 s58, s58, 9
    buffer_store_dwordx4 v[{R+12}:{R+15}], v{X+6}, s[40:43], s58 offen
    s_add_u32 s57, s57, 4
    s_lshl_b32 s57, s57, 15
    s_add_u32 s57, s57, s58
    s_mov_b64 exec, s[24:25]
    buffer_store_dwordx2 v[{R+16}:{R+17}], v{V_K2A}, s[40:43], s57 offen
    s_mov_b64 exec, -1
    s_waitcnt lgkmcnt(0)
    s_barrier
    v_mov_b32 v{X+5}, {LDS_FLAG}
    ds_read_b128 v[{X+6}:{X+9}], v{X+5}
    ds_read_b128 v[{X+2}:{X+5}], v{X+5} offset:16
    s_waitcnt lgkmcnt(0)
    """)
    a(f"""
    v_or_b32 v{X+6}, v{X+6}, v{X+7}
    v_or_b32 v{X+8}, v{X+8}, v{X+9}
    v_or_b32 v{X+2}, v{X+2}, v{X+3}
    v_or_b32 v{X+4}, v{X+4}, v{X+5}
    v_or_b32 v{X+6}, v{X+6}, v{X+8}
    v_or_b32 v{X+2}, v{X+2}, v{X+4}
    v_or_b32 v{X+6}, v{X+6}, v{X+2}
    s_nop 0
    v_readfirstlane_b32 s59, v{X+6}
    s_nop 3
    s_cmp_eq_u32 s59, 0
    s_cbranch_scc1 {n}_fin
    """)
    a.c("fallback: exact row maxima over all keys")
    a("""
    s_barrier
    s_mov_b32 s53, s50
    s_mov_b32 s54, s51
    s_mov_b32 s55, s52
    """)
    for t in range(4):
        a(f"v_mov_b32 v{Qf(t)+4}, 0") if False else None
    MX = V_P
    for t in range(4):
        a(f"v_mov_b32 v{MX+t}, 0xff800000")
    a("s_mov_b32 s56, 16")
    a.label(f"{n}_mxloop")
    load_kv(0, with_v=False)
    a("s_waitcnt vmcnt(0)")
    for t in range(4):
        for l in qk(t, 0, 0): a(l)
        a("s_nop 7")
        a("s_nop 3")
        S = Sb(0)
        for i in range(0, 16, 2):
            a(f"v_max3_f32 v{MX+t}, v{MX+t}, v{S+i}, v{S+i+1}")
    a("""
    s_sub_u32 s56, s56, 1
    s_cmp_lg_u32 s56, 0
    """)
    a(f"s_cbranch_scc1 {n}_mxloop")
    for t in range(4):
        a(f"""
        v_mov_b32 v{X}, v{MX+t}
        v_mov_b32 v{X+1}, v{MX+t}
        s_nop 1
        v_permlane32_swap_b32 v{X}, v{X+1}
        v_max_f32 v{MX+t}, v{X}, v{X+1}
        """)
    a(f"""
    s_lshl_b32 s57, s{S_W}, 9
    s_add_u32 s57, s57, {LDS_MX}
    v_lshl_add_u32 v{X}, v{V_TOK}, 2, s57
    """)
    for t in range(4):
        a(f"ds_write_b32 v{X}, v{MX+t} offset:{t*128}")
    a(f"""
    s_waitcnt lgkmcnt(0)
    s_barrier
    s_lshl_b32 s57, s{S_HH}, 11
    s_add_u32 s57, s57, {LDS_MX}
    v_lshl_add_u32 v{X}, v{V_TOK}, 2, s57
    """)
    for t in range(4):
        for kq in range(4):
            a(f"ds_read_b32 v{S+4*t+kq}, v{X} offset:{kq*512+t*128}")
    a("s_waitcnt lgkmcnt(0)")
    a(f"v_cmp_ne_u32 vcc, 0, v{V_H}")
    for t in range(4):
        m = X + 1
        a(f"""
        v_max3_f32 v{m}, v{S+4*t}, v{S+4*t+1}, v{S+4*t+2}
        v_max_f32 v{m}, v{m}, v{S+4*t+3}
        v_sub_f32 v{m}, 0, v{m}                     ; -max
        v_and_b32 v{m+1}, 0xffff0000, v{m}          ; hi
        v_sub_f32 v{m}, v{m}, v{m+1}
        v_and_b32 v{m+2}, 0xffff0000, v{m}          ; mid
        v_sub_f32 v{m}, v{m}, v{m+2}
        v_lshrrev_b32 v{m+1}, 16, v{m+1}
        v_or_b32 v{m+1}, v{m+1}, v{m+2}
        v_lshrrev_b32 v{m}, 16, v{m}                ; (lo, 0)
        v_cndmask_b32 v{Qf(t)+4}, v{Qf(t)+4}, v{m+1}, vcc
        v_cndmask_b32 v{Qf(t)+5}, v{Qf(t)+5}, v{m}, vcc
        """)
    a(f"""
    s_mov_b32 s{S_PASS}, 1
    s_barrier
    s_branch {n}_main
    """)
    a.label(f"{n}_fin")
    stamp(a, 4)
    if ASM.STAMPS:
        a("s_mov_b32 s92, 2")
    stamp_dump(a, 5, "s92")
    a.label(f"{n}_end")
    a("s_endpgm")
    return kernel_desc(name, NV, 0, 102 if ASM.STAMPS else 72)
```

```python
from asm import *
from layout import *
import math
import asm as ASM
import os
EXP = os.environ.get('EXP', '')

LDS_X = 9 * 16384
LDS_MISC = LDS_X
LDS_LN = LDS_X + 1024 + 512
QSCALE = (DH ** -0.5) * math.log2(math.e)
LOG2E = math.log2(math.e)

def f32hex(x):
    import struct
    return "0x%08x" % struct.unpack("<I", struct.pack("<f", x))[0]

V_LANE = 1; V_TOK = 2; V_H = 3
V_DE = 4; V_DO = 5
V_WOFF = 6
V_R = 8
V_T = 20
V_XF = 32
V_ACC = 80
V_E = 144
S_W = 16; S_MB = 17; S_NB = 18; S_SL = 19

def gen_lngemm(a, mode, entries):
    base = f"ln_{mode}"
    NB = 15 if mode == "qkv" else 14
    for name, layer in entries:
        kernel_header(a, name)
        a(f"s_mov_b32 s3, {layer}")
        if ASM.STAMPS: a(f"s_mov_b32 s92, {(1 if mode == 'qkv' else 4) + 5*layer}")
        a(f"s_branch {base}_common")
    a.lines.append(".p2align 8")
    a.label(f"{base}_common")
    a(f"""
    s_cmp_ge_u32 s2, 256
    s_cbranch_scc1 {base}_end
    s_load_dwordx2 s[4:5], s[0:1], 0
    s_load_dwordx2 s[6:7], s[0:1], 64
    s_and_b32 s8, s2, 7
    s_lshr_b32 s9, s2, 3
    s_and_b32 s10, s8, 3
    s_lshl_b32 s10, s10, 2
    s_and_b32 s11, s9, 3
    s_add_u32 s{S_MB}, s10, s11
    s_lshr_b32 s10, s8, 2
    s_lshl_b32 s10, s10, 3
    s_lshr_b32 s11, s9, 2
    s_add_u32 s{S_NB}, s10, s11
    s_cmp_ge_u32 s{S_NB}, {NB}
    s_cbranch_scc1 {base}_end
    """)
    stamp(a, 0)
    a(f"""
    v_and_b32 v{V_LANE}, 63, v0
    v_lshrrev_b32 v{V_T}, 6, v0
    v_and_b32 v{V_TOK}, 31, v0
    v_readfirstlane_b32 s{S_W}, v{V_T}
    v_bfe_u32 v{V_H}, v0, 5, 1
    v_lshlrev_b32 v{V_WOFF}, 4, v{V_LANE}
    v_lshrrev_b32 v{V_T}, 3, v{V_LANE}          ; lane>>3
    v_mul_u32_u24 v{V_T}, 1280, v{V_T}
    v_and_b32 v{V_T+1}, 7, v{V_LANE}
    v_lshrrev_b32 v{V_T+2}, 4, v{V_LANE}
    v_xor_b32 v{V_T+1}, v{V_T+1}, v{V_T+2}
    v_lshl_add_u32 v{V_DE}, v{V_T+1}, 4, v{V_T}
    v_xor_b32 v{V_DO}, 64, v{V_DE}
    v_bfe_u32 v{V_T}, v{V_TOK}, 1, 3            ; swz
    v_lshlrev_b32 v{V_T+1}, 7, v{V_TOK}         ; tok*128
    """)
    for sp in range(4):
        a(f"""
        v_or_b32 v{V_T+2}, {2*sp}, v{V_H}
        v_xor_b32 v{V_T+2}, v{V_T+2}, v{V_T}
        v_lshl_add_u32 v{V_R+sp}, v{V_T+2}, 4, v{V_T+1}
        v_add_u32 v{V_R+4+sp}, 0x10000, v{V_R+sp}
        v_add_u32 v{V_R+8+sp}, 0x20000, v{V_R+sp}
        """)
    a(f"""
    s_lshl_b32 s{S_SL}, s{S_NB}, 2
    s_add_u32 s{S_SL}, s{S_SL}, s{S_W}          ; slice
    s_waitcnt lgkmcnt(0)
    """)
    stamp(a, 1, "pro")
    if mode == "qkv":
        a(f"""
        s_add_u32 s12, s6, {ws.X2}
        s_addc_u32 s13, s7, 0
        s_cmp_eq_u32 s3, 0
        s_cselect_b32 s12, s4, s12
        s_cselect_b32 s13, s5, s13
        s_mov_b32 s14, {ws.ST2}
        s_cselect_b32 s14, {ws.ST0}, s14
        """)
        wt, wtsz, cs, cssz = ws.WQKV, ws.WQKV_SZ, ws.CSQ, ws.CSQ_SZ
    else:
        a(f"""
        s_cmp_eq_u32 s3, 0
        s_mov_b32 s15, {ws.X3}
        s_cselect_b32 s15, {ws.X1}, s15
        s_mov_b32 s14, {ws.ST3}
        s_cselect_b32 s14, {ws.ST1}, s14
        s_add_u32 s12, s6, s15
        s_addc_u32 s13, s7, 0
        """)
        wt, wtsz, cs, cssz = ws.W1, ws.W1_SZ, ws.CS1, ws.CS1_SZ
    srd(a, 20, 12, 0, M * D * 2)
    srd(a, 24, 6, wt, wtsz)
    a(f"""
    s_add_u32 s28, s6, s14
    s_addc_u32 s29, s7, 0
    s_and_b32 s29, s29, 0xffff
    s_mov_b32 s30, {M*64}
    s_mov_b32 s31, 0x20000
    """)
    srd(a, 32, 6, cs, cssz)
    a(f"""
    s_lshl_b32 s36, s{S_MB}, 7
    s_lshl_b32 s37, s{S_W}, 5
    s_add_u32 s36, s36, s37
    v_add_u32 v{V_T}, s36, v{V_TOK}
    v_lshlrev_b32 v{V_T}, 6, v{V_T}
    v_lshl_add_u32 v{V_T}, v{V_H}, 5, v{V_T}
    buffer_load_dwordx4 v[{V_E}:{V_E+3}], v{V_T}, s[28:31], 0 offen
    buffer_load_dwordx4 v[{V_E+4}:{V_E+7}], v{V_T}, s[28:31], 0 offen offset:16
    s_lshl_b32 s37, s{S_SL}, 5
    v_add_u32 v{V_T+1}, s37, v{V_TOK}
    v_lshlrev_b32 v{V_T+1}, 4, v{V_T+1}
    buffer_load_dwordx4 v[{V_E+8}:{V_E+11}], v{V_T+1}, s[32:35], 0 offen
    s_mul_i32 s38, s36, 1280
    s_mul_i32 s39, s{S_SL}, 40960
    s_lshl_b32 s40, s{S_W}, 12
    """)
    stamp(a, 2, "pro")
    ops = ["S", "S", "C"]
    a(f"""
    s_and_b32 s53, s9, 3
    s_lshl_b32 s53, s53, 1
    s_lshr_b32 s54, s9, 2
    s_add_u32 s53, s53, s54
    s_cmp_ge_u32 s53, 10
    s_cselect_b32 s54, 10, 0
    s_sub_u32 s53, s53, s54
    """)
    if 'rot' not in EXP: a("s_mov_b32 s53, 0")
    def group_ops(g):
        slot = g % 9
        B = []
        pre = [f"s_lshl_b32 s41, s53, 12", "s_add_u32 s41, s41, s39", "s_lshl_b32 s55, s53, 7", "s_add_u32 s55, s55, s38"]
        for i in range(4):
            n = 4*g + i
            b = (pre if i == 0 else []) + [f"buffer_load_dwordx4 a[{4*n}:{4*n+3}], v{V_WOFF}, s[24:27], s41 offen offset:{i*1024}"]
            B.append((b, ("W", g)))
        for j in range(4):
            b = [f"s_add_u32 s42, s55, {j*10240}", f"s_add_u32 m0, s40, {slot*16384 + j*1024}"]
            if j == 3: b += ["s_add_u32 s53, s53, 1"]
            else: b += ["s_nop 0"]
            b += [f"buffer_load_dwordx4 v{V_DE if j%2==0 else V_DO}, s[20:23], s42 offen lds"]
            if j == 3: b += ["s_cmp_eq_u32 s53, 10", "s_cselect_b32 s53, 0, s53"]
            B.append((b, ("D", g)))
        return B
    def emit_bundle(bun):
        skip = ('nodma' in EXP and bun[1][0] == 'D') or ('now' in EXP and bun[1][0] == 'W')
        for l in bun[0]:
            if skip and l.startswith("buffer_load"): continue
            a(l)
        if not skip: ops.append(bun[1])
    def wait_group(g):
        cand = [i for i, o in enumerate(ops) if o == ("D", g) or o == ("W", g)]
        if not cand: return
        last = max(cand)
        n = len(ops) - 1 - last
        a(f"s_waitcnt vmcnt({n})")
    DEPTH = 2
    for g in range(DEPTH):
        for bun in group_ops(g): emit_bundle(bun)
        stamp(a, 3 + g, "pro")
    next_g = DEPTH
    stamp(a, 1)
    wait_group(0)
    stamp(a, 5, "pro")
    e = V_E
    a(f"""
    v_add_f32 v{e}, v{e}, v{e+2}
    v_add_f32 v{e+1}, v{e+1}, v{e+3}
    v_add_f32 v{e+4}, v{e+4}, v{e+6}
    v_add_f32 v{e+5}, v{e+5}, v{e+7}
    v_add_f32 v{e}, v{e}, v{e+4}
    v_add_f32 v{e+1}, v{e+1}, v{e+5}
    v_add_f32 v{e+8}, v{e+8}, v{e+9}
    v_add_f32 v{e+10}, v{e+10}, v{e+11}
    v_mov_b32 v{e+2}, v{e}
    v_mov_b32 v{e+3}, v{e+1}
    v_add_f32 v{e+12}, v{e+8}, v{e+10}
    s_nop 0
    v_permlane32_swap_b32 v{e}, v{e+2}
    v_permlane32_swap_b32 v{e+1}, v{e+3}
    v_add_f32 v{e}, v{e}, v{e+2}
    v_add_f32 v{e+1}, v{e+1}, v{e+3}
    v_mul_f32 v{e}, {f32hex(1.0/D)}, v{e}       ; mean
    v_mul_f32 v{e+1}, {f32hex(1.0/D)}, v{e+1}
    v_fma_f32 v{e+1}, -v{e}, v{e}, v{e+1}       ; var
    v_max_f32 v{e+1}, 0, v{e+1}
    v_add_f32 v{e+1}, {f32hex(EPS)}, v{e+1}
    v_rsq_f32 v{e+1}, v{e+1}                    ; rstd
    s_lshl_b32 s43, s{S_W}, 7
    v_lshl_add_u32 v{e+4}, v{V_TOK}, 2, s43     ; (32w+tok)*4
    v_mul_f32 v{e+2}, v{e}, v{e+1}
    v_sub_f32 v{e+2}, 0, v{e+2}
    v_add_u32 v{e+4}, {LDS_MISC}, v{e+4}
    ds_write_b32 v{e+4}, v{e+1}
    ds_write_b32 v{e+4}, v{e+2} offset:512
    ds_write_b32 v{e+4}, v{e+12} offset:1024
    s_waitcnt lgkmcnt(0)
    s_barrier
    """)
    stamp(a, 2)
    stamp(a, 6, "pro")
    body_forms = ["ct", "c"] if mode == "qkv" else ["ct"]
    if mode == "qkv":
        a(f"s_cmp_ge_u32 s{S_NB}, 10")
        a(f"s_cbranch_scc1 {base}_loop_c")
    saved_ops = list(ops); saved_next = next_g
    for form in body_forms:
        ops[:] = list(saved_ops); next_g = saved_next
        a.label(f"{base}_loop_{form}")
        def read(n, t):
            g = n >> 2; sp = n & 3; slot = g % 9
            q = slot >> 2; so = (slot & 3) * 16384
            buf = V_XF + 16 * (n % 3)
            if 'noread' in EXP: return
            a(f"ds_read_b128 v[{buf+4*t}:{buf+4*t+3}], v{V_R+4*q+sp} offset:{so + t*4096}")
        for t in range(4): read(0, t)
        for t in range(4): read(1, t)
        pending = []
        for gg in range(DEPTH, 10): pending += group_ops(gg)
        for n in range(40):
            if n + 2 < 40 and (n + 2) % 4 == 0:
                wait_group((n + 2) >> 2)
                a("s_barrier")
            a(f"s_waitcnt lgkmcnt({4 if n + 1 < 40 else 0})")
            buf = V_XF + 16 * (n % 3)
            for t in range(4):
                acc = f"v[{V_ACC+16*t}:{V_ACC+16*t+15}]"
                c = "0" if n == 0 else acc
                wf = f"a[{4*n}:{4*n+3}]"; xf = f"v[{buf+4*t}:{buf+4*t+3}]"
                if form == "ct":
                    a(f"v_mfma_f32_32x32x16_bf16 {acc}, {wf}, {xf}, {c}")
                else:
                    a(f"v_mfma_f32_32x32x16_bf16 {acc}, {xf}, {wf}, {c}")
                if n + 2 < 40: read(n + 2, t)
                if (t in (0, 2) or n < 4) and pending: emit_bundle(pending.pop(0))
        stamp(a, 3)
        if form == "ct":
            epilogue_ct(a, mode, base)
        else:
            epilogue_v(a, base)
    a.label(f"{base}_end")
    a("s_endpgm")
    return "".join(kernel_desc(name, 224, 160, 102 if ASM.STAMPS else 64) for name, _ in entries)

def epilogue_ct(a, mode, base):
    e = V_E
    a(f"""
    v_lshlrev_b32 v{V_T}, 2, v{V_TOK}
    v_add_u32 v{V_T}, {LDS_MISC}, v{V_T}
    s_lshl_b32 s43, s{S_W}, 7
    v_lshlrev_b32 v{V_T+1}, 4, v{V_H}
    v_add_u32 v{V_T+1}, s43, v{V_T+1}
    v_add_u32 v{V_T+1}, {LDS_MISC+1024}, v{V_T+1}
    """)
    for t in range(4):
        a(f"ds_read_b32 v{e+2*t}, v{V_T} offset:{t*128}")
        a(f"ds_read_b32 v{e+2*t+1}, v{V_T} offset:{512+t*128}")
    for jj in range(4):
        a(f"ds_read_b128 v[{e+8+4*jj}:{e+11+4*jj}], v{V_T+1} offset:{jj*32}")
    CS = e + 8
    if mode == "qkv":
        a(f"""
        s_cmp_ge_u32 s{S_SL}, 20
        s_mov_b32 s44, {ws.Q}
        s_cselect_b32 s44, {ws.K}, s44
        s_cselect_b32 s45, 20, 0
        s_cselect_b32 s46, 1.0, {f32hex(QSCALE)}
        s_add_u32 s48, s6, s44
        s_addc_u32 s49, s7, 0
        s_and_b32 s49, s49, 0xffff
        s_mov_b32 s50, {ws.Q_SZ}
        s_mov_b32 s51, 0x20000
        s_sub_u32 s45, s{S_SL}, s45
        s_lshl_b32 s45, s45, 2
        s_lshl_b32 s47, s{S_MB}, 2                  ; first T
        """)
        for u in range(2):
            t0 = V_T + 2
            a(f"""
            v_add_u32 v{t0}, s45, v{V_H}
            v_add_u32 v{t0}, {2*u}, v{t0}               ; chunk
            v_mul_u32_u24 v{t0+1}, 205, v{t0}
            v_lshrrev_b32 v{t0+1}, 10, v{t0+1}          ; p
            v_mul_u32_u24 v{t0+2}, 5, v{t0+1}
            v_sub_u32 v{t0+2}, v{t0}, v{t0+2}           ; r
            v_lshrrev_b32 v{t0+3}, 1, v{t0+2}
            v_lshl_add_u32 v{t0+3}, v{t0+1}, 1, v{t0+3} ; head
            v_lshlrev_b32 v{t0+3}, 6, v{t0+3}
            v_add_u32 v{t0+3}, s47, v{t0+3}             ; head*64+T0
            v_lshlrev_b32 v{t0+3}, 10, v{t0+3}
            v_and_b32 v{t0+4}, 1, v{t0+2}
            v_lshl_add_u32 v{t0+3}, v{t0+4}, 9, v{t0+3} ; + half*512
            v_lshl_add_u32 v{t0+3}, v{V_TOK}, 4, v{t0+3}; + key*16     (type-1 address)
            v_lshlrev_b32 v{t0+4}, 6, v{t0+1}
            v_add_u32 v{t0+4}, s47, v{t0+4}             ; p*64 + T0
            v_lshlrev_b32 v{t0+4}, 9, v{t0+4}           ; (p*2048 + 32*T0)*16
            v_lshl_add_u32 v{t0+4}, v{V_TOK}, 4, v{t0+4}
            v_add_u32 v{t0+4}, {QK1_SZ}, v{t0+4}
            v_cmp_eq_u32 vcc, 4, v{t0+2}
            v_mov_b32 v{t0+5}, 1024
            v_mov_b32 v{t0+6}, 512
            v_cndmask_b32 v{e+24+2*u}, v{t0+3}, v{t0+4}, vcc
            v_cndmask_b32 v{e+25+2*u}, v{t0+5}, v{t0+6}, vcc
            """)
        a("s_waitcnt lgkmcnt(0)")
        for t in range(4):
            a(f"v_mul_f32 v{e+2*t}, s46, v{e+2*t}")
            a(f"v_mul_f32 v{e+2*t+1}, s46, v{e+2*t+1}")
    else:
        a(f"""
        s_add_u32 s48, s6, {ws.HH}
        s_addc_u32 s49, s7, 0
        s_and_b32 s49, s49, 0xffff
        s_mov_b32 s50, {ws.HH_SZ}
        s_mov_b32 s51, 0x20000
        s_lshl_b32 s45, s{S_SL}, 2
        v_add_u32 v{V_T+2}, s45, v{V_H}             ; chunk (u=0)
        v_lshlrev_b32 v{V_T+2}, 15, v{V_T+2}        ; *2048*16
        s_lshl_b32 s47, s{S_MB}, 11                 ; 128 tokens*16
        v_lshl_add_u32 v{V_T+2}, v{V_TOK}, 4, v{V_T+2}
        v_add_u32 v{e+24}, s47, v{V_T+2}
        v_add_u32 v{e+26}, 0x10000, v{e+24}         ; u=1: +2 chunks
        v_mov_b32 v{V_T+3}, {f32hex(-LOG2E)}
        s_waitcnt lgkmcnt(0)
        """)
    a("s_nop 4")
    T = e + 32
    for t in range(4):
        A = e + 2*t; B = e + 2*t + 1
        for u in range(2):
            accb = V_ACC + 16*t + 8*u
            csb = CS + 8*u
            for pr in range(4):
                a(f"v_pk_mul_f32 v[{T+2*pr}:{T+2*pr+1}], v[{csb+2*pr}:{csb+2*pr+1}], v[{A}:{A+1}] op_sel:[0,1] op_sel_hi:[1,1]")
            for pr in range(4):
                a(f"v_pk_fma_f32 v[{T+2*pr}:{T+2*pr+1}], v[{accb+2*pr}:{accb+2*pr+1}], v[{A}:{A+1}], v[{T+2*pr}:{T+2*pr+1}] op_sel_hi:[1,0,1]")
            if mode == "w1":
                NL = V_T + 3
                for i in range(8):
                    a(f"v_mul_f32 v{T+8+i}, v{T+i}, v{NL}")
                for i in range(8):
                    a(f"v_exp_f32 v{T+8+i}, v{T+8+i}")
                for i in range(8):
                    a(f"v_add_f32 v{T+8+i}, 1.0, v{T+8+i}")
                for i in range(8):
                    a(f"v_rcp_f32 v{T+8+i}, v{T+8+i}")
                for i in range(8):
                    a(f"v_mul_f32 v{T+i}, v{T+i}, v{T+8+i}")
            P = T + 16 + 4 * ((2*t + u) & 1)
            for pr in range(4):
                a(f"v_cvt_pk_bf16_f32 v{P+pr}, v{T+2*pr}, v{T+2*pr+1}")
            if mode == "qkv":
                a(f"buffer_store_dwordx4 v[{P}:{P+3}], v{e+24+2*u}, s[48:51], 0 offen")
                if t < 3: a(f"v_add_u32 v{e+24+2*u}, v{e+24+2*u}, v{e+25+2*u}")
            else:
                a(f"buffer_store_dwordx4 v[{P}:{P+3}], v{e+24+2*u}, s[48:51], 0 offen offset:{t*512}")
    stamp(a, 4)
    stamp_dump(a, 5, "s92")
    a("s_endpgm")

def epilogue_v(a, base):
    e = V_E
    a(f"""
    s_add_u32 s48, s6, {ws.V}
    s_addc_u32 s49, s7, 0
    s_and_b32 s49, s49, 0xffff
    s_mov_b32 s50, {ws.V_SZ}
    s_mov_b32 s51, 0x20000
    s_sub_u32 s45, s{S_SL}, 40
    s_lshl_b32 s45, s45, 5
    v_add_u32 v{V_T}, s45, v{V_TOK}             ; f
    v_mul_u32_u24 v{V_T+1}, 3277, v{V_T}
    v_lshrrev_b32 v{V_T+1}, 16, v{V_T+1}        ; head = f/20
    v_mul_u32_u24 v{V_T+2}, 20, v{V_T+1}
    v_sub_u32 v{V_T+2}, v{V_T}, v{V_T+2}        ; d
    v_bfe_u32 v{V_T+3}, v{V_T+2}, 2, 1
    v_lshlrev_b32 v{V_T+3}, 3, v{V_T+3}         ; 8*((d>>2)&1)
    v_bfe_u32 v{V_T+4}, v{V_T+2}, 3, 1
    v_lshl_add_u32 v{V_T+3}, v{V_T+4}, 2, v{V_T+3}
    v_and_b32 v{V_T+4}, 3, v{V_T+2}
    v_add_u32 v{V_T+3}, v{V_T+3}, v{V_T+4}
    v_cmp_le_u32 vcc, 16, v{V_T+2}
    s_lshl_b32 s47, s{S_MB}, 2
    v_lshlrev_b32 v{V_T+1}, 6, v{V_T+1}
    v_cndmask_b32 v{V_T+3}, v{V_T+3}, v{V_T+2}, vcc
    v_add_u32 v{V_T+1}, s47, v{V_T+1}           ; head*64 + T0
    v_mul_u32_u24 v{V_T+1}, 1280, v{V_T+1}
    v_mul_u32_u24 v{V_T+4}, 320, v{V_H}
    v_add_u32 v{V_T+1}, v{V_T+1}, v{V_T+4}
    v_lshl_add_u32 v{e+24}, v{V_T+3}, 4, v{V_T+1}
    v_lshlrev_b32 v{V_T+5}, 4, v{V_H}
    v_add_u32 v{V_T+5}, {LDS_MISC}, v{V_T+5}    ; misc + 4h*4
    v_lshl_add_u32 v{V_T+6}, v{V_TOK}, 2, 0
    s_lshl_b32 s43, s{S_W}, 7
    v_add_u32 v{V_T+6}, s43, v{V_T+6}
    v_add_u32 v{V_T+6}, {LDS_MISC+1024}, v{V_T+6}
    ds_read_b32 v{e+26}, v{V_T+6}
    """)
    T = e + 32
    AB = e + 56
    for t in range(4):
        for m in range(2):
            for q in range(2):
                jj = 2*m + q
                a(f"ds_read_b128 v[{AB+4*q}:{AB+4*q+3}], v{V_T+5} offset:{(32*t+8*jj)*4}")
                a(f"ds_read_b128 v[{AB+8+4*q}:{AB+8+4*q+3}], v{V_T+5} offset:{512+(32*t+8*jj)*4}")
            a("s_waitcnt lgkmcnt(0)")
            if t == 0 and m == 0: a("s_nop 4")
            accb = V_ACC + 16*t + 8*m
            for pr in range(4):
                a(f"v_pk_mul_f32 v[{T+2*pr}:{T+2*pr+1}], v[{AB+8+2*pr}:{AB+9+2*pr}], v[{e+26}:{e+27}] op_sel_hi:[1,0]")
            for pr in range(4):
                a(f"v_pk_fma_f32 v[{T+2*pr}:{T+2*pr+1}], v[{accb+2*pr}:{accb+2*pr+1}], v[{AB+2*pr}:{AB+2*pr+1}], v[{T+2*pr}:{T+2*pr+1}]")
            P = T + 16 + 4 * m
            for pr in range(4):
                a(f"v_cvt_pk_bf16_f32 v{P+pr}, v{T+2*pr}, v{T+2*pr+1}")
            if m == 0: a(f"s_movk_i32 s52, {t*1280}")
            a(f"buffer_store_dwordx4 v[{P}:{P+3}], v{e+24}, s[48:51], s52 offen offset:{m*640}")
    stamp(a, 4)
    stamp_dump(a, 5, "s92")
    a("s_endpgm")
```

```python
from asm import *
from layout import *
import asm as ASM
import os
EXP = os.environ.get('EXP', '')

V_LANE = 1; V_TOK = 2; V_G = 3
V_WOFF = 4
V_AOFF = 5
V_XOFF = 6
V_R = 8
V_T = 12
V_XO = 20
V_WF = 32
V_ACC = 92
V_E = 112
S_W = 16; S_RB = 17; S_J = 18
SLOT = 20480
NSLOT = 7
LDS_RES_W2 = NSLOT * SLOT
LDS_RES_WO = 5 * SLOT

def gen_resgemm(a, mode, entries):
    base = f"res_{mode}"
    NKS = 20 if mode == "wo" else 54
    NG = (NKS + 3) // 4
    for name, layer in entries:
        kernel_header(a, name)
        a(f"s_mov_b32 s3, {layer}")
        if ASM.STAMPS: a(f"s_mov_b32 s92, {(3 if mode == 'wo' else 5) + 5*layer}")
        a(f"s_branch {base}_common")
    a.lines.append(".p2align 8")
    a.label(f"{base}_common")
    a(f"""
    s_cmp_ge_u32 s2, 256
    s_cbranch_scc1 {base}_end
    s_load_dwordx2 s[4:5], s[0:1], 0
    s_load_dwordx2 s[6:7], s[0:1], 64
    s_load_dwordx2 s[8:9], s[0:1], 48
    """)
    stamp(a, 0)
    a(f"""
    s_and_b32 s10, s2, 7
    s_lshr_b32 s11, s2, 3
    s_and_b32 s12, s10, 3
    s_lshl_b32 s12, s12, 3
    s_and_b32 s13, s11, 7
    s_add_u32 s{S_RB}, s12, s13
    s_lshr_b32 s12, s10, 2
    s_lshl_b32 s12, s12, 2
    s_lshr_b32 s13, s11, 3
    s_add_u32 s{S_J}, s12, s13
    v_and_b32 v{V_LANE}, 63, v0
    v_lshrrev_b32 v{V_T}, 6, v0
    v_and_b32 v{V_TOK}, 15, v0
    v_readfirstlane_b32 s{S_W}, v{V_T}
    v_bfe_u32 v{V_G}, v0, 4, 2
    v_lshlrev_b32 v{V_WOFF}, 4, v{V_LANE}
    v_mov_b32 v{V_R}, v{V_WOFF}
    v_add_u32 v{V_R+1}, 0x10000, v{V_WOFF}
    v_add_u32 v{V_R+2}, 0x20000, v{V_WOFF}
    v_lshlrev_b32 v{V_AOFF}, 15, v{V_G}
    v_lshl_add_u32 v{V_AOFF}, v{V_TOK}, 4, v{V_AOFF}
    s_lshl_b32 s19, s{S_RB}, 6
    s_lshl_b32 s20, s{S_W}, 4
    s_add_u32 s19, s19, s20
    v_add_u32 v{V_T}, s19, v{V_TOK}
    v_mul_u32_u24 v{V_XOFF}, 1280, v{V_T}
    v_mul_u32_u24 v{V_T+1}, 40, v{V_G}
    v_add_u32 v{V_XOFF}, v{V_XOFF}, v{V_T+1}
    s_mul_i32 s20, s{S_J}, 160
    v_add_u32 v{V_XOFF}, s20, v{V_XOFF}
    s_waitcnt lgkmcnt(0)
    """)
    if mode == "wo":
        a(f"""
        s_add_u32 s12, s6, {ws.X2}
        s_addc_u32 s13, s7, 0
        s_cmp_eq_u32 s3, 0
        s_cselect_b32 s12, s4, s12
        s_cselect_b32 s13, s5, s13
        s_mov_b32 s21, {ws.X3}
        s_cselect_b32 s21, {ws.X1}, s21
        s_mov_b32 s22, {ws.ST3}
        s_cselect_b32 s22, {ws.ST1}, s22
        s_add_u32 s14, s6, s21
        s_addc_u32 s15, s7, 0
        """)
        act, actsz, wt, wtsz = ws.O, ws.O_SZ, ws.WO, ws.WO_SZ
    else:
        a(f"""
        s_cmp_eq_u32 s3, 0
        s_mov_b32 s21, {ws.X3}
        s_cselect_b32 s21, {ws.X1}, s21
        s_add_u32 s12, s6, s21
        s_addc_u32 s13, s7, 0
        s_add_u32 s14, s6, {ws.X2}
        s_addc_u32 s15, s7, 0
        s_cmp_eq_u32 s3, 0
        s_cselect_b32 s14, s14, s8
        s_cselect_b32 s15, s15, s9
        s_mov_b32 s22, {ws.ST2}
        """)
        act, actsz, wt, wtsz = ws.HH, ws.HH_SZ, ws.W2, ws.W2_SZ
    srd(a, 24, 12, 0, M * D * 2)
    srd(a, 28, 14, 0, M * D * 2)
    srd(a, 32, 6, act, actsz)
    srd(a, 36, 6, wt, wtsz)
    a(f"""
    s_add_u32 s40, s6, s22
    s_addc_u32 s41, s7, 0
    s_and_b32 s41, s41, 0xffff
    s_mov_b32 s42, {M*64}
    s_mov_b32 s43, 0x20000
    s_lshl_b32 s44, s19, 4
    s_mul_i32 s45, s{S_J}, {NKS*5120}
    s_mul_i32 s46, s{S_W}, 5120
    s_add_u32 s45, s45, s46
    s_mul_i32 s47, s{S_W}, 3072
    s_mul_i32 s48, s{S_J}, {NKS*5120}
    s_add_u32 s48, s48, s47
    buffer_load_dwordx4 v[{V_XO}:{V_XO+3}], v{V_XOFF}, s[24:27], 0 offen
    buffer_load_dwordx4 v[{V_XO+4}:{V_XO+7}], v{V_XOFF}, s[24:27], 0 offen offset:16
    buffer_load_dwordx2 v[{V_XO+8}:{V_XO+9}], v{V_XOFF}, s[24:27], 0 offen offset:32
    """)
    ops = ["X", "X", "X"]
    NGP = NG
    ROT = 4 if mode == "w2" else 2
    a(f"""
    s_and_b32 s53, s11, 7
    s_lshr_b32 s54, s11, 3
    s_mul_i32 s54, s54, {ROT}
    s_add_u32 s53, s53, s54
    s_cmp_ge_u32 s53, {NG}
    s_cselect_b32 s54, {NG}, 0
    s_sub_u32 s53, s53, s54
    s_cmp_ge_u32 s53, {NG}
    s_cselect_b32 s54, {NG}, 0
    s_sub_u32 s53, s53, s54
    s_cmp_ge_u32 s53, {NG}
    s_cselect_b32 s54, {NG}, 0
    s_sub_u32 s53, s53, s54
    """)
    if 'rot' not in EXP: a("s_mov_b32 s53, 0")
    def group_ops(g):
        slot = g % NSLOT
        B = []
        pre = ["s_lshl_b32 s50, s53, 19", "s_add_u32 s50, s50, s44",
               f"s_mul_i32 s51, s53, {SLOT}", "s_add_u32 s51, s51, s45"]
        for i in range(4):
            n = 4*g + i
            b = (pre if i == 0 else []) + [f"s_add_u32 s49, s50, {i*4*32768}",
                 f"buffer_load_dwordx4 a[{4*n}:{4*n+3}], v{V_AOFF}, s[32:35], s49 offen"]
            B.append((b, ("A", g)))
        for j in range(5):
            b = [f"s_add_u32 s49, s51, {j*1024}", f"s_add_u32 m0, s46, {slot*SLOT + j*1024}"]
            if j == 4: b += ["s_add_u32 s53, s53, 1"]
            else: b += ["s_nop 0"]
            b += [f"buffer_load_dwordx4 v{V_WOFF}, s[36:39], s49 offen lds"]
            if j == 4: b += [f"s_cmp_eq_u32 s53, {NG}", "s_cselect_b32 s53, 0, s53"]
            B.append((b, ("D", g)))
        return B
    def emit_bundle(bun):
        for l in bun[0]: a(l)
        ops.append(bun[1])
    def wait_group(g):
        last = max(i for i, o in enumerate(ops) if o == ("D", g))
        a(f"s_waitcnt vmcnt({len(ops) - 1 - last})")
    DEPTH = 2
    for g in range(DEPTH):
        for bun in group_ops(g): emit_bundle(bun)
    stamp(a, 1)
    wait_group(0)
    a("s_barrier")
    stamp(a, 2)
    NS = 4 * NG
    def read(n, ft):
        g = n >> 2; slot = g % NSLOT
        o = slot*SLOT + (n & 3)*5120 + ft*1024
        buf = V_WF + 20*(n % 3)
        a(f"ds_read_b128 v[{buf+4*ft}:{buf+4*ft+3}], v{V_R+(o>>16)} offset:{o & 0xffff}")
    for ft in range(5): read(0, ft)
    for ft in range(5): read(1, ft)
    pending = []
    for gg in range(DEPTH, NG): pending.append(group_ops(gg))
    cur = []
    issued_groups = DEPTH
    for n in range(NS):
        if n + 2 < NS and (n + 2) % 4 == 0:
            wait_group((n + 2) >> 2)
            a("s_barrier")
        a(f"s_waitcnt lgkmcnt({5 if n + 1 < NS else 0})")
        buf = V_WF + 20*(n % 3)
        quota = 5 if n < 4 else (3 if n % 4 == 0 else 2)
        for ft in range(5):
            acc = f"v[{V_ACC+4*ft}:{V_ACC+4*ft+3}]"
            c = "0" if n == 0 else acc
            a(f"v_mfma_f32_16x16x32_bf16 {acc}, v[{buf+4*ft}:{buf+4*ft+3}], a[{4*n}:{4*n+3}], {c}")
            if n + 2 < NS: read(n + 2, ft)
            if quota > 0 and (n < 4 or ft in (0, 2, 4)):
                if not cur and pending:
                    gg = issued_groups
                    if gg - NSLOT < 0 or n >= 4*(gg - NSLOT) + 6:
                        cur = pending.pop(0); issued_groups += 1
                if cur:
                    emit_bundle(cur.pop(0)); quota -= 1
    assert not cur and not pending
    e = V_E
    stamp(a, 3)
    a("s_nop 7")
    for q in range(10):
        ft, half = divmod(q, 2)
        a(f"v_lshlrev_b32 v{e+2*q}, 16, v{V_XO+q}")
        a(f"v_and_b32 v{e+2*q+1}, 0xffff0000, v{V_XO+q}")
    for i in range(20):
        a(f"v_add_f32 v{e+i}, v{e+i}, v{V_ACC+i}")
    for q in range(10):
        a(f"v_cvt_pk_bf16_f32 v{e+24+q}, v{e+2*q}, v{e+2*q+1}")
    a(f"""
    buffer_store_dwordx4 v[{e+24}:{e+27}], v{V_XOFF}, s[28:31], 0 offen
    buffer_store_dwordx4 v[{e+28}:{e+31}], v{V_XOFF}, s[28:31], 0 offen offset:16
    buffer_store_dwordx2 v[{e+32}:{e+33}], v{V_XOFF}, s[28:31], 0 offen offset:32
    """)
    if mode == "w2":
        a(f"s_cmp_lg_u32 s3, 0")
        a(f"s_cbranch_scc1 {base}_fin")
    for q in range(10):
        a(f"v_lshlrev_b32 v{e+2*q}, 16, v{e+24+q}")
        a(f"v_and_b32 v{e+2*q+1}, 0xffff0000, v{e+24+q}")
    a(f"v_mov_b32 v{e+40}, 0")
    a(f"v_mov_b32 v{e+41}, 0")
    for i in range(20):
        a(f"v_add_f32 v{e+40}, v{e+40}, v{e+i}")
        a(f"v_fmac_f32 v{e+41}, v{e+i}, v{e+i}")
    a(f"""
    v_mov_b32 v{e+42}, v{e+40}
    v_mov_b32 v{e+43}, v{e+41}
    s_nop 1
    v_permlane32_swap_b32 v{e+40}, v{e+42}
    v_permlane32_swap_b32 v{e+41}, v{e+43}
    v_add_f32 v{e+40}, v{e+40}, v{e+42}
    v_add_f32 v{e+41}, v{e+41}, v{e+43}
    v_mov_b32 v{e+42}, v{e+40}
    v_mov_b32 v{e+43}, v{e+41}
    s_nop 1
    v_permlane16_swap_b32 v{e+40}, v{e+42}
    v_permlane16_swap_b32 v{e+41}, v{e+43}
    v_add_f32 v{e+40}, v{e+40}, v{e+42}
    v_add_f32 v{e+41}, v{e+41}, v{e+43}
    v_add_u32 v{V_T}, s19, v{V_TOK}
    v_lshlrev_b32 v{V_T}, 6, v{V_T}
    s_lshl_b32 s49, s{S_J}, 3
    v_mov_b32 v{V_T+1}, 0x7ffffff0
    v_cmp_eq_u32 vcc, 0, v{V_G}
    s_nop 1
    v_cndmask_b32 v{V_T}, v{V_T+1}, v{V_T}, vcc
    buffer_store_dwordx2 v[{e+40}:{e+41}], v{V_T}, s[40:43], s49 offen
    """)
    a.label(f"{base}_fin")
    stamp(a, 4)
    stamp_dump(a, 5, "s92")
    a.label(f"{base}_end")
    a("s_endpgm")
    agpr = 16 * NG
    return "".join(kernel_desc(name, 160, agpr, 102 if ASM.STAMPS else 64) for name, _ in entries)
```

```python
import sys, os
sys.path.insert(0, os.path.dirname(os.path.abspath(__file__)))
from asm import *
from layout import *
import k_prep, k_lngemm, k_attn, k_resgemm

NAME = "interleave_layers__mha_block__dense_activation_silu__prompt"
HDR = """; Kernarg layout for this problem (72 bytes, ptrs only, base s[0:1]):
"""
def build(launches=None):
    a = Asm()
    descs = []
    descs.append(k_prep.gen_prep(a, "prep_kernel"))
    descs.append(k_lngemm.gen_lngemm(a, "qkv", [("qkv1_kernel", 0), ("qkv2_kernel", 1)]))
    descs.append(k_attn.gen_attn(a, "attn_kernel"))
    descs.append(k_resgemm.gen_resgemm(a, "wo", [("wo1_kernel", 0), ("wo2_kernel", 1)]))
    descs.append(k_lngemm.gen_lngemm(a, "w1", [("up1_kernel", 0), ("up2_kernel", 1)]))
    descs.append(k_resgemm.gen_resgemm(a, "w2", [("down1_kernel", 0), ("down2_kernel", 1)]))
    L = {
     "prep": ("prep_kernel", k_prep.NWG_PREP, 256, k_prep.LDS_PREP),
     "qkv1": ("qkv1_kernel", 256, 256, k_lngemm.LDS_LN),
     "qkv2": ("qkv2_kernel", 256, 256, k_lngemm.LDS_LN),
     "attn": ("attn_kernel", 256, 512, k_attn.LDS_ATT),
     "wo1": ("wo1_kernel", 256, 256, k_resgemm.LDS_RES_WO),
     "wo2": ("wo2_kernel", 256, 256, k_resgemm.LDS_RES_WO),
     "up1": ("up1_kernel", 256, 256, k_lngemm.LDS_LN),
     "up2": ("up2_kernel", 256, 256, k_lngemm.LDS_LN),
     "down1": ("down1_kernel", 256, 256, k_resgemm.LDS_RES_W2),
     "down2": ("down2_kernel", 256, 256, k_resgemm.LDS_RES_W2),
    }
    if os.environ.get("NOOPS"):
        kernel_header(a, "noop_kernel"); a("s_endpgm")
        descs.append(kernel_desc("noop_kernel", 8, 0, 16))
        L["noop"] = ("noop_kernel", 256, 256, 0)
    order = launches or ["prep", "qkv1", "attn", "wo1", "up1", "down1", "qkv2", "attn", "wo2", "up2", "down2"]
    if os.environ.get("NOOPS"):
        nn = int(os.environ["NOOPS"]); order = order[:6] + ["noop"] * nn + order[6:]
    hdr = HDR
    for k in order:
        n, g, b, l = L[k]
        hdr += f"; @launch kernel={n} grid=({g},1,1) block=({b},1,1) lds={l}\n"
    out = hdr + '.amdgcn_target "amdgcn-amd-amdhsa--gfx950"\n' + a.text()
    out += '.section .rodata,"a"\n'
    for d in descs:
        for blk in d.split(".amdhsa_kernel ")[1:]:
            out += ".p2align 6\n.amdhsa_kernel " + blk
    return out

if __name__ == "__main__":
    import asm as ASM
    if os.environ.get("STAMPS"): ASM.STAMPS = True
    dst = sys.argv[1] if len(sys.argv) > 1 else f"cdna_kernels/{NAME}.s"
    open(dst, "w").write(build())
    print("wrote", dst, os.path.getsize(dst))
```

```python
import sys, os
sys.path.insert(0, os.path.dirname(os.path.abspath(__file__)))
from asm import *
from layout import *
import k_prep, k_lngemm, k_attn, k_resgemm

NAME = "interleave_layers__mha_block__dense_activation_silu__prompt"
HDR = """; Kernarg layout for this problem (72 bytes, ptrs only, base s[0:1]):
"""
def build(launches=None):
    a = Asm()
    descs = []
    descs.append(k_prep.gen_prep(a, "prep_kernel"))
    descs.append(k_lngemm.gen_lngemm(a, "qkv", [("qkv1_kernel", 0), ("qkv2_kernel", 1)]))
    descs.append(k_attn.gen_attn(a, "attn_kernel"))
    descs.append(k_resgemm.gen_resgemm(a, "wo", [("wo1_kernel", 0), ("wo2_kernel", 1)]))
    descs.append(k_lngemm.gen_lngemm(a, "w1", [("up1_kernel", 0), ("up2_kernel", 1)]))
    descs.append(k_resgemm.gen_resgemm(a, "w2", [("down1_kernel", 0), ("down2_kernel", 1)]))
    L = {
     "prep": ("prep_kernel", k_prep.NWG_PREP, 256, k_prep.LDS_PREP),
     "qkv1": ("qkv1_kernel", 256, 256, k_lngemm.LDS_LN),
     "qkv2": ("qkv2_kernel", 256, 256, k_lngemm.LDS_LN),
     "attn": ("attn_kernel", 256, 512, k_attn.LDS_ATT),
     "wo1": ("wo1_kernel", 256, 256, k_resgemm.LDS_RES_WO),
     "wo2": ("wo2_kernel", 256, 256, k_resgemm.LDS_RES_WO),
     "up1": ("up1_kernel", 256, 256, k_lngemm.LDS_LN),
     "up2": ("up2_kernel", 256, 256, k_lngemm.LDS_LN),
     "down1": ("down1_kernel", 256, 256, k_resgemm.LDS_RES_W2),
     "down2": ("down2_kernel", 256, 256, k_resgemm.LDS_RES_W2),
    }
    if os.environ.get("NOOPS"):
        kernel_header(a, "noop_kernel"); a("s_endpgm")
        descs.append(kernel_desc("noop_kernel", 8, 0, 16))
        L["noop"] = ("noop_kernel", 256, 256, 0)
    order = launches or ["prep", "qkv1", "attn", "wo1", "up1", "down1", "qkv2", "attn", "wo2", "up2", "down2"]
    if os.environ.get("NOOPS"):
        nn = int(os.environ["NOOPS"]); order = order[:6] + ["noop"] * nn + order[6:]
    if os.environ.get("TWICE"): order = order + order
    if os.environ.get("PREPX"): order = ["prep"] * int(os.environ["PREPX"]) + order[1:]
    hdr = HDR
    for k in order:
        n, g, b, l = L[k]
        hdr += f"; @launch kernel={n} grid=({g},1,1) block=({b},1,1) lds={l}\n"
    body = a.text()
    if os.environ.get("DBGT"):
        import re
        idx = {"prep_kernel": 0, "qkv1_kernel": 1, "wo1_kernel": 3, "up1_kernel": 4, "down1_kernel": 5, "qkv2_kernel": 6,
               "wo2_kernel": 8, "up2_kernel": 9, "down2_kernel": 10}
        def st(i, tag):
            return f'''    s_cmp_lg_u32 s2, 0
    s_cbranch_scc1 dbgt_skip_{tag}
    s_load_dwordx2 s[60:61], s[0:1], 56
    s_memrealtime s[62:63]
    s_waitcnt lgkmcnt(0)
    s_sub_u32 s60, s60, {512*i - 4*i}
    s_subb_u32 s61, s61, 0
    v_mov_b32 v1, 0
    v_mov_b32 v2, s62
    global_store_dword v1, v2, s[60:61]
    s_add_u32 s60, s60, {512*11}
    s_addc_u32 s61, s61, 0
    global_store_dword v1, v2, s[60:61]
dbgt_skip_{tag}:
'''
        for k, i in idx.items():
            body = body.replace(f"\n{k}:\n", f"\n{k}:\n" + st(i, k))
        body = body.replace("\nattn_kernel:\n", "\nattn_kernel:\n" + st(2, "a1") + "attn_common:\n")
        body += ".text\n.globl attn2_kernel\n.p2align 8\n.type attn2_kernel,@function\nattn2_kernel:\n" + st(7, "a2") + "    s_branch attn_common\n"
        body += ".text\n.globl fin_kernel\n.p2align 8\n.type fin_kernel,@function\nfin_kernel:\n" + st(11, "fin") + "    s_endpgm\n"
        descs.append(descs[2].replace("attn_kernel", "attn2_kernel"))
        descs.append(kernel_desc("fin_kernel", 8, 0, 72))
        descs = [d.replace("next_free_sgpr 48", "next_free_sgpr 72").replace("next_free_sgpr 64", "next_free_sgpr 72") for d in descs]
        lines = hdr.split("\n")
        li = [i for i, l in enumerate(lines) if l.startswith("; @launch")]
        lines[li[7]] = lines[li[7]].replace("attn_kernel", "attn2_kernel")
        lines.insert(li[-1] + 1, "; @launch kernel=fin_kernel grid=(1,1,1) block=(64,1,1) lds=0")
        hdr = "\n".join(lines)
    out = hdr + '.amdgcn_target "amdgcn-amd-amdhsa--gfx950"\n' + body
    out += '.section .rodata,"a"\n'
    for d in descs:
        for blk in d.split(".amdhsa_kernel ")[1:]:
            out += ".p2align 6\n.amdhsa_kernel " + blk
    return out

if __name__ == "__main__":
    import asm as ASM
    if os.environ.get("STAMPS"): ASM.STAMPS = True
    dst = sys.argv[1] if len(sys.argv) > 1 else f"cdna_kernels/{NAME}.s"
    open(dst, "w").write(build())
    print("wrote", dst, os.path.getsize(dst))
```

```python
from asm import *
from layout import *
import os
DBGP = os.environ.get('DBGP')

NWG_PREP = 396
LDS_PREP = 40960

def gen_prep(a, name):
    kernel_header(a, name)
    a(f"""
    s_cmp_ge_u32 s2, {NWG_PREP}
    s_cbranch_scc1 {name}_end
    {"s_memrealtime s[40:41]" if DBGP else ""}
    {"s_memtime s[42:43]" if DBGP else ""}
    s_load_dwordx4 s[4:7], s[0:1], 0        ; x, wqkv
    s_load_dwordx2 s[8:9], s[0:1], 16       ; wo
    s_load_dwordx4 s[12:15], s[0:1], 32     ; w1, w2
    s_load_dwordx2 s[10:11], s[0:1], 64     ; ws
    v_and_b32 v1, 63, v0                    ; lane
    v_lshrrev_b32 v2, 6, v0                 ; wave
    s_nop 0
    v_readfirstlane_b32 s16, v2             ; s16 = wave
    s_cmp_lt_u32 s2, 116
    s_cbranch_scc1 {name}_A
    s_cmp_lt_u32 s2, 268
    s_cbranch_scc1 {name}_B
    s_branch {name}_C
    """)
    a.label(f"{name}_A")
    a("""
    v_and_b32 v3, 31, v0                    ; qd
    v_lshrrev_b32 v4, 5, v0                 ; r0
    v_lshrrev_b32 v5, 3, v3                 ; sigma
    v_and_b32 v6, 7, v3                     ; Q
    s_waitcnt lgkmcnt(0)
    """)
    if DBGP: a("s_memrealtime s[44:45]")
    a("s_cmp_lt_u32 s2, 60")
    a(f"s_cbranch_scc0 {name}_A_w1")
    a("""
    s_lshr_b32 s17, s2, 2                   ; nt
    s_and_b32 s18, s2, 3                    ; kq
    s_movk_i32 s19, 1920
    """)
    srd(a, 20, 6, 0, 640 * 1920 * 2)
    srd(a, 24, 10, ws.WQKV, ws.WQKV_SZ)
    srd(a, 28, 10, ws.CSQ, ws.CSQ_SZ)
    a("""
    s_lshl_b32 s33, s17, 2
    v_add_u32 v7, s33, v5                   ; slice
    s_cmp_ge_u32 s17, 10
    """)
    a(f"s_cbranch_scc1 {name}_A_vcol")
    a("""
    v_lshrrev_b32 v8, 2, v6
    v_lshlrev_b32 v8, 1, v8
    v_and_b32 v9, 1, v6
    v_add_u32 v8, v8, v9                    ; cidx
    v_bfe_u32 v9, v6, 1, 1                  ; eh
    v_cmp_le_u32 vcc, 20, v7
    s_nop 1
    v_cndmask_b32 v10, 0, 1, vcc            ; sec
    v_mul_u32_u24 v11, 20, v10
    v_sub_u32 v11, v7, v11                  ; slice % 20
    v_lshl_add_u32 v11, v11, 2, v8          ; chunk
    v_mul_u32_u24 v12, 205, v11
    v_lshrrev_b32 v12, 10, v12              ; p
    v_mul_u32_u24 v13, 5, v12
    v_sub_u32 v13, v11, v13                 ; r
    v_lshrrev_b32 v14, 1, v13               ; r>>1
    v_and_b32 v15, 1, v13
    v_lshlrev_b32 v15, 3, v15               ; 8*(r&1)
    v_lshl_add_u32 v15, v9, 2, v15          ; d = 8*(r&1)+4*eh
    v_cmp_eq_u32 vcc, 4, v13
    s_nop 1
    v_cndmask_b32 v14, v14, v9, vcc
    v_mov_b32 v16, 16
    v_cndmask_b32 v15, v15, v16, vcc        ; d
    v_lshl_add_u32 v14, v12, 1, v14         ; head
    v_mul_u32_u24 v14, 20, v14
    v_add_u32 v14, v14, v15
    v_mul_u32_u24 v10, 640, v10
    v_add_u32 v8, v14, v10                  ; col
    """)
    a(f"s_branch {name}_A_go")
    a.label(f"{name}_A_vcol")
    a("""
    v_lshlrev_b32 v8, 5, v7
    v_lshl_add_u32 v8, v6, 2, v8
    """)
    a(f"s_branch {name}_A_go")
    a.label(f"{name}_A_w1")
    a("""
    s_sub_u32 s33, s2, 60
    s_lshr_b32 s17, s33, 2
    s_and_b32 s18, s33, 3
    s_movk_i32 s19, 1728
    """)
    srd(a, 20, 12, 0, 640 * 1728 * 2)
    srd(a, 24, 10, ws.W1, ws.W1_SZ)
    srd(a, 28, 10, ws.CS1, ws.CS1_SZ)
    a("""
    s_lshl_b32 s33, s17, 2
    v_add_u32 v7, s33, v5                   ; slice
    v_lshlrev_b32 v8, 5, v7
    v_lshrrev_b32 v9, 2, v6
    v_lshl_add_u32 v8, v9, 4, v8            ; +16*(Q>>2)
    v_and_b32 v9, 1, v6
    v_lshl_add_u32 v8, v9, 3, v8            ; +8*(Q&1)
    v_bfe_u32 v9, v6, 1, 1
    v_lshl_add_u32 v8, v9, 2, v8            ; +4*((Q>>1)&1)
    """)
    a.label(f"{name}_A_go")
    a("""
    v_mul_lo_u32 v9, v4, s19
    v_add_u32 v9, v9, v8
    v_lshlrev_b32 v9, 1, v9                 ; voffset
    s_mul_i32 s34, s18, 160
    s_mul_i32 s34, s34, s19
    s_lshl_b32 s34, s34, 1                  ; soffset
    s_lshl_b32 s35, s19, 4                  ; 8 rows * N * 2
    """)
    for p in range(20):
        a(f"buffer_load_dwordx2 v[{20+2*p}:{21+2*p}], v9, s[20:23], s34 offen")
        if p < 19: a("s_add_u32 s34, s34, s35")
    a("v_lshlrev_b32 v10, 3, v0")
    for p in range(20):
        a(f"s_waitcnt vmcnt({19-p})")
        a(f"ds_write_b64 v10, v[{20+2*p}:{21+2*p}] offset:{p*2048}")
    if DBGP: a("s_memrealtime s[46:47]")
    a("""
    v_lshrrev_b32 v11, 4, v1                ; G
    v_bfe_u32 v12, v1, 2, 2                 ; r
    v_and_b32 v13, 3, v1                    ; c'
    v_lshrrev_b32 v14, 1, v11               ; h
    v_lshl_add_u32 v14, v14, 3, v12         ; 8h + r
    v_lshlrev_b32 v14, 8, v14               ; *256
    v_and_b32 v15, 1, v11
    v_lshl_add_u32 v15, v15, 2, v13         ; 4*(G&1)+c'
    v_lshl_add_u32 v15, v2, 3, v15          ; + 8*w
    v_lshl_add_u32 v14, v15, 3, v14         ; addr
    v_mov_b32 v16, 0x3f803f80
    v_mov_b32 v17, 0x3f803f80
    v_mov_b32 v18, 0x3f803f80
    v_mov_b32 v19, 0x3f803f80
    s_waitcnt lgkmcnt(0)
    s_barrier
    """)
    for ks in range(10):
        for u in range(2):
            a(f"ds_read_b64_tr_b16 v[{20+4*ks+2*u}:{21+4*ks+2*u}], v14 offset:{ks*4096+u*1024}")
    a("""
    s_lshl_b32 s33, s17, 2
    s_add_u32 s33, s33, s16
    s_mul_i32 s34, s33, 40
    s_mul_i32 s35, s18, 10
    s_add_u32 s34, s34, s35
    s_lshl_b32 s34, s34, 10                 ; soffset
    v_lshlrev_b32 v10, 4, v1
    """)
    for ks in range(10):
        a(f"s_waitcnt lgkmcnt({min(15, 18-2*ks)})" if ks < 9 else "s_waitcnt lgkmcnt(0)")
        a(f"buffer_store_dwordx4 v[{20+4*ks}:{23+4*ks}], v10, s[24:27], s34 offen")
        c = "0" if ks == 0 else "v[64:79]"
        a(f"v_mfma_f32_32x32x16_bf16 v[64:79], v[16:19], v[{20+4*ks}:{23+4*ks}], {c}")
        if ks < 9: a("s_add_u32 s34, s34, 1024")
    a("""
    v_and_b32 v11, 31, v1
    s_lshl_b32 s33, s33, 5
    v_add_u32 v11, s33, v11
    v_lshlrev_b32 v11, 4, v11
    s_lshl_b32 s35, s18, 2
    s_nop 15
    buffer_store_dword v64, v11, s[28:31], s35 offen
    """)
    if DBGP:
        a(f"""
        s_waitcnt vmcnt(0)
        s_memrealtime s[48:49]
        s_memtime s[50:51]
        s_load_dwordx2 s[52:53], s[0:1], 56
        s_waitcnt lgkmcnt(0)
        s_cmp_lg_u32 s2, {int(DBGP)}
        s_cbranch_scc1 {name}_end
        s_cmp_lg_u32 s16, 0
        s_cbranch_scc1 {name}_end
        s_add_u32 s52, s52, {512*11 + 48}
        s_addc_u32 s53, s53, 0
        s_sub_u32 s44, s44, s40
        s_sub_u32 s46, s46, s40
        s_sub_u32 s48, s48, s40
        s_sub_u32 s50, s50, s42
        v_mov_b32 v4, s44
        v_mov_b32 v5, s46
        v_mov_b32 v6, s48
        v_mov_b32 v7, s50
        v_mov_b32 v8, 0
        global_store_dwordx4 v8, v[4:7], s[52:53]
        """)
    a("s_endpgm")
    a.label(f"{name}_B")
    a("""
    s_sub_u32 s33, s2, 116
    s_waitcnt lgkmcnt(0)
    s_cmp_lt_u32 s33, 112
    """)
    a(f"s_cbranch_scc0 {name}_B_wo")
    a("""
    s_mul_i32 s17, s33, 4682
    s_lshr_b32 s17, s17, 16                 ; j
    s_mul_i32 s18, s17, 14
    s_sub_u32 s18, s33, s18                 ; kr
    s_movk_i32 s19, 54
    """)
    srd(a, 20, 14, 0, 1728 * 640 * 2)
    srd(a, 24, 10, ws.W2, ws.W2_SZ)
    a("s_mov_b32 s36, 0")
    a(f"s_branch {name}_B_go")
    a.label(f"{name}_B_wo")
    a("""
    s_sub_u32 s33, s33, 112
    s_mul_i32 s17, s33, 205
    s_lshr_b32 s17, s17, 10                 ; j
    s_mul_i32 s18, s17, 5
    s_sub_u32 s18, s33, s18                 ; kr
    s_movk_i32 s19, 20
    """)
    srd(a, 20, 8, 0, 640 * 640 * 2)
    srd(a, 24, 10, ws.WO, ws.WO_SZ)
    a("s_mov_b32 s36, 1")
    a.label(f"{name}_B_go")
    a("""
    s_lshl_b32 s34, s18, 7                  ; 128*kr
    s_mul_i32 s35, s17, 160
    """)
    for p in range(5):
        a(f"""
        v_add_u32 v3, {256*p}, v0               ; i
        v_mul_u32_u24 v4, 6554, v3
        v_lshrrev_b32 v4, 16, v4                ; row
        v_mul_u32_u24 v5, 10, v4
        v_sub_u32 v5, v3, v5                    ; pc
        v_add_u32 v6, s34, v4                   ; k
        s_cmp_eq_u32 s36, 0
        s_cbranch_scc1 {name}_B_row{p}
        v_lshrrev_b32 v7, 3, v6                 ; c
        v_and_b32 v8, 7, v6                     ; e
        v_mul_u32_u24 v9, 205, v7
        v_lshrrev_b32 v9, 10, v9                ; p
        v_mul_u32_u24 v10, 5, v9
        v_sub_u32 v10, v7, v10                  ; r
        v_lshrrev_b32 v11, 1, v10
        v_and_b32 v12, 1, v10
        v_lshl_add_u32 v12, v12, 3, v8          ; d (r<4)
        v_lshrrev_b32 v13, 2, v8
        v_and_b32 v14, 3, v8
        v_add_u32 v14, 16, v14
        v_cmp_eq_u32 vcc, 4, v10
        s_nop 1
        v_cndmask_b32 v11, v11, v13, vcc
        v_cndmask_b32 v12, v12, v14, vcc
        v_lshl_add_u32 v11, v9, 1, v11          ; head
        v_mul_u32_u24 v11, 20, v11
        v_add_u32 v6, v11, v12
        """)
        a.label(f"{name}_B_row{p}")
        a(f"""
        v_mul_u32_u24 v6, 1280, v6
        v_lshl_add_u32 v6, v5, 4, v6
        buffer_load_dwordx4 v[{20+4*p}:{23+4*p}], v6, s[20:23], s35 offen
        """)
    a("v_lshlrev_b32 v10, 4, v0")
    for p in range(5):
        a(f"s_waitcnt vmcnt({4-p})")
        a(f"ds_write_b128 v10, v[{20+4*p}:{23+4*p}] offset:{p*4096}")
    a("""
    v_lshrrev_b32 v11, 4, v1                ; kg
    v_bfe_u32 v12, v1, 2, 2                 ; r
    v_and_b32 v13, 3, v1                    ; c'
    v_lshl_add_u32 v12, v11, 3, v12         ; 8kg + r
    v_lshl_add_u32 v12, v2, 5, v12          ; + 32 w
    v_mul_u32_u24 v12, 160, v12
    v_mul_u32_u24 v13, 40, v13
    v_add_u32 v14, v12, v13
    s_lshl_b32 s33, s18, 2
    s_add_u32 s33, s33, s16                 ; kstep
    s_waitcnt lgkmcnt(0)
    s_barrier
    s_cmp_ge_u32 s33, s19
    """)
    a(f"s_cbranch_scc1 {name}_end")
    for ft in range(5):
        for u in range(2):
            a(f"ds_read_b64_tr_b16 v[{20+4*ft+2*u}:{21+4*ft+2*u}], v14 offset:{u*640+ft*8}")
    a("""
    s_mul_i32 s34, s17, s19
    s_add_u32 s34, s34, s33
    s_mul_i32 s34, s34, 5120
    v_lshlrev_b32 v10, 4, v1
    """)
    for ft in range(5):
        a(f"s_waitcnt lgkmcnt({8-2*ft})")
        a(f"buffer_store_dwordx4 v[{20+4*ft}:{23+4*ft}], v10, s[24:27], s34 offen")
        if ft < 4: a("s_add_u32 s34, s34, 1024")
    a("s_endpgm")
    a.label(f"{name}_C")
    a("""
    s_sub_u32 s33, s2, 268
    s_lshl_b32 s33, s33, 4
    s_lshl_b32 s34, s16, 2
    s_add_u32 s33, s33, s34
    v_lshrrev_b32 v3, 4, v1
    v_add_u32 v3, s33, v3                   ; row
    v_and_b32 v4, 15, v1                    ; sub
    v_mul_u32_u24 v5, 1280, v3
    v_lshl_add_u32 v5, v4, 4, v5
    s_waitcnt lgkmcnt(0)
    """)
    srd(a, 20, 4, 0, M * D * 2)
    srd(a, 24, 10, ws.ST0, ws.ST0_SZ)
    for i in range(5):
        a(f"buffer_load_dwordx4 v[{20+4*i}:{23+4*i}], v5, s[20:23], 0 offen offset:{256*i}")
    a("""
    v_mov_b32 v6, 0
    v_mov_b32 v7, 0
    """)
    for i in range(5):
        a(f"s_waitcnt vmcnt({4-i})")
        for q in range(4):
            r = 20 + 4*i + q
            a(f"""
            v_lshlrev_b32 v8, 16, v{r}
            v_and_b32 v9, 0xffff0000, v{r}
            v_add_f32 v6, v6, v8
            v_fmac_f32 v7, v8, v8
            v_add_f32 v6, v6, v9
            v_fmac_f32 v7, v9, v9
            """)
    for rot in (8, 4, 2, 1):
        a(f"""
        s_nop 1
        v_add_f32_dpp v6, v6, v6 row_ror:{rot} row_mask:0xf bank_mask:0xf
        v_add_f32_dpp v7, v7, v7 row_ror:{rot} row_mask:0xf bank_mask:0xf
        """)
    a("""
    v_cmp_eq_u32 vcc, 0, v4
    s_nop 1
    v_cndmask_b32 v12, 0, v6, vcc
    v_cndmask_b32 v13, 0, v7, vcc
    v_mov_b32 v14, 0
    v_mov_b32 v15, 0
    v_lshlrev_b32 v10, 6, v3
    v_lshl_add_u32 v10, v4, 4, v10
    v_mov_b32 v11, 0x7ffffff0
    v_cmp_gt_u32 vcc, 4, v4
    s_nop 1
    v_cndmask_b32 v10, v11, v10, vcc
    buffer_store_dwordx4 v[12:15], v10, s[24:27], 0 offen
    """)
    a.label(f"{name}_end")
    a("s_endpgm")
    return kernel_desc(name, 80, 0, 64)
```

```python
from asm import *
from layout import *
import os
DBGP = os.environ.get('DBGP')

NWG_PREP = 396
LDS_PREP = 40960

def dbg_end(a, name, k):
    a(f"""
    s_waitcnt vmcnt(0)
    s_memrealtime s[48:49]
    s_load_dwordx2 s[52:53], s[0:1], 56
    s_waitcnt lgkmcnt(0)
    s_add_u32 s52, s52, {512*11 + 48 + 4*k}
    s_addc_u32 s53, s53, 0
    v_mov_b32 v4, s48
    v_mov_b32 v8, 0
    v_cmp_eq_u32 vcc, 0, v0
    s_and_saveexec_b64 s[54:55], vcc
    s_cbranch_execz {name}_end
    global_atomic_umax v8, v4, s[52:53]
    """)

def gen_prep(a, name):
    kernel_header(a, name)
    a(f"""
    s_cmp_ge_u32 s2, {NWG_PREP}
    s_cbranch_scc1 {name}_end
    {"s_memrealtime s[40:41]" if DBGP else ""}
    {"s_memtime s[42:43]" if DBGP else ""}
    s_load_dwordx4 s[4:7], s[0:1], 0        ; x, wqkv
    s_load_dwordx2 s[8:9], s[0:1], 16       ; wo
    s_load_dwordx4 s[12:15], s[0:1], 32     ; w1, w2
    s_load_dwordx2 s[10:11], s[0:1], 64     ; ws
    v_and_b32 v1, 63, v0                    ; lane
    v_lshrrev_b32 v2, 6, v0                 ; wave
    s_nop 0
    v_readfirstlane_b32 s16, v2             ; s16 = wave
    s_cmp_lt_u32 s2, 116
    s_cbranch_scc1 {name}_A
    s_cmp_lt_u32 s2, 268
    s_cbranch_scc1 {name}_B
    s_branch {name}_C
    """)
    a.label(f"{name}_A")
    a("""
    v_and_b32 v3, 31, v0                    ; qd
    v_lshrrev_b32 v4, 5, v0                 ; r0
    v_lshrrev_b32 v5, 3, v3                 ; sigma
    v_and_b32 v6, 7, v3                     ; Q
    s_waitcnt lgkmcnt(0)
    """)
    if DBGP: a("s_memrealtime s[44:45]")
    a("s_cmp_lt_u32 s2, 60")
    a(f"s_cbranch_scc0 {name}_A_w1")
    a("""
    s_lshr_b32 s17, s2, 2                   ; nt
    s_and_b32 s18, s2, 3                    ; kq
    s_movk_i32 s19, 1920
    """)
    srd(a, 20, 6, 0, 640 * 1920 * 2)
    srd(a, 24, 10, ws.WQKV, ws.WQKV_SZ)
    srd(a, 28, 10, ws.CSQ, ws.CSQ_SZ)
    a("""
    s_lshl_b32 s33, s17, 2
    v_add_u32 v7, s33, v5                   ; slice
    s_cmp_ge_u32 s17, 10
    """)
    a(f"s_cbranch_scc1 {name}_A_vcol")
    a("""
    v_lshrrev_b32 v8, 2, v6
    v_lshlrev_b32 v8, 1, v8
    v_and_b32 v9, 1, v6
    v_add_u32 v8, v8, v9                    ; cidx
    v_bfe_u32 v9, v6, 1, 1                  ; eh
    v_cmp_le_u32 vcc, 20, v7
    s_nop 1
    v_cndmask_b32 v10, 0, 1, vcc            ; sec
    v_mul_u32_u24 v11, 20, v10
    v_sub_u32 v11, v7, v11                  ; slice % 20
    v_lshl_add_u32 v11, v11, 2, v8          ; chunk
    v_mul_u32_u24 v12, 205, v11
    v_lshrrev_b32 v12, 10, v12              ; p
    v_mul_u32_u24 v13, 5, v12
    v_sub_u32 v13, v11, v13                 ; r
    v_lshrrev_b32 v14, 1, v13               ; r>>1
    v_and_b32 v15, 1, v13
    v_lshlrev_b32 v15, 3, v15               ; 8*(r&1)
    v_lshl_add_u32 v15, v9, 2, v15          ; d = 8*(r&1)+4*eh
    v_cmp_eq_u32 vcc, 4, v13
    s_nop 1
    v_cndmask_b32 v14, v14, v9, vcc
    v_mov_b32 v16, 16
    v_cndmask_b32 v15, v15, v16, vcc        ; d
    v_lshl_add_u32 v14, v12, 1, v14         ; head
    v_mul_u32_u24 v14, 20, v14
    v_add_u32 v14, v14, v15
    v_mul_u32_u24 v10, 640, v10
    v_add_u32 v8, v14, v10                  ; col
    """)
    a(f"s_branch {name}_A_go")
    a.label(f"{name}_A_vcol")
    a("""
    v_lshlrev_b32 v8, 5, v7
    v_lshl_add_u32 v8, v6, 2, v8
    """)
    a(f"s_branch {name}_A_go")
    a.label(f"{name}_A_w1")
    a("""
    s_sub_u32 s33, s2, 60
    s_lshr_b32 s17, s33, 2
    s_and_b32 s18, s33, 3
    s_movk_i32 s19, 1728
    """)
    srd(a, 20, 12, 0, 640 * 1728 * 2)
    srd(a, 24, 10, ws.W1, ws.W1_SZ)
    srd(a, 28, 10, ws.CS1, ws.CS1_SZ)
    a("""
    s_lshl_b32 s33, s17, 2
    v_add_u32 v7, s33, v5                   ; slice
    v_lshlrev_b32 v8, 5, v7
    v_lshrrev_b32 v9, 2, v6
    v_lshl_add_u32 v8, v9, 4, v8            ; +16*(Q>>2)
    v_and_b32 v9, 1, v6
    v_lshl_add_u32 v8, v9, 3, v8            ; +8*(Q&1)
    v_bfe_u32 v9, v6, 1, 1
    v_lshl_add_u32 v8, v9, 2, v8            ; +4*((Q>>1)&1)
    """)
    a.label(f"{name}_A_go")
    a("""
    v_mul_lo_u32 v9, v4, s19
    v_add_u32 v9, v9, v8
    v_lshlrev_b32 v9, 1, v9                 ; voffset
    s_mul_i32 s34, s18, 160
    s_mul_i32 s34, s34, s19
    s_lshl_b32 s34, s34, 1                  ; soffset
    s_lshl_b32 s35, s19, 4                  ; 8 rows * N * 2
    """)
    for p in range(20):
        a(f"buffer_load_dwordx2 v[{20+2*p}:{21+2*p}], v9, s[20:23], s34 offen")
        if p < 19: a("s_add_u32 s34, s34, s35")
    a("v_lshlrev_b32 v10, 3, v0")
    for p in range(20):
        a(f"s_waitcnt vmcnt({19-p})")
        a(f"ds_write_b64 v10, v[{20+2*p}:{21+2*p}] offset:{p*2048}")
    if DBGP: a("s_memrealtime s[46:47]")
    a("""
    v_lshrrev_b32 v11, 4, v1                ; G
    v_bfe_u32 v12, v1, 2, 2                 ; r
    v_and_b32 v13, 3, v1                    ; c'
    v_lshrrev_b32 v14, 1, v11               ; h
    v_lshl_add_u32 v14, v14, 3, v12         ; 8h + r
    v_lshlrev_b32 v14, 8, v14               ; *256
    v_and_b32 v15, 1, v11
    v_lshl_add_u32 v15, v15, 2, v13         ; 4*(G&1)+c'
    v_lshl_add_u32 v15, v2, 3, v15          ; + 8*w
    v_lshl_add_u32 v14, v15, 3, v14         ; addr
    v_mov_b32 v16, 0x3f803f80
    v_mov_b32 v17, 0x3f803f80
    v_mov_b32 v18, 0x3f803f80
    v_mov_b32 v19, 0x3f803f80
    s_waitcnt lgkmcnt(0)
    s_barrier
    """)
    for ks in range(10):
        for u in range(2):
            a(f"ds_read_b64_tr_b16 v[{20+4*ks+2*u}:{21+4*ks+2*u}], v14 offset:{ks*4096+u*1024}")
    a("""
    s_lshl_b32 s33, s17, 2
    s_add_u32 s33, s33, s16
    s_mul_i32 s34, s33, 40
    s_mul_i32 s35, s18, 10
    s_add_u32 s34, s34, s35
    s_lshl_b32 s34, s34, 10                 ; soffset
    v_lshlrev_b32 v10, 4, v1
    """)
    for ks in range(10):
        a(f"s_waitcnt lgkmcnt({min(15, 18-2*ks)})" if ks < 9 else "s_waitcnt lgkmcnt(0)")
        a(f"buffer_store_dwordx4 v[{20+4*ks}:{23+4*ks}], v10, s[24:27], s34 offen")
        c = "0" if ks == 0 else "v[64:79]"
        a(f"v_mfma_f32_32x32x16_bf16 v[64:79], v[16:19], v[{20+4*ks}:{23+4*ks}], {c}")
        if ks < 9: a("s_add_u32 s34, s34, 1024")
    a("""
    v_and_b32 v11, 31, v1
    s_lshl_b32 s33, s33, 5
    v_add_u32 v11, s33, v11
    v_lshlrev_b32 v11, 4, v11
    s_lshl_b32 s35, s18, 2
    s_nop 15
    buffer_store_dword v64, v11, s[28:31], s35 offen
    """)
    if DBGP:
        dbg_end(a, name, 0)
    a("s_endpgm")
    a.label(f"{name}_B")
    a("""
    s_sub_u32 s33, s2, 116
    s_waitcnt lgkmcnt(0)
    s_cmp_lt_u32 s33, 112
    """)
    a(f"s_cbranch_scc0 {name}_B_wo")
    a("""
    s_mul_i32 s17, s33, 4682
    s_lshr_b32 s17, s17, 16                 ; j
    s_mul_i32 s18, s17, 14
    s_sub_u32 s18, s33, s18                 ; kr
    s_movk_i32 s19, 54
    """)
    srd(a, 20, 14, 0, 1728 * 640 * 2)
    srd(a, 24, 10, ws.W2, ws.W2_SZ)
    a("s_mov_b32 s36, 0")
    a(f"s_branch {name}_B_go")
    a.label(f"{name}_B_wo")
    a("""
    s_sub_u32 s33, s33, 112
    s_mul_i32 s17, s33, 205
    s_lshr_b32 s17, s17, 10                 ; j
    s_mul_i32 s18, s17, 5
    s_sub_u32 s18, s33, s18                 ; kr
    s_movk_i32 s19, 20
    """)
    srd(a, 20, 8, 0, 640 * 640 * 2)
    srd(a, 24, 10, ws.WO, ws.WO_SZ)
    a("s_mov_b32 s36, 1")
    a.label(f"{name}_B_go")
    a("""
    s_lshl_b32 s34, s18, 7                  ; 128*kr
    s_mul_i32 s35, s17, 160
    """)
    for p in range(5):
        a(f"""
        v_add_u32 v3, {256*p}, v0               ; i
        v_mul_u32_u24 v4, 6554, v3
        v_lshrrev_b32 v4, 16, v4                ; row
        v_mul_u32_u24 v5, 10, v4
        v_sub_u32 v5, v3, v5                    ; pc
        v_add_u32 v6, s34, v4                   ; k
        s_cmp_eq_u32 s36, 0
        s_cbranch_scc1 {name}_B_row{p}
        v_lshrrev_b32 v7, 3, v6                 ; c
        v_and_b32 v8, 7, v6                     ; e
        v_mul_u32_u24 v9, 205, v7
        v_lshrrev_b32 v9, 10, v9                ; p
        v_mul_u32_u24 v10, 5, v9
        v_sub_u32 v10, v7, v10                  ; r
        v_lshrrev_b32 v11, 1, v10
        v_and_b32 v12, 1, v10
        v_lshl_add_u32 v12, v12, 3, v8          ; d (r<4)
        v_lshrrev_b32 v13, 2, v8
        v_and_b32 v14, 3, v8
        v_add_u32 v14, 16, v14
        v_cmp_eq_u32 vcc, 4, v10
        s_nop 1
        v_cndmask_b32 v11, v11, v13, vcc
        v_cndmask_b32 v12, v12, v14, vcc
        v_lshl_add_u32 v11, v9, 1, v11          ; head
        v_mul_u32_u24 v11, 20, v11
        v_add_u32 v6, v11, v12
        """)
        a.label(f"{name}_B_row{p}")
        a(f"""
        v_mul_u32_u24 v6, 1280, v6
        v_lshl_add_u32 v6, v5, 4, v6
        buffer_load_dwordx4 v[{20+4*p}:{23+4*p}], v6, s[20:23], s35 offen
        """)
    a("v_lshlrev_b32 v10, 4, v0")
    for p in range(5):
        a(f"s_waitcnt vmcnt({4-p})")
        a(f"ds_write_b128 v10, v[{20+4*p}:{23+4*p}] offset:{p*4096}")
    a("""
    v_lshrrev_b32 v11, 4, v1                ; kg
    v_bfe_u32 v12, v1, 2, 2                 ; r
    v_and_b32 v13, 3, v1                    ; c'
    v_lshl_add_u32 v12, v11, 3, v12         ; 8kg + r
    v_lshl_add_u32 v12, v2, 5, v12          ; + 32 w
    v_mul_u32_u24 v12, 160, v12
    v_mul_u32_u24 v13, 40, v13
    v_add_u32 v14, v12, v13
    s_lshl_b32 s33, s18, 2
    s_add_u32 s33, s33, s16                 ; kstep
    s_waitcnt lgkmcnt(0)
    s_barrier
    s_cmp_ge_u32 s33, s19
    """)
    a(f"s_cbranch_scc1 {name}_end")
    for ft in range(5):
        for u in range(2):
            a(f"ds_read_b64_tr_b16 v[{20+4*ft+2*u}:{21+4*ft+2*u}], v14 offset:{u*640+ft*8}")
    a("""
    s_mul_i32 s34, s17, s19
    s_add_u32 s34, s34, s33
    s_mul_i32 s34, s34, 5120
    v_lshlrev_b32 v10, 4, v1
    """)
    for ft in range(5):
        a(f"s_waitcnt lgkmcnt({8-2*ft})")
        a(f"buffer_store_dwordx4 v[{20+4*ft}:{23+4*ft}], v10, s[24:27], s34 offen")
        if ft < 4: a("s_add_u32 s34, s34, 1024")
    if DBGP: dbg_end(a, name, 1)
    a("s_endpgm")
    a.label(f"{name}_C")
    a("""
    s_sub_u32 s33, s2, 268
    s_lshl_b32 s33, s33, 4
    s_lshl_b32 s34, s16, 2
    s_add_u32 s33, s33, s34
    v_lshrrev_b32 v3, 4, v1
    v_add_u32 v3, s33, v3                   ; row
    v_and_b32 v4, 15, v1                    ; sub
    v_mul_u32_u24 v5, 1280, v3
    v_lshl_add_u32 v5, v4, 4, v5
    s_waitcnt lgkmcnt(0)
    """)
    srd(a, 20, 4, 0, M * D * 2)
    srd(a, 24, 10, ws.ST0, ws.ST0_SZ)
    for i in range(5):
        a(f"buffer_load_dwordx4 v[{20+4*i}:{23+4*i}], v5, s[20:23], 0 offen offset:{256*i}")
    a("""
    v_mov_b32 v6, 0
    v_mov_b32 v7, 0
    """)
    for i in range(5):
        a(f"s_waitcnt vmcnt({4-i})")
        for q in range(4):
            r = 20 + 4*i + q
            a(f"""
            v_lshlrev_b32 v8, 16, v{r}
            v_and_b32 v9, 0xffff0000, v{r}
            v_add_f32 v6, v6, v8
            v_fmac_f32 v7, v8, v8
            v_add_f32 v6, v6, v9
            v_fmac_f32 v7, v9, v9
            """)
    for rot in (8, 4, 2, 1):
        a(f"""
        s_nop 1
        v_add_f32_dpp v6, v6, v6 row_ror:{rot} row_mask:0xf bank_mask:0xf
        v_add_f32_dpp v7, v7, v7 row_ror:{rot} row_mask:0xf bank_mask:0xf
        """)
    a("""
    v_cmp_eq_u32 vcc, 0, v4
    s_nop 1
    v_cndmask_b32 v12, 0, v6, vcc
    v_cndmask_b32 v13, 0, v7, vcc
    v_mov_b32 v14, 0
    v_mov_b32 v15, 0
    v_lshlrev_b32 v10, 6, v3
    v_lshl_add_u32 v10, v4, 4, v10
    v_mov_b32 v11, 0x7ffffff0
    v_cmp_gt_u32 vcc, 4, v4
    s_nop 1
    v_cndmask_b32 v10, v11, v10, vcc
    buffer_store_dwordx4 v[12:15], v10, s[24:27], 0 offen
    """)
    if DBGP: dbg_end(a, name, 2)
    a.label(f"{name}_end")
    a("s_endpgm")
    return kernel_desc(name, 80, 0, 64)
```

```python
from asm import *
from layout import *
import asm as ASM

V_LANE = 1; V_TOK = 2; V_H = 3
V_KA = 4
V_K2A = 5
V_VA = 6
V_T = 8
V_S = 16
V_P = 48
V_R = 56
V_X = 128
A_Q = 0; A_O = 24; A_K = 88; A_V = 112
NB = 4
NA = 144
S_W = 16
S_HEAD = 17; S_QB = 18; S_P = 19; S_HH = 20; S_PASS = 21
NT = 4
S_G = 68; S_KH = 69
LDS_RED = 4 * 2 * 3 * 1024
LDS_MX = LDS_RED
LDS_FLAG = LDS_MX + 4096
LDS_ATT = LDS_FLAG + 64

def Qf(t): return A_Q + 6*t
def Kf(b): return A_K + 6*b
def Vf(b): return A_V + 8*b
def Sb(b): return V_S + 16*b
def Oa(t): return A_O + 16*t
M16 = "v_mfma_f32_32x32x16_bf16"
M8 = "v_mfma_f32_32x32x8_bf16"

def attn_phase(a, n, wsptr, qoff, koff, voff, ooff, sc="", scl=None, id_sgpr=2, srd_fn=None, wait_fn=None, stamp_fn=None):
    a(f"""
    s_and_b32 s22, s{id_sgpr}, 7
    s_lshr_b32 s23, s{id_sgpr}, 3
    s_and_b32 s24, s23, 3
    s_lshl_b32 s24, s24, 3
    s_add_u32 s{S_HEAD}, s22, s24               ; head
    s_lshr_b32 s{S_QB}, s{id_sgpr}, 5
    s_lshr_b32 s{S_P}, s{S_HEAD}, 1
    s_and_b32 s{S_HH}, s{S_HEAD}, 1
    v_and_b32 v{V_LANE}, 63, v0
    v_and_b32 v{V_TOK}, 31, v0
    v_bfe_u32 v{V_H}, v0, 5, 1
    v_lshlrev_b32 v{V_KA}, 4, v{V_LANE}
    v_lshlrev_b32 v{V_K2A}, 4, v{V_TOK}
    s_lshl_b32 s23, s{S_HH}, 3
    v_add_u32 v{V_K2A}, s23, v{V_K2A}
    v_mul_u32_u24 v{V_VA}, 320, v{V_H}
    v_lshl_add_u32 v{V_VA}, v{V_TOK}, 4, v{V_VA}
    s_mov_b32 s24, 0xffffffff
    s_mov_b32 s25, 0
    s_mov_b32 s26, 0x000fffff
    s_mov_b32 s27, 0x000fffff
    """)
    if srd_fn is None: srd_fn = lambda d, off, size: srd2(a, d, wsptr, off, size)
    srd_fn(28, qoff, ws.Q_SZ)
    srd_fn(32, koff, ws.K_SZ)
    srd_fn(36, voff, ws.V_SZ)
    srd_fn(40, ooff, ws.O_SZ)
    a(f"""
    s_and_b32 s{S_G}, s{S_W}, 1
    s_lshr_b32 s{S_KH}, s{S_W}, 1
    s_lshl_b32 s44, s{S_HEAD}, 6                ; head*64
    s_lshl_b32 s45, s{S_QB}, 3
    s_lshl_b32 s46, s{S_G}, 2
    s_add_u32 s45, s45, s46
    s_add_u32 s46, s44, s45
    s_lshl_b32 s46, s46, 10                     ; Q1 offset
    s_lshl_b32 s47, s{S_P}, 6
    s_add_u32 s47, s47, s45
    s_lshl_b32 s47, s47, 9
    s_add_u32 s47, s47, {QK1_SZ}                ; Q2 offset
    s_lshl_b32 s48, s{S_KH}, 5
    s_add_u32 s49, s44, s48
    s_lshl_b32 s50, s49, 10                     ; K1 base
    s_mul_i32 s51, s49, 1280                    ; V base
    s_lshl_b32 s52, s{S_P}, 6
    s_add_u32 s52, s52, s48
    s_lshl_b32 s52, s52, 9
    s_add_u32 s52, s52, {QK1_SZ}                ; K2 base
    s_mov_b32 s{S_PASS}, 0
    v_mov_b32 v{V_T}, 0
    v_mov_b32 v{V_T+1}, 0x3f803f80
    v_mov_b32 v{V_T+2}, 0x00003f80
    """)
    for t in range(NT):
        a(f"v_accvgpr_write_b32 a{Qf(t)+4}, v{V_T}")
        a(f"v_accvgpr_write_b32 a{Qf(t)+5}, v{V_T}")
    for b in range(NB):
        a(f"v_accvgpr_write_b32 a{Kf(b)+4}, v{V_T+1}")
        a(f"v_accvgpr_write_b32 a{Kf(b)+5}, v{V_T+2}")
        for i in range(8):
            a(f"v_accvgpr_write_b32 a{Vf(b)+i}, v{V_T+1}")
    return _attn_rest(a, n, sc, sc if scl is None else scl, wait_fn, stamp_fn or stamp)

def srd2(a, d, ptr, off, size):
    if isinstance(off, int):
        srd(a, d, ptr, off, size)
    else:
        a(f"s_add_u32 s{d}, s{ptr}, {off}")
        a(f"s_addc_u32 s{d+1}, s{ptr+1}, 0")
        a(f"s_and_b32 s{d+1}, s{d+1}, 0xffff")
        a(f"s_mov_b32 s{d+2}, {size}")
        a(f"s_mov_b32 s{d+3}, 0x20000")

def _attn_rest(a, n, sc, scl, wait_fn, stamp):
    def kv_loads(b, with_v=True):
        L = [[f"buffer_load_dwordx4 a[{Kf(b)}:{Kf(b)+3}], v{V_KA}, s[32:35], s53 offen {scl}"],
             ["s_mov_b64 exec, s[24:25]",
              f"buffer_load_dwordx2 a[{Kf(b)+4}:{Kf(b)+5}], v{V_K2A}, s[32:35], s55 offen {scl}",
              "s_mov_b64 exec, -1"]]
        if with_v:
            L.append(["s_mov_b64 exec, s[26:27]",
                      f"buffer_load_dwordx4 a[{Vf(b)}:{Vf(b)+3}], v{V_VA}, s[36:39], s54 offen {scl}",
                      f"buffer_load_dwordx4 a[{Vf(b)+4}:{Vf(b)+7}], v{V_VA}, s[36:39], s54 offen offset:640 {scl}",
                      "s_mov_b64 exec, -1"])
        L.append(["s_add_u32 s53, s53, 1024"]); L.append(["s_add_u32 s54, s54, 1280"]); L.append(["s_add_u32 s55, s55, 512"])
        return L
    def load_kv(b, with_v=True):
        for bun in kv_loads(b, with_v):
            for l in bun: a(l)
    def qk(t, b, sb):
        S = f"v[{Sb(sb)}:{Sb(sb)+15}]"
        return [f"{M16} {S}, a[{Kf(b)}:{Kf(b)+3}], a[{Qf(t)}:{Qf(t)+3}], 0",
                f"{M8} {S}, a[{Kf(b)+4}:{Kf(b)+5}], a[{Qf(t)+4}:{Qf(t)+5}], {S}"]
    def pv(t, b, m):
        c = f"a[{Oa(t)}:{Oa(t)+15}]"
        return f"{M16} {c}, a[{Vf(b)+4*m}:{Vf(b)+4*m+3}], v[{V_P+4*m}:{V_P+4*m+3}], {c}"

    def zero_acc():
        a(f"v_mov_b32 v{V_T}, 0")
        for t in range(NT):
            for i in range(16):
                a(f"v_accvgpr_write_b32 a{Oa(t)+i}, v{V_T}")
        for i in range(4, 8):
            a(f"v_mov_b32 v{V_P+i}, 0")
    zero_acc()
    stamp(a, 1)
    if wait_fn: wait_fn()
    stamp(a, 2)
    a("""
    s_mov_b32 s53, s50
    s_mov_b32 s54, s51
    s_mov_b32 s55, s52
    """)
    load_kv(0)
    for t in range(NT):
        a(f"buffer_load_dwordx4 a[{Qf(t)}:{Qf(t)+3}], v{V_KA}, s[28:31], s46 offen offset:{(t & 3)*1024} {scl}")
    a("s_mov_b64 exec, s[24:25]")
    for t in range(NT):
        a(f"buffer_load_dwordx2 a[{Qf(t)+4}:{Qf(t)+5}], v{V_K2A}, s[28:31], s47 offen offset:{t*512} {scl}")
    a("s_mov_b64 exec, -1")
    load_kv(1)
    a(f"s_branch {n}_start")
    a.label(f"{n}_main")
    a("""
    s_mov_b32 s53, s50
    s_mov_b32 s54, s51
    s_mov_b32 s55, s52
    """)
    load_kv(0)
    load_kv(1)
    zero_acc()
    a.label(f"{n}_start")
    a("s_waitcnt vmcnt(4)")
    for l in qk(0, 0, 0): a(l)
    stamp(a, 3)
    a("s_mov_b32 s56, 8")
    a("s_nop 7")
    a("s_nop 2")
    a.lines.append(".p2align 6")
    a.label(f"{n}_loop")
    for b in range(NB):
        for t in range(NT):
            sb = t & 1; nsb = sb ^ 1
            S = Sb(sb); P = V_P
            nb_ = (b + 1) % NB; pb_ = (b - 1) % NB; lb = (b + 2) % NB
            nq = qk(t+1, b, nsb) if t < NT-1 else qk(0, nb_, nsb)
            prev = pv(t-1, b, 1) if t > 0 else pv(NT-1, pb_, 1)
            E = [f"v_exp_f32 v{S+i}, v{S+i}" for i in range(16)]
            C = [f"v_cvt_pk_bf16_f32 v{P+i}, v{S+2*i}, v{S+2*i+1}" for i in range(8)]
            extra = [[], [], [], []]
            kv = kv_loads(lb)
            if t == 0:
                extra[0] = kv[0]; extra[1] = kv[1]; extra[2] = kv[2]; extra[3] = kv[3]
            if t == 1:
                extra[0] = kv[4]; extra[1] = kv[5]
            if t == NT-2:
                extra[3] = ["s_waitcnt vmcnt(4)"]
            if b == NB-1 and t == NT-1:
                extra[0] = ["s_sub_u32 s56, s56, 1"]
                extra[3] = ["s_cmp_lg_u32 s56, 0"]
            a(nq[0])
            for l in extra[0]: a(l)
            a(E[0]); a(E[1]); a(E[2]); a(E[3]); a(C[0]); a(C[1])
            a(nq[1])
            for l in extra[1]: a(l)
            a(E[4]); a(E[5]); a(E[6]); a(E[7]); a(C[2]); a(C[3])
            a(prev)
            for l in extra[2]: a(l)
            a(E[8]); a(E[9]); a(E[10]); a(E[11]); a(C[4]); a(C[5])
            a(pv(t, b, 0))
            for l in extra[3]: a(l)
            a(E[12]); a(E[13]); a(E[14]); a(E[15]); a(C[6]); a(C[7])
    a(f"s_cbranch_scc1 {n}_loop")
    a("s_nop 1")
    a(pv(NT-1, NB-1, 1))
    a("s_waitcnt vmcnt(0)")
    stamp(a, 4)
    R = V_R
    X = V_X
    a(f"""
    s_mul_i32 s57, s{S_W}, 6144
    v_add_u32 v{V_T}, s57, v{V_KA}
    s_xor_b32 s58, s{S_W}, 2
    s_mul_i32 s58, s58, 6144
    v_add_u32 v{V_T+1}, s58, v{V_KA}
    s_cmp_eq_u32 s{S_KH}, 0
    s_nop 7
    s_cbranch_scc1 {n}_x0
    """)
    for kh in (1, 0):
        if kh == 0: a.label(f"{n}_x0")
        give = (0, 1) if kh == 1 else (2, 3)
        keep = (2, 3) if kh == 1 else (0, 1)
        for u, t in enumerate(give):
            for q in range(3):
                a(f"ds_write_b128 v{V_T}, a[{Oa(t)+4*q}:{Oa(t)+4*q+3}] offset:{(u*3+q)*1024}")
        for u, t in enumerate(keep):
            for i in range(12):
                a(f"v_accvgpr_read_b32 v{R+12*u+i}, a{Oa(t)+i}")
        if kh == 1: a(f"s_branch {n}_x1")
    a.label(f"{n}_x1")
    a("""
    s_waitcnt lgkmcnt(0)
    s_barrier
    """)
    for u in range(2):
        for q in range(3):
            a(f"ds_read_b128 v[{R+24+12*u+4*q}:{R+24+12*u+4*q+3}], v{V_T+1} offset:{(u*3+q)*1024}")
    a(f"""
    s_mul_i32 s57, s{S_P}, 5
    s_lshl_b32 s58, s{S_HH}, 1
    s_add_u32 s58, s58, s57
    v_add_u32 v{X+6}, s58, v{V_H}
    v_lshlrev_b32 v{X+6}, 15, v{X+6}
    v_lshl_add_u32 v{X+6}, v{V_TOK}, 4, v{X+6}
    s_add_u32 s57, s57, 4
    s_lshl_b32 s57, s57, 15
    s_lshl_b32 s58, s{S_KH}, 1
    s_add_u32 s58, s58, s45
    s_lshl_b32 s58, s58, 9
    s_add_u32 s57, s57, s58
    v_cmp_eq_u32 vcc, 0, v{V_H}
    s_waitcnt lgkmcnt(0)
    """)
    for u in range(2):
        Ru = R + 12*u
        for i in range(12):
            a(f"v_add_f32 v{Ru+i}, v{Ru+i}, v{R+24+12*u+i}")
        a(f"""
        v_mov_b32 v{X}, v{Ru+8}
        v_mov_b32 v{X+1}, v{Ru+8}
        v_add_f32 v{X+3}, abs(v{Ru}), abs(v{Ru+1})
        v_add_f32 v{X+4}, abs(v{Ru+8}), abs(v{Ru+9})
        v_permlane32_swap_b32 v{X}, v{X+1}
        v_rcp_f32 v{X+2}, v{X+1}
        """)
        for i in range(2, 8):
            a(f"v_add_f32 v{X+3}, v{X+3}, abs(v{Ru+i})")
        for i in range(10, 12):
            a(f"v_add_f32 v{X+4}, v{X+4}, abs(v{Ru+i})")
        a(f"""
        v_cndmask_b32 v{X+4}, 0, v{X+4}, vcc
        v_add_f32 v{X+3}, v{X+3}, v{X+4}
        s_mov_b32 s59, 0x7f000000
        v_cmp_ngt_f32 s[60:61], s59, v{X+3}
        s_mov_b32 s59, 0x21800000                   ; 2^-60
        v_cmp_nle_f32 s[62:63], s59, v{X+1}
        s_mov_b32 s59, 0x5d800000                   ; 2^60
        v_cmp_nge_f32 s[64:65], s59, v{X+1}
        """)
        for i in range(12):
            a(f"v_mul_f32 v{Ru+i}, v{Ru+i}, v{X+2}")
        a("""
        s_or_b64 s[60:61], s[60:61], s[62:63]
        s_or_b64 s[60:61], s[60:61], s[64:65]
        """)
        if u == 0: a("s_mov_b64 s[66:67], s[60:61]")
        else: a("s_or_b64 s[66:67], s[66:67], s[60:61]")
        Pk = R + 48 + 8*u
        for i in range(6):
            a(f"v_cvt_pk_bf16_f32 v{Pk+i}, v{Ru+2*i}, v{Ru+2*i+1}")
        a(f"""
        buffer_store_dwordx4 v[{Pk}:{Pk+3}], v{X+6}, s[40:43], s58 offen offset:{u*512} {sc}
        s_mov_b64 exec, s[24:25]
        buffer_store_dwordx2 v[{Pk+4}:{Pk+5}], v{V_K2A}, s[40:43], s57 offen offset:{u*512} {sc}
        s_mov_b64 exec, -1
        """)
    a(f"""
    s_cmp_lg_u64 s[66:67], 0
    s_cselect_b32 s59, 1, 0
    s_cmp_lg_u32 s{S_PASS}, 0
    s_cselect_b32 s59, 0, s59
    v_mov_b32 v{X+4}, s59
    s_lshl_b32 s57, s{S_W}, 2
    s_add_u32 s57, s57, {LDS_FLAG}
    v_mov_b32 v{X+5}, s57
    ds_write_b32 v{X+5}, v{X+4}
    s_waitcnt lgkmcnt(0)
    s_barrier
    v_mov_b32 v{X+5}, {LDS_FLAG}
    ds_read_b128 v[{X+6}:{X+9}], v{X+5}
    s_waitcnt lgkmcnt(0)
    v_or_b32 v{X+6}, v{X+6}, v{X+7}
    v_or_b32 v{X+8}, v{X+8}, v{X+9}
    v_or_b32 v{X+6}, v{X+6}, v{X+8}
    s_nop 0
    v_readfirstlane_b32 s59, v{X+6}
    s_nop 3
    s_cmp_eq_u32 s59, 0
    s_cbranch_scc1 {n}_fin
    """)
    a.c("fallback: exact row maxima over all keys")
    a("""
    s_barrier
    s_mov_b32 s53, s50
    s_mov_b32 s54, s51
    s_mov_b32 s55, s52
    """)
    MX = V_R
    for t in range(NT):
        a(f"v_mov_b32 v{MX+t}, 0xff800000")
    a("s_mov_b32 s56, 32")
    a.label(f"{n}_mxloop")
    load_kv(0, with_v=False)
    a("s_waitcnt vmcnt(0)")
    S = Sb(0)
    for t in range(NT):
        for l in qk(t, 0, 0): a(l)
        a("s_nop 7")
        a("s_nop 3")
        for i in range(0, 16, 2):
            a(f"v_max3_f32 v{MX+t}, v{MX+t}, v{S+i}, v{S+i+1}")
    a("""
    s_sub_u32 s56, s56, 1
    s_cmp_lg_u32 s56, 0
    """)
    a(f"s_cbranch_scc1 {n}_mxloop")
    for t in range(NT):
        a(f"""
        v_mov_b32 v{X}, v{MX+t}
        v_mov_b32 v{X+1}, v{MX+t}
        s_nop 1
        v_permlane32_swap_b32 v{X}, v{X+1}
        v_max_f32 v{MX+t}, v{X}, v{X+1}
        """)
    a(f"""
    s_lshl_b32 s57, s{S_W}, 9
    s_add_u32 s57, s57, {LDS_MX}
    v_lshl_add_u32 v{X}, v{V_TOK}, 2, s57
    """)
    for t in range(NT):
        a(f"ds_write_b32 v{X}, v{MX+t} offset:{t*128}")
    a(f"""
    s_waitcnt lgkmcnt(0)
    s_barrier
    s_xor_b32 s57, s{S_W}, 2
    s_lshl_b32 s57, s57, 9
    s_add_u32 s57, s57, {LDS_MX}
    v_lshl_add_u32 v{X}, v{V_TOK}, 2, s57
    """)
    for t in range(NT):
        a(f"ds_read_b32 v{V_S+t}, v{X} offset:{t*128}")
    a("s_waitcnt lgkmcnt(0)")
    a(f"v_cmp_ne_u32 vcc, 0, v{V_H}")
    for t in range(NT):
        m = X + 1
        a(f"""
        v_max_f32 v{m}, v{MX+t}, v{V_S+t}
        v_sub_f32 v{m}, 0, v{m}                     ; -max
        v_and_b32 v{m+1}, 0xffff0000, v{m}          ; hi
        v_sub_f32 v{m}, v{m}, v{m+1}
        v_and_b32 v{m+2}, 0xffff0000, v{m}          ; mid
        v_sub_f32 v{m}, v{m}, v{m+2}
        v_lshrrev_b32 v{m+1}, 16, v{m+1}
        v_or_b32 v{m+1}, v{m+1}, v{m+2}
        v_lshrrev_b32 v{m}, 16, v{m}                ; (lo, 0)
        v_accvgpr_read_b32 v{m+3}, a{Qf(t)+4}
        v_accvgpr_read_b32 v{m+4}, a{Qf(t)+5}
        v_cndmask_b32 v{m+3}, v{m+3}, v{m+1}, vcc
        v_cndmask_b32 v{m+4}, v{m+4}, v{m}, vcc
        v_accvgpr_write_b32 a{Qf(t)+4}, v{m+3}
        v_accvgpr_write_b32 a{Qf(t)+5}, v{m+4}
        """)
    a(f"""
    s_mov_b32 s{S_PASS}, 1
    s_barrier
    s_branch {n}_main
    """)
    a.label(f"{n}_fin")

def gen_attn2(a, name):
    kernel_header(a, name)
    n = name
    a(f"""
    s_cmp_ge_u32 s2, 256
    s_cbranch_scc1 {n}_end
    s_load_dwordx2 s[6:7], s[0:1], 64
    """)
    stamp(a, 0)
    a(f"""
    v_lshrrev_b32 v{V_T}, 6, v0
    s_nop 0
    v_readfirstlane_b32 s{S_W}, v{V_T}
    s_waitcnt lgkmcnt(0)
    """)
    attn_phase(a, n, 6, ws.Q, ws.K, ws.V, ws.O)
    stamp(a, 5)
    if ASM.STAMPS: a("s_mov_b32 s92, 2")
    stamp_dump(a, 5, "s92")
    a.label(f"{n}_end")
    a("s_endpgm")
    return kernel_desc(name, 144, NA, 102 if ASM.STAMPS else 72)
```

```python
from asm import *
import os as _os
if _os.environ.get('MEGA'):
    from layout2 import *
else:
    from layout import *
import os
DBGP = os.environ.get('DBGP')

NWG_PREP = 396
LDS_PREP = 40960

def dbg_end(a, name, k):
    a(f"""
    s_waitcnt vmcnt(0)
    s_memrealtime s[48:49]
    s_load_dwordx2 s[52:53], s[0:1], 56
    s_waitcnt lgkmcnt(0)
    s_add_u32 s52, s52, {512*11 + 48 + 4*k}
    s_addc_u32 s53, s53, 0
    v_mov_b32 v4, s48
    v_mov_b32 v8, 0
    v_cmp_eq_u32 vcc, 0, v0
    s_and_saveexec_b64 s[54:55], vcc
    s_cbranch_execz {name}_end
    global_atomic_umax v8, v4, s[52:53]
    """)

def gen_prep(a, name):
    kernel_header(a, name)
    a(f"""
    s_cmp_ge_u32 s2, {NWG_PREP}
    s_cbranch_scc1 {name}_end
    {"s_memrealtime s[40:41]" if DBGP else ""}
    {"s_memtime s[42:43]" if DBGP else ""}
    s_load_dwordx4 s[4:7], s[0:1], 0        ; x, wqkv
    s_load_dwordx2 s[8:9], s[0:1], 16       ; wo
    s_load_dwordx4 s[12:15], s[0:1], 32     ; w1, w2
    s_load_dwordx2 s[10:11], s[0:1], 64     ; ws
    v_and_b32 v1, 63, v0                    ; lane
    v_lshrrev_b32 v2, 6, v0                 ; wave
    s_nop 0
    v_readfirstlane_b32 s16, v2             ; s16 = wave
    s_cmp_lt_u32 s2, 116
    s_cbranch_scc1 {name}_A
    s_cmp_lt_u32 s2, 268
    s_cbranch_scc1 {name}_B
    s_branch {name}_C
    """)
    a.label(f"{name}_A")
    a("""
    v_and_b32 v3, 31, v0                    ; qd
    v_lshrrev_b32 v4, 5, v0                 ; r0
    v_lshrrev_b32 v5, 3, v3                 ; sigma
    v_and_b32 v6, 7, v3                     ; Q
    s_waitcnt lgkmcnt(0)
    """)
    if DBGP: a("s_memrealtime s[44:45]")
    a("s_cmp_lt_u32 s2, 60")
    a(f"s_cbranch_scc0 {name}_A_w1")
    a("""
    s_lshr_b32 s17, s2, 2                   ; nt
    s_and_b32 s18, s2, 3                    ; kq
    s_movk_i32 s19, 1920
    """)
    srd(a, 20, 6, 0, 640 * 1920 * 2)
    srd(a, 24, 10, ws.WQKV, ws.WQKV_SZ)
    srd(a, 28, 10, ws.CSQ, ws.CSQ_SZ)
    a("""
    s_lshl_b32 s33, s17, 2
    v_add_u32 v7, s33, v5                   ; slice
    s_cmp_ge_u32 s17, 10
    """)
    a(f"s_cbranch_scc1 {name}_A_vcol")
    a("""
    v_lshrrev_b32 v8, 2, v6
    v_lshlrev_b32 v8, 1, v8
    v_and_b32 v9, 1, v6
    v_add_u32 v8, v8, v9                    ; cidx
    v_bfe_u32 v9, v6, 1, 1                  ; eh
    v_cmp_le_u32 vcc, 20, v7
    s_nop 1
    v_cndmask_b32 v10, 0, 1, vcc            ; sec
    v_mul_u32_u24 v11, 20, v10
    v_sub_u32 v11, v7, v11                  ; slice % 20
    v_lshl_add_u32 v11, v11, 2, v8          ; chunk
    v_mul_u32_u24 v12, 205, v11
    v_lshrrev_b32 v12, 10, v12              ; p
    v_mul_u32_u24 v13, 5, v12
    v_sub_u32 v13, v11, v13                 ; r
    v_lshrrev_b32 v14, 1, v13               ; r>>1
    v_and_b32 v15, 1, v13
    v_lshlrev_b32 v15, 3, v15               ; 8*(r&1)
    v_lshl_add_u32 v15, v9, 2, v15          ; d = 8*(r&1)+4*eh
    v_cmp_eq_u32 vcc, 4, v13
    s_nop 1
    v_cndmask_b32 v14, v14, v9, vcc
    v_mov_b32 v16, 16
    v_cndmask_b32 v15, v15, v16, vcc        ; d
    v_lshl_add_u32 v14, v12, 1, v14         ; head
    v_mul_u32_u24 v14, 20, v14
    v_add_u32 v14, v14, v15
    v_mul_u32_u24 v10, 640, v10
    v_add_u32 v8, v14, v10                  ; col
    """)
    a(f"s_branch {name}_A_go")
    a.label(f"{name}_A_vcol")
    a("""
    v_lshlrev_b32 v8, 5, v7
    v_lshl_add_u32 v8, v6, 2, v8
    """)
    a(f"s_branch {name}_A_go")
    a.label(f"{name}_A_w1")
    a("""
    s_sub_u32 s33, s2, 60
    s_lshr_b32 s17, s33, 2
    s_and_b32 s18, s33, 3
    s_movk_i32 s19, 1728
    """)
    srd(a, 20, 12, 0, 640 * 1728 * 2)
    srd(a, 24, 10, ws.W1, ws.W1_SZ)
    srd(a, 28, 10, ws.CS1, ws.CS1_SZ)
    a("""
    s_lshl_b32 s33, s17, 2
    v_add_u32 v7, s33, v5                   ; slice
    v_lshlrev_b32 v8, 5, v7
    v_lshrrev_b32 v9, 2, v6
    v_lshl_add_u32 v8, v9, 4, v8            ; +16*(Q>>2)
    v_and_b32 v9, 1, v6
    v_lshl_add_u32 v8, v9, 3, v8            ; +8*(Q&1)
    v_bfe_u32 v9, v6, 1, 1
    v_lshl_add_u32 v8, v9, 2, v8            ; +4*((Q>>1)&1)
    """)
    a.label(f"{name}_A_go")
    a("""
    v_mul_lo_u32 v9, v4, s19
    v_add_u32 v9, v9, v8
    v_lshlrev_b32 v9, 1, v9                 ; voffset
    s_mul_i32 s34, s18, 160
    s_mul_i32 s34, s34, s19
    s_lshl_b32 s34, s34, 1                  ; soffset
    s_lshl_b32 s35, s19, 4                  ; 8 rows * N * 2
    """)
    for p in range(20):
        a(f"buffer_load_dwordx2 v[{20+2*p}:{21+2*p}], v9, s[20:23], s34 offen")
        if p < 19: a("s_add_u32 s34, s34, s35")
    a("v_lshlrev_b32 v10, 3, v0")
    for p in range(20):
        a(f"s_waitcnt vmcnt({19-p})")
        a(f"ds_write_b64 v10, v[{20+2*p}:{21+2*p}] offset:{p*2048}")
    if DBGP: a("s_memrealtime s[46:47]")
    a("""
    v_lshrrev_b32 v11, 4, v1                ; G
    v_bfe_u32 v12, v1, 2, 2                 ; r
    v_and_b32 v13, 3, v1                    ; c'
    v_lshrrev_b32 v14, 1, v11               ; h
    v_lshl_add_u32 v14, v14, 3, v12         ; 8h + r
    v_lshlrev_b32 v14, 8, v14               ; *256
    v_and_b32 v15, 1, v11
    v_lshl_add_u32 v15, v15, 2, v13         ; 4*(G&1)+c'
    v_lshl_add_u32 v15, v2, 3, v15          ; + 8*w
    v_lshl_add_u32 v14, v15, 3, v14         ; addr
    v_mov_b32 v16, 0x3f803f80
    v_mov_b32 v17, 0x3f803f80
    v_mov_b32 v18, 0x3f803f80
    v_mov_b32 v19, 0x3f803f80
    s_waitcnt lgkmcnt(0)
    s_barrier
    """)
    for ks in range(10):
        for u in range(2):
            a(f"ds_read_b64_tr_b16 v[{20+4*ks+2*u}:{21+4*ks+2*u}], v14 offset:{ks*4096+u*1024}")
    a("""
    s_lshl_b32 s33, s17, 2
    s_add_u32 s33, s33, s16
    s_mul_i32 s34, s33, 40
    s_mul_i32 s35, s18, 10
    s_add_u32 s34, s34, s35
    s_lshl_b32 s34, s34, 10                 ; soffset
    v_lshlrev_b32 v10, 4, v1
    """)
    for ks in range(10):
        a(f"s_waitcnt lgkmcnt({min(15, 18-2*ks)})" if ks < 9 else "s_waitcnt lgkmcnt(0)")
        a(f"buffer_store_dwordx4 v[{20+4*ks}:{23+4*ks}], v10, s[24:27], s34 offen")
        c = "0" if ks == 0 else "v[64:79]"
        a(f"v_mfma_f32_32x32x16_bf16 v[64:79], v[16:19], v[{20+4*ks}:{23+4*ks}], {c}")
        if ks < 9: a("s_add_u32 s34, s34, 1024")
    a("""
    v_and_b32 v11, 31, v1
    s_lshl_b32 s33, s33, 5
    v_add_u32 v11, s33, v11
    v_lshlrev_b32 v11, 4, v11
    s_lshl_b32 s35, s18, 2
    s_nop 15
    buffer_store_dword v64, v11, s[28:31], s35 offen
    """)
    if DBGP:
        dbg_end(a, name, 0)
    a("s_endpgm")
    a.label(f"{name}_B")
    a("""
    s_sub_u32 s33, s2, 116
    s_waitcnt lgkmcnt(0)
    s_cmp_lt_u32 s33, 112
    """)
    a(f"s_cbranch_scc0 {name}_B_wo")
    a("""
    s_mul_i32 s17, s33, 4682
    s_lshr_b32 s17, s17, 16                 ; j
    s_mul_i32 s18, s17, 14
    s_sub_u32 s18, s33, s18                 ; kr
    s_movk_i32 s19, 54
    """)
    srd(a, 20, 14, 0, 1728 * 640 * 2)
    srd(a, 24, 10, ws.W2, ws.W2_SZ)
    a("s_mov_b32 s36, 0")
    a(f"s_branch {name}_B_go")
    a.label(f"{name}_B_wo")
    a("""
    s_sub_u32 s33, s33, 112
    s_mul_i32 s17, s33, 205
    s_lshr_b32 s17, s17, 10                 ; j
    s_mul_i32 s18, s17, 5
    s_sub_u32 s18, s33, s18                 ; kr
    s_movk_i32 s19, 20
    """)
    srd(a, 20, 8, 0, 640 * 640 * 2)
    srd(a, 24, 10, ws.WO, ws.WO_SZ)
    a("s_mov_b32 s36, 1")
    a.label(f"{name}_B_go")
    a("""
    s_lshl_b32 s34, s18, 7                  ; 128*kr
    s_mul_i32 s35, s17, 160
    """)
    for p in range(5):
        a(f"""
        v_add_u32 v3, {256*p}, v0               ; i
        v_mul_u32_u24 v4, 6554, v3
        v_lshrrev_b32 v4, 16, v4                ; row
        v_mul_u32_u24 v5, 10, v4
        v_sub_u32 v5, v3, v5                    ; pc
        v_add_u32 v6, s34, v4                   ; k
        s_cmp_eq_u32 s36, 0
        s_cbranch_scc1 {name}_B_row{p}
        v_lshrrev_b32 v7, 3, v6                 ; c
        v_and_b32 v8, 7, v6                     ; e
        v_mul_u32_u24 v9, 205, v7
        v_lshrrev_b32 v9, 10, v9                ; p
        v_mul_u32_u24 v10, 5, v9
        v_sub_u32 v10, v7, v10                  ; r
        v_lshrrev_b32 v11, 1, v10
        v_and_b32 v12, 1, v10
        v_lshl_add_u32 v12, v12, 3, v8          ; d (r<4)
        v_lshrrev_b32 v13, 2, v8
        v_and_b32 v14, 3, v8
        v_add_u32 v14, 16, v14
        v_cmp_eq_u32 vcc, 4, v10
        s_nop 1
        v_cndmask_b32 v11, v11, v13, vcc
        v_cndmask_b32 v12, v12, v14, vcc
        v_lshl_add_u32 v11, v9, 1, v11          ; head
        v_mul_u32_u24 v11, 20, v11
        v_add_u32 v6, v11, v12
        """)
        a.label(f"{name}_B_row{p}")
        a(f"""
        v_mul_u32_u24 v6, 1280, v6
        v_lshl_add_u32 v6, v5, 4, v6
        buffer_load_dwordx4 v[{20+4*p}:{23+4*p}], v6, s[20:23], s35 offen
        """)
    a("v_lshlrev_b32 v10, 4, v0")
    for p in range(5):
        a(f"s_waitcnt vmcnt({4-p})")
        a(f"ds_write_b128 v10, v[{20+4*p}:{23+4*p}] offset:{p*4096}")
    a("""
    v_lshrrev_b32 v11, 4, v1                ; kg
    v_bfe_u32 v12, v1, 2, 2                 ; r
    v_and_b32 v13, 3, v1                    ; c'
    v_lshl_add_u32 v12, v11, 3, v12         ; 8kg + r
    v_lshl_add_u32 v12, v2, 5, v12          ; + 32 w
    v_mul_u32_u24 v12, 160, v12
    v_mul_u32_u24 v13, 40, v13
    v_add_u32 v14, v12, v13
    s_lshl_b32 s33, s18, 2
    s_add_u32 s33, s33, s16                 ; kstep
    s_waitcnt lgkmcnt(0)
    s_barrier
    s_cmp_ge_u32 s33, s19
    """)
    a(f"s_cbranch_scc1 {name}_end")
    for ft in range(5):
        for u in range(2):
            a(f"ds_read_b64_tr_b16 v[{20+4*ft+2*u}:{21+4*ft+2*u}], v14 offset:{u*640+ft*8}")
    a("""
    s_mul_i32 s34, s17, s19
    s_add_u32 s34, s34, s33
    s_mul_i32 s34, s34, 5120
    v_lshlrev_b32 v10, 4, v1
    """)
    for ft in range(5):
        a(f"s_waitcnt lgkmcnt({8-2*ft})")
        a(f"buffer_store_dwordx4 v[{20+4*ft}:{23+4*ft}], v10, s[24:27], s34 offen")
        if ft < 4: a("s_add_u32 s34, s34, 1024")
    if DBGP: dbg_end(a, name, 1)
    a("s_endpgm")
    a.label(f"{name}_C")
    if _os.environ.get('MEGA'):
        a(f"""
        s_cmp_lg_u32 s2, 268
        s_cbranch_scc1 {name}_C_go
        s_waitcnt lgkmcnt(0)
        """)
        srd(a, 20, 10, ws.CNT, ws.CNT_SZ)
        a("""
        v_mov_b32 v20, 0
        v_mov_b32 v21, 0
        v_mov_b32 v22, 0
        v_mov_b32 v23, 0
        v_lshlrev_b32 v5, 4, v0
        """)
        for i in range((ws.CNT_SZ + 4095) // 4096):
            a(f"buffer_store_dwordx4 v[20:23], v5, s[20:23], 0 offen" if i == 0 else f"s_movk_i32 s36, {i*4096}\nbuffer_store_dwordx4 v[20:23], v5, s[20:23], s36 offen")
        a.label(f"{name}_C_go")
    a("""
    s_sub_u32 s33, s2, 268
    s_lshl_b32 s33, s33, 4
    s_lshl_b32 s34, s16, 2
    s_add_u32 s33, s33, s34
    v_lshrrev_b32 v3, 4, v1
    v_add_u32 v3, s33, v3                   ; row
    v_and_b32 v4, 15, v1                    ; sub
    v_mul_u32_u24 v5, 1280, v3
    v_lshl_add_u32 v5, v4, 4, v5
    s_waitcnt lgkmcnt(0)
    """)
    srd(a, 20, 4, 0, M * D * 2)
    srd(a, 24, 10, ws.ST0, ws.ST0_SZ)
    for i in range(5):
        a(f"buffer_load_dwordx4 v[{20+4*i}:{23+4*i}], v5, s[20:23], 0 offen offset:{256*i}")
    a("""
    v_mov_b32 v6, 0
    v_mov_b32 v7, 0
    """)
    for i in range(5):
        a(f"s_waitcnt vmcnt({4-i})")
        for q in range(4):
            r = 20 + 4*i + q
            a(f"""
            v_lshlrev_b32 v8, 16, v{r}
            v_and_b32 v9, 0xffff0000, v{r}
            v_add_f32 v6, v6, v8
            v_fmac_f32 v7, v8, v8
            v_add_f32 v6, v6, v9
            v_fmac_f32 v7, v9, v9
            """)
    for rot in (8, 4, 2, 1):
        a(f"""
        s_nop 1
        v_add_f32_dpp v6, v6, v6 row_ror:{rot} row_mask:0xf bank_mask:0xf
        v_add_f32_dpp v7, v7, v7 row_ror:{rot} row_mask:0xf bank_mask:0xf
        """)
    a("""
    v_cmp_eq_u32 vcc, 0, v4
    s_nop 1
    v_cndmask_b32 v12, 0, v6, vcc
    v_cndmask_b32 v13, 0, v7, vcc
    v_mov_b32 v14, 0
    v_mov_b32 v15, 0
    v_lshlrev_b32 v10, 6, v3
    v_lshl_add_u32 v10, v4, 4, v10
    v_mov_b32 v11, 0x7ffffff0
    v_cmp_gt_u32 vcc, 4, v4
    s_nop 1
    v_cndmask_b32 v10, v11, v10, vcc
    buffer_store_dwordx4 v[12:15], v10, s[24:27], 0 offen
    """)
    if DBGP: dbg_end(a, name, 2)
    a.label(f"{name}_end")
    a("s_endpgm")
    return kernel_desc(name, 80, 0, 64)
```

```python
from layout import M, D, H, DH, F, EPS, al, QK1_SZ, QK2_SZ, chunk_to_hd, rho_to_ce, qkv_col, w1_col, res_feat, wo_row, v_rho
class WS: pass
ws = WS()
_off = 0
def _alloc(name, size):
    global _off
    setattr(ws, name, _off); setattr(ws, name + "_SZ", size)
    _off = al(_off + size)
_alloc("WQKV", 60 * 40 * 1024)
_alloc("W1",   54 * 40 * 1024)
_alloc("WO",   8 * 20 * 5120)
_alloc("W2",   8 * 54 * 5120)
_alloc("CSQ",  1920 * 16)
_alloc("CS1",  1728 * 16)
_alloc("ST0",  M * 64)
NCNT = 72
_alloc("CNT",  2 * NCNT * 128)
L0 = _off
_alloc("Q", QK1_SZ + QK2_SZ)
_alloc("K", QK1_SZ + QK2_SZ)
_alloc("V", 32 * 64 * 1280)
_alloc("O", 80 * M * 16)
_alloc("HH", 216 * M * 16)
_alloc("XA", M * D * 2)
_alloc("XB", M * D * 2)
_alloc("STA", M * 64)
_alloc("STB", M * 64)
LAYER_SZ = _off - L0
WS_USED = _off + LAYER_SZ
C_QKV, C_ATT, C_WO, C_UP, C_DN = 0, 16, 24, 40, 56
if __name__ == "__main__":
    for k, v in vars(ws).items(): print(k, v)
    print(LAYER_SZ, WS_USED)
```

```python
import os, math, struct
from asm import *
import asm as ASM
from layout2 import *
import k_attn2

EXP = os.environ.get("EXP", "")
SC = "sc1"
SCL = os.environ.get("SCL", "sc1")
SCW = os.environ.get("SCW", "sc1")
def f32hex(x): return "0x%08x" % struct.unpack("<I", struct.pack("<f", x))[0]
QSCALE = (DH ** -0.5) * math.log2(math.e)
LOG2E = math.log2(math.e)

S_X = 12; S_JX = 13; S_L = 14; S_LOFF = 15; S_W = 16
S_CL = 97
S_CB = 98
SPIN_MAX = 1 << 18

def srd_s(a, d, ptr, off, size):
    if isinstance(off, tuple):
        a(f"s_add_u32 s{d}, s{S_LOFF}, {off[1]}")
        a(f"s_add_u32 s{d}, s{d}, s{ptr}")
        a(f"s_addc_u32 s{d+1}, s{ptr+1}, 0")
        a(f"s_and_b32 s{d+1}, s{d+1}, 0xffff")
        a(f"s_mov_b32 s{d+2}, {size}")
        a(f"s_mov_b32 s{d+3}, 0x20000")
    else:
        srd(a, d, ptr, off, size)

def srd_sel(a, d, size, first_ptr, first_off, ws_off):
    a(f"""
    s_add_u32 s{d}, s6, {ws_off}
    s_addc_u32 s{d+1}, s7, 0
    s_add_u32 s100, s{first_ptr}, {first_off}
    s_addc_u32 s101, s{first_ptr+1}, 0
    s_cmp_eq_u32 s{S_L}, 0
    s_cselect_b32 s{d}, s100, s{d}
    s_cselect_b32 s{d+1}, s101, s{d+1}
    s_and_b32 s{d+1}, s{d+1}, 0xffff
    s_mov_b32 s{d+2}, {size}
    s_mov_b32 s{d+3}, 0x20000
    """)

_uid = [0]
PH = [0]
STAMP_OFF = 60 << 20
def stamp(a, i):
    if not ASM.STAMPS: return
    _uid[0] += 1; u = _uid[0]
    k = PH[0] * 8 + i
    a(f"""
    s_cmp_lg_u32 s{S_W}, 0
    s_cbranch_scc1 st_skip_{u}
    {"s_memtime" if os.environ.get("STAMPCLK") else "s_memrealtime"} s[94:95]
    s_lshl_b32 s93, s{S_L}, 6
    s_add_u32 s93, s93, {k}
    s_lshl_b32 s93, s93, 11
    s_lshl_b32 s92, s2, 3
    s_add_u32 s93, s93, s92
    s_add_u32 s93, s93, {STAMP_OFF}
    s_waitcnt lgkmcnt(0)
    v_mov_b32 v252, s94
    v_mov_b32 v253, s95
    v_mov_b32 v254, s93
    global_store_dwordx2 v254, v[252:253], s[6:7]
    """)
    a.label(f"st_skip_{u}")

def arrive(a, idx_sgpr, first, vt=250):
    _uid[0] += 1; u = _uid[0]
    a(f"""
    s_waitcnt vmcnt(0) lgkmcnt(0)
    s_barrier
    s_cmp_lg_u32 s{S_W}, 0
    s_cbranch_scc1 arr_done_{u}
    s_add_u32 s100, {idx_sgpr}, {first}
    s_lshl_b32 s100, s100, 7
    s_add_u32 s100, s100, s{S_CL}
    v_mov_b32 v{vt}, s100
    v_mov_b32 v{vt+1}, 1
    s_mov_b64 exec, 1
    global_atomic_add v{vt}, v{vt+1}, s[{S_CB}:{S_CB+1}] sc1
    s_mov_b64 exec, -1
    """)
    a.label(f"arr_done_{u}")

def wait(a, idx_sgpr, first, nlanes, expected, prev_layer=False, vt=250):
    _uid[0] += 1; u = _uid[0]
    a(f"""
    s_cmp_lg_u32 s{S_W}, 0
    s_cbranch_scc1 wt_done_{u}
    s_add_u32 s100, {idx_sgpr}, {first}
    s_lshl_b32 s100, s100, 7
    s_add_u32 s100, s100, s{S_CL}
    """)
    if prev_layer: a(f"s_sub_u32 s100, s100, {NCNT*128}")
    a(f"""
    v_and_b32 v{vt}, {nlanes-1}, v0
    v_lshlrev_b32 v{vt}, 7, v{vt}
    v_add_u32 v{vt}, s100, v{vt}
    s_mov_b32 s101, 0
    """)
    a.label(f"wt_poll_{u}")
    a(f"""
    global_load_dword v{vt+1}, v{vt}, s[{S_CB}:{S_CB+1}] sc1
    s_add_u32 s101, s101, 1
    s_waitcnt vmcnt(0)
    v_cmp_le_u32 vcc, {expected}, v{vt+1}
    s_cmp_ge_u32 s101, {SPIN_MAX}
    s_cbranch_scc1 wt_done_{u}
    s_cmp_eq_u64 vcc, -1
    s_cbranch_scc1 wt_done_{u}
    s_sleep 1
    s_branch wt_poll_{u}
    """)
    a.label(f"wt_done_{u}")
    a("s_barrier")

LDS_X = 9 * 16384
LDS_MISC = LDS_X
class LN:
    V_LANE = 1; V_TOK = 2; V_H = 3; V_DE = 4; V_DO = 5; V_WOFF = 6
    V_R = 8; V_T = 20; V_XF = 32; V_ACC = 80; V_E = 144
    S_MB = 17; S_NB = 18; S_SL = 19
PW = 5

def ln_ids(a, mode):
    L = LN
    a(f"""
    s_and_b32 s20, s{S_X}, 3
    s_lshl_b32 s20, s20, 2
    s_and_b32 s21, s{S_JX}, 3
    s_add_u32 s{L.S_MB}, s20, s21
    s_lshr_b32 s20, s{S_X}, 2
    s_lshl_b32 s20, s20, 3
    s_lshr_b32 s21, s{S_JX}, 2
    s_add_u32 s{L.S_NB}, s20, s21
    """)

def ln_phase(a, mode, base, wait_fn):
    L = LN
    V_LANE, V_TOK, V_H, V_DE, V_DO, V_WOFF, V_R, V_T, V_XF, V_ACC, V_E = (L.V_LANE, L.V_TOK, L.V_H, L.V_DE, L.V_DO, L.V_WOFF, L.V_R, L.V_T, L.V_XF, L.V_ACC, L.V_E)
    S_MB, S_NB, S_SL = L.S_MB, L.S_NB, L.S_SL
    NB = 15 if mode == "qkv" else 14
    ln_ids(a, mode)
    a(f"""
    s_cmp_ge_u32 s{S_NB}, {NB}
    s_cbranch_scc1 {base}_idle
    s_lshl_b32 s{S_SL}, s{S_NB}, 2
    s_add_u32 s{S_SL}, s{S_SL}, s{S_W}          ; slice
    v_and_b32 v{V_LANE}, 63, v0
    v_and_b32 v{V_TOK}, 31, v0
    v_lshlrev_b32 v{V_WOFF}, 4, v{V_LANE}
    """)
    if mode == "qkv": wt, wtsz, cs, cssz = ws.WQKV, ws.WQKV_SZ, ws.CSQ, ws.CSQ_SZ
    else: wt, wtsz, cs, cssz = ws.W1, ws.W1_SZ, ws.CS1, ws.CS1_SZ
    srd(a, 24, 6, wt, wtsz)
    a(f"s_mul_i32 s39, s{S_SL}, 40960")
    ops = []
    def w_bundle(n):
        g, i = divmod(n, 4)
        pre = [f"s_add_u32 s41, s39, {g*4096}"] if i == 0 else []
        return (pre + [f"buffer_load_dwordx4 a[{4*n}:{4*n+3}], v{V_WOFF}, s[24:27], s41 offen offset:{i*1024} {SCW}"], ("W", g))
    def d_bundle(g, j):
        slot = g % 9
        return ([f"s_add_u32 s42, s38, {j*10240 + g*128}", f"s_add_u32 m0, s40, {slot*16384 + j*1024}", "s_nop 0",
                 f"buffer_load_dwordx4 v{V_DE if j%2==0 else V_DO}, s[20:23], s42 offen {SCL} lds"], ("D", g))
    def emit(b):
        for l in b[0]: a(l)
        ops.append(b[1])
    for n in range(4*PW): emit(w_bundle(n))
    srd(a, 32, 6, cs, cssz)
    a(f"""
    s_lshl_b32 s37, s{S_SL}, 5
    v_add_u32 v{V_T+1}, s37, v{V_TOK}
    v_lshlrev_b32 v{V_T+1}, 4, v{V_T+1}
    buffer_load_dwordx4 v[{V_E+8}:{V_E+11}], v{V_T+1}, s[32:35], 0 offen {SCW}
    v_bfe_u32 v{V_H}, v0, 5, 1
    v_lshrrev_b32 v{V_T}, 3, v{V_LANE}
    v_mul_u32_u24 v{V_T}, 1280, v{V_T}
    v_and_b32 v{V_T+1}, 7, v{V_LANE}
    v_lshrrev_b32 v{V_T+2}, 4, v{V_LANE}
    v_xor_b32 v{V_T+1}, v{V_T+1}, v{V_T+2}
    v_lshl_add_u32 v{V_DE}, v{V_T+1}, 4, v{V_T}
    v_xor_b32 v{V_DO}, 64, v{V_DE}
    v_bfe_u32 v{V_T}, v{V_TOK}, 1, 3
    v_lshlrev_b32 v{V_T+1}, 7, v{V_TOK}
    """)
    ops.append("C")
    for sp in range(4):
        a(f"""
        v_or_b32 v{V_T+2}, {2*sp}, v{V_H}
        v_xor_b32 v{V_T+2}, v{V_T+2}, v{V_T}
        v_lshl_add_u32 v{V_R+sp}, v{V_T+2}, 4, v{V_T+1}
        v_add_u32 v{V_R+4+sp}, 0x10000, v{V_R+sp}
        v_add_u32 v{V_R+8+sp}, 0x20000, v{V_R+sp}
        """)
    if mode == "qkv":
        srd_sel(a, 20, M*D*2, 4, 0, L0 + (ws.XB - L0))
        srd_sel(a, 28, M*64, 6, ws.ST0, ws.STB)
    else:
        srd_s(a, 20, 6, ('L', ws.XA), M*D*2)
        srd_s(a, 28, 6, ('L', ws.STA), M*64)
    a(f"""
    s_lshl_b32 s36, s{S_MB}, 7
    s_lshl_b32 s37, s{S_W}, 5
    s_add_u32 s36, s36, s37
    v_add_u32 v{V_T}, s36, v{V_TOK}
    v_lshlrev_b32 v{V_T}, 6, v{V_T}
    v_lshl_add_u32 v{V_T}, v{V_H}, 5, v{V_T}
    s_mul_i32 s38, s36, 1280
    s_lshl_b32 s40, s{S_W}, 12
    """)
    stamp(a, 1)
    wait_fn()
    stamp(a, 2)
    for j in range(4): emit(d_bundle(0, j))
    a(f"""
    buffer_load_dwordx4 v[{V_E}:{V_E+3}], v{V_T}, s[28:31], 0 offen {SCL}
    buffer_load_dwordx4 v[{V_E+4}:{V_E+7}], v{V_T}, s[28:31], 0 offen offset:16 {SCL}
    """)
    ops += ["S", "S"]
    for j in range(4): emit(d_bundle(1, j))
    a(f"s_waitcnt vmcnt(4)")
    e = V_E
    a(f"""
    v_add_f32 v{e}, v{e}, v{e+2}
    v_add_f32 v{e+1}, v{e+1}, v{e+3}
    v_add_f32 v{e+4}, v{e+4}, v{e+6}
    v_add_f32 v{e+5}, v{e+5}, v{e+7}
    v_add_f32 v{e}, v{e}, v{e+4}
    v_add_f32 v{e+1}, v{e+1}, v{e+5}
    v_add_f32 v{e+8}, v{e+8}, v{e+9}
    v_add_f32 v{e+10}, v{e+10}, v{e+11}
    v_mov_b32 v{e+2}, v{e}
    v_mov_b32 v{e+3}, v{e+1}
    v_add_f32 v{e+12}, v{e+8}, v{e+10}
    s_nop 0
    v_permlane32_swap_b32 v{e}, v{e+2}
    v_permlane32_swap_b32 v{e+1}, v{e+3}
    v_add_f32 v{e}, v{e}, v{e+2}
    v_add_f32 v{e+1}, v{e+1}, v{e+3}
    v_mul_f32 v{e}, {f32hex(1.0/D)}, v{e}       ; mean
    v_mul_f32 v{e+1}, {f32hex(1.0/D)}, v{e+1}
    v_fma_f32 v{e+1}, -v{e}, v{e}, v{e+1}       ; var
    v_max_f32 v{e+1}, 0, v{e+1}
    v_add_f32 v{e+1}, {f32hex(EPS)}, v{e+1}
    v_rsq_f32 v{e+1}, v{e+1}                    ; rstd
    s_lshl_b32 s43, s{S_W}, 7
    v_lshl_add_u32 v{e+4}, v{V_TOK}, 2, s43     ; (32w+tok)*4
    v_mul_f32 v{e+2}, v{e}, v{e+1}
    v_sub_f32 v{e+2}, 0, v{e+2}
    v_add_u32 v{e+4}, {LDS_MISC}, v{e+4}
    ds_write_b32 v{e+4}, v{e+1}
    ds_write_b32 v{e+4}, v{e+2} offset:512
    ds_write_b32 v{e+4}, v{e+12} offset:1024
    s_waitcnt lgkmcnt(0)
    s_barrier
    """)
    stamp(a, 3)
    forms = ["ct", "c"] if mode == "qkv" else ["ct"]
    if mode == "qkv":
        a(f"s_cmp_ge_u32 s{S_NB}, 10")
        a(f"s_cbranch_scc1 {base}_loop_c")
    saved = list(ops)
    for form in forms:
        ops[:] = list(saved)
        a.label(f"{base}_loop_{form}")
        def wait_group(g):
            last = max(i for i, o in enumerate(ops) if o == ("D", g) or o == ("W", g))
            a(f"s_waitcnt vmcnt({len(ops) - 1 - last})")
        def read(n, t):
            g = n >> 2; sp = n & 3; slot = g % 9
            q = slot >> 2; so = (slot & 3) * 16384
            buf = V_XF + 16 * (n % 3)
            a(f"ds_read_b128 v[{buf+4*t}:{buf+4*t+3}], v{V_R+4*q+sp} offset:{so + t*4096}")
        for t in range(4): read(0, t)
        for t in range(4): read(1, t)
        pending = []
        for g in range(2, 10):
            if g >= PW: pending += [w_bundle(4*g + i) for i in range(4)]
            pending += [d_bundle(g, j) for j in range(4)]
        for n in range(40):
            if n + 2 < 40 and (n + 2) % 4 == 0:
                wait_group((n + 2) >> 2)
                a("s_barrier")
            a(f"s_waitcnt lgkmcnt({4 if n + 1 < 40 else 0})")
            buf = V_XF + 16 * (n % 3)
            for t in range(4):
                acc = f"v[{V_ACC+16*t}:{V_ACC+16*t+15}]"
                c = "0" if n == 0 else acc
                wf = f"a[{4*n}:{4*n+3}]"; xf = f"v[{buf+4*t}:{buf+4*t+3}]"
                if form == "ct": a(f"v_mfma_f32_32x32x16_bf16 {acc}, {wf}, {xf}, {c}")
                else: a(f"v_mfma_f32_32x32x16_bf16 {acc}, {xf}, {wf}, {c}")
                if n + 2 < 40: read(n + 2, t)
                if (t in (0, 2) or n < 4) and pending: emit(pending.pop(0))
        assert not pending
        stamp(a, 4)
        if form == "ct": ln_epilogue_ct(a, mode)
        else: ln_epilogue_v(a)
        if form != forms[-1]: a(f"s_branch {base}_idle")
    a.label(f"{base}_idle")

def ln_epilogue_ct(a, mode):
    L = LN
    V_TOK, V_H, V_T, V_ACC, e = L.V_TOK, L.V_H, L.V_T, L.V_ACC, L.V_E
    S_MB, S_SL = L.S_MB, L.S_SL
    a(f"""
    v_lshlrev_b32 v{V_T}, 2, v{V_TOK}
    v_add_u32 v{V_T}, {LDS_MISC}, v{V_T}
    s_lshl_b32 s43, s{S_W}, 7
    v_lshlrev_b32 v{V_T+1}, 4, v{V_H}
    v_add_u32 v{V_T+1}, s43, v{V_T+1}
    v_add_u32 v{V_T+1}, {LDS_MISC+1024}, v{V_T+1}
    """)
    for t in range(4):
        a(f"ds_read_b32 v{e+2*t}, v{V_T} offset:{t*128}")
        a(f"ds_read_b32 v{e+2*t+1}, v{V_T} offset:{512+t*128}")
    for jj in range(4):
        a(f"ds_read_b128 v[{e+8+4*jj}:{e+11+4*jj}], v{V_T+1} offset:{jj*32}")
    CS = e + 8
    if mode == "qkv":
        a(f"""
        s_cmp_ge_u32 s{S_SL}, 20
        s_mov_b32 s44, {ws.Q}
        s_cselect_b32 s44, {ws.K}, s44
        s_cselect_b32 s45, 20, 0
        s_cselect_b32 s46, 1.0, {f32hex(QSCALE)}
        s_add_u32 s44, s44, s{S_LOFF}
        s_add_u32 s48, s6, s44
        s_addc_u32 s49, s7, 0
        s_and_b32 s49, s49, 0xffff
        s_mov_b32 s50, {ws.Q_SZ}
        s_mov_b32 s51, 0x20000
        s_sub_u32 s45, s{S_SL}, s45
        s_lshl_b32 s45, s45, 2
        s_lshl_b32 s47, s{S_MB}, 2                  ; first T
        """)
        for u in range(2):
            t0 = V_T + 2
            a(f"""
            v_add_u32 v{t0}, s45, v{V_H}
            v_add_u32 v{t0}, {2*u}, v{t0}               ; chunk
            v_mul_u32_u24 v{t0+1}, 205, v{t0}
            v_lshrrev_b32 v{t0+1}, 10, v{t0+1}          ; p
            v_mul_u32_u24 v{t0+2}, 5, v{t0+1}
            v_sub_u32 v{t0+2}, v{t0}, v{t0+2}           ; r
            v_lshrrev_b32 v{t0+3}, 1, v{t0+2}
            v_lshl_add_u32 v{t0+3}, v{t0+1}, 1, v{t0+3} ; head
            v_lshlrev_b32 v{t0+3}, 6, v{t0+3}
            v_add_u32 v{t0+3}, s47, v{t0+3}             ; head*64+T0
            v_lshlrev_b32 v{t0+3}, 10, v{t0+3}
            v_and_b32 v{t0+4}, 1, v{t0+2}
            v_lshl_add_u32 v{t0+3}, v{t0+4}, 9, v{t0+3}
            v_lshl_add_u32 v{t0+3}, v{V_TOK}, 4, v{t0+3}
            v_lshlrev_b32 v{t0+4}, 6, v{t0+1}
            v_add_u32 v{t0+4}, s47, v{t0+4}
            v_lshlrev_b32 v{t0+4}, 9, v{t0+4}
            v_lshl_add_u32 v{t0+4}, v{V_TOK}, 4, v{t0+4}
            v_add_u32 v{t0+4}, {QK1_SZ}, v{t0+4}
            v_cmp_eq_u32 vcc, 4, v{t0+2}
            v_mov_b32 v{t0+5}, 1024
            v_mov_b32 v{t0+6}, 512
            v_cndmask_b32 v{e+24+2*u}, v{t0+3}, v{t0+4}, vcc
            v_cndmask_b32 v{e+25+2*u}, v{t0+5}, v{t0+6}, vcc
            """)
        a("s_waitcnt lgkmcnt(0)")
        for t in range(4):
            a(f"v_mul_f32 v{e+2*t}, s46, v{e+2*t}")
            a(f"v_mul_f32 v{e+2*t+1}, s46, v{e+2*t+1}")
    else:
        srd_s(a, 48, 6, ('L', ws.HH), ws.HH_SZ)
        a(f"""
        s_lshl_b32 s45, s{S_SL}, 2
        v_add_u32 v{V_T+2}, s45, v{V_H}             ; chunk (u=0)
        v_lshlrev_b32 v{V_T+2}, 15, v{V_T+2}
        s_lshl_b32 s47, s{S_MB}, 11
        v_lshl_add_u32 v{V_T+2}, v{V_TOK}, 4, v{V_T+2}
        v_add_u32 v{e+24}, s47, v{V_T+2}
        v_add_u32 v{e+26}, 0x10000, v{e+24}
        v_mov_b32 v{V_T+3}, {f32hex(-LOG2E)}
        s_waitcnt lgkmcnt(0)
        """)
    a("s_nop 4")
    T = e + 32
    for t in range(4):
        A = e + 2*t
        for u in range(2):
            accb = V_ACC + 16*t + 8*u
            csb = CS + 8*u
            for pr in range(4):
                a(f"v_pk_mul_f32 v[{T+2*pr}:{T+2*pr+1}], v[{csb+2*pr}:{csb+2*pr+1}], v[{A}:{A+1}] op_sel:[0,1] op_sel_hi:[1,1]")
            for pr in range(4):
                a(f"v_pk_fma_f32 v[{T+2*pr}:{T+2*pr+1}], v[{accb+2*pr}:{accb+2*pr+1}], v[{A}:{A+1}], v[{T+2*pr}:{T+2*pr+1}] op_sel_hi:[1,0,1]")
            if mode == "w1":
                NL = V_T + 3
                for i in range(8): a(f"v_mul_f32 v{T+8+i}, v{T+i}, v{NL}")
                for i in range(8): a(f"v_exp_f32 v{T+8+i}, v{T+8+i}")
                for i in range(8): a(f"v_add_f32 v{T+8+i}, 1.0, v{T+8+i}")
                for i in range(8): a(f"v_rcp_f32 v{T+8+i}, v{T+8+i}")
                for i in range(8): a(f"v_mul_f32 v{T+i}, v{T+i}, v{T+8+i}")
            P = T + 16 + 4 * ((2*t + u) & 1)
            for pr in range(4): a(f"v_cvt_pk_bf16_f32 v{P+pr}, v{T+2*pr}, v{T+2*pr+1}")
            if mode == "qkv":
                a(f"buffer_store_dwordx4 v[{P}:{P+3}], v{e+24+2*u}, s[48:51], 0 offen {SC}")
                if t < 3: a(f"v_add_u32 v{e+24+2*u}, v{e+24+2*u}, v{e+25+2*u}")
            else:
                a(f"buffer_store_dwordx4 v[{P}:{P+3}], v{e+24+2*u}, s[48:51], 0 offen offset:{t*512} {SC}")

def ln_epilogue_v(a):
    L = LN
    V_TOK, V_H, V_T, V_ACC, e = L.V_TOK, L.V_H, L.V_T, L.V_ACC, L.V_E
    S_MB, S_SL = L.S_MB, L.S_SL
    srd_s(a, 48, 6, ('L', ws.V), ws.V_SZ)
    a(f"""
    s_sub_u32 s45, s{S_SL}, 40
    s_lshl_b32 s45, s45, 5
    v_add_u32 v{V_T}, s45, v{V_TOK}             ; f
    v_mul_u32_u24 v{V_T+1}, 3277, v{V_T}
    v_lshrrev_b32 v{V_T+1}, 16, v{V_T+1}        ; head = f/20
    v_mul_u32_u24 v{V_T+2}, 20, v{V_T+1}
    v_sub_u32 v{V_T+2}, v{V_T}, v{V_T+2}        ; d
    v_bfe_u32 v{V_T+3}, v{V_T+2}, 2, 1
    v_lshlrev_b32 v{V_T+3}, 3, v{V_T+3}
    v_bfe_u32 v{V_T+4}, v{V_T+2}, 3, 1
    v_lshl_add_u32 v{V_T+3}, v{V_T+4}, 2, v{V_T+3}
    v_and_b32 v{V_T+4}, 3, v{V_T+2}
    v_add_u32 v{V_T+3}, v{V_T+3}, v{V_T+4}
    v_cmp_le_u32 vcc, 16, v{V_T+2}
    s_lshl_b32 s47, s{S_MB}, 2
    v_lshlrev_b32 v{V_T+1}, 6, v{V_T+1}
    v_cndmask_b32 v{V_T+3}, v{V_T+3}, v{V_T+2}, vcc
    v_add_u32 v{V_T+1}, s47, v{V_T+1}           ; head*64 + T0
    v_mul_u32_u24 v{V_T+1}, 1280, v{V_T+1}
    v_mul_u32_u24 v{V_T+4}, 320, v{V_H}
    v_add_u32 v{V_T+1}, v{V_T+1}, v{V_T+4}
    v_lshl_add_u32 v{e+24}, v{V_T+3}, 4, v{V_T+1}
    v_lshlrev_b32 v{V_T+5}, 4, v{V_H}
    v_add_u32 v{V_T+5}, {LDS_MISC}, v{V_T+5}
    v_lshlrev_b32 v{V_T+6}, 2, v{V_TOK}
    s_lshl_b32 s43, s{S_W}, 7
    v_add_u32 v{V_T+6}, s43, v{V_T+6}
    v_add_u32 v{V_T+6}, {LDS_MISC+1024}, v{V_T+6}
    ds_read_b32 v{e+26}, v{V_T+6}
    """)
    T = e + 32; AB = e + 56
    for t in range(4):
        for m in range(2):
            for q in range(2):
                jj = 2*m + q
                a(f"ds_read_b128 v[{AB+4*q}:{AB+4*q+3}], v{V_T+5} offset:{(32*t+8*jj)*4}")
                a(f"ds_read_b128 v[{AB+8+4*q}:{AB+8+4*q+3}], v{V_T+5} offset:{512+(32*t+8*jj)*4}")
            a("s_waitcnt lgkmcnt(0)")
            if t == 0 and m == 0: a("s_nop 4")
            accb = V_ACC + 16*t + 8*m
            for pr in range(4):
                a(f"v_pk_mul_f32 v[{T+2*pr}:{T+2*pr+1}], v[{AB+8+2*pr}:{AB+9+2*pr}], v[{e+26}:{e+27}] op_sel_hi:[1,0]")
            for pr in range(4):
                a(f"v_pk_fma_f32 v[{T+2*pr}:{T+2*pr+1}], v[{accb+2*pr}:{accb+2*pr+1}], v[{AB+2*pr}:{AB+2*pr+1}], v[{T+2*pr}:{T+2*pr+1}]")
            P = T + 16 + 4 * m
            for pr in range(4): a(f"v_cvt_pk_bf16_f32 v{P+pr}, v{T+2*pr}, v{T+2*pr+1}")
            if m == 0: a(f"s_movk_i32 s52, {t*1280}")
            a(f"buffer_store_dwordx4 v[{P}:{P+3}], v{e+24}, s[48:51], s52 offen offset:{m*640} {SC}")

class RS:
    V_LANE = 1; V_TOK = 2; V_G = 3; V_WOFF = 4; V_AOFF = 5; V_XOFF = 6
    V_R = 8; V_T = 12; V_XO = 20; V_WF = 32; V_ACC = 92; V_E = 112
    S_RB = 17; S_J = 18; S_MBK = 19
SLOT = 20480; NSLOT = 7

def rs_ids(a):
    R = RS
    a(f"""
    s_and_b32 s20, s{S_X}, 3
    s_lshl_b32 s20, s20, 3
    s_and_b32 s21, s{S_JX}, 7
    s_add_u32 s{R.S_RB}, s20, s21
    s_lshr_b32 s20, s{S_X}, 2
    s_lshl_b32 s20, s20, 2
    s_lshr_b32 s21, s{S_JX}, 3
    s_add_u32 s{R.S_J}, s20, s21
    s_lshr_b32 s{R.S_MBK}, s{R.S_RB}, 1
    """)

def rs_phase(a, mode, base, wait_fn):
    R = RS
    V_LANE, V_TOK, V_G, V_WOFF, V_AOFF, V_XOFF, V_R, V_T, V_XO, V_WF, V_ACC, e = (R.V_LANE, R.V_TOK, R.V_G, R.V_WOFF, R.V_AOFF, R.V_XOFF, R.V_R, R.V_T, R.V_XO, R.V_WF, R.V_ACC, R.V_E)
    S_RB, S_J = R.S_RB, R.S_J
    NKS = 20 if mode == "wo" else 54
    NG = (NKS + 3) // 4
    rs_ids(a)
    if mode == "wo": act, actsz, wt, wtsz = ws.O, ws.O_SZ, ws.WO, ws.WO_SZ
    else: act, actsz, wt, wtsz = ws.HH, ws.HH_SZ, ws.W2, ws.W2_SZ
    srd(a, 36, 6, wt, wtsz)
    a(f"""
    v_and_b32 v{V_LANE}, 63, v0
    v_lshlrev_b32 v{V_WOFF}, 4, v{V_LANE}
    s_mul_i32 s45, s{S_J}, {NKS*5120}
    s_mul_i32 s46, s{S_W}, 5120
    s_add_u32 s45, s45, s46
    """)
    ops = []
    def d_bundle(g, j):
        slot = g % NSLOT
        return ([f"s_add_u32 s49, s45, {g*SLOT + j*1024}", f"s_add_u32 m0, s46, {slot*SLOT + j*1024}", "s_nop 0",
                 f"buffer_load_dwordx4 v{V_WOFF}, s[36:39], s49 offen {SCW} lds"], ("D", g))
    def a_bundle(n):
        return ([f"s_add_u32 s49, s44, {n*4*32768}",
                 f"buffer_load_dwordx4 a[{4*n}:{4*n+3}], v{V_AOFF}, s[32:35], s49 offen {SCL}"], ("A", n >> 2))
    def emit(b):
        for l in b[0]: a(l)
        ops.append(b[1])
    NPRE = min(NG, NSLOT)
    for g in range(NPRE):
        for j in range(5): emit(d_bundle(g, j))
    a(f"""
    v_and_b32 v{V_TOK}, 15, v0
    v_bfe_u32 v{V_G}, v0, 4, 2
    v_mov_b32 v{V_R}, v{V_WOFF}
    v_add_u32 v{V_R+1}, 0x10000, v{V_WOFF}
    v_add_u32 v{V_R+2}, 0x20000, v{V_WOFF}
    v_lshlrev_b32 v{V_AOFF}, 15, v{V_G}
    v_lshl_add_u32 v{V_AOFF}, v{V_TOK}, 4, v{V_AOFF}
    s_lshl_b32 s19, s{S_RB}, 6
    s_lshl_b32 s20, s{S_W}, 4
    s_add_u32 s22, s19, s20
    v_add_u32 v{V_T}, s22, v{V_TOK}
    v_mul_u32_u24 v{V_XOFF}, 1280, v{V_T}
    v_mul_u32_u24 v{V_T+1}, 40, v{V_G}
    v_add_u32 v{V_XOFF}, v{V_XOFF}, v{V_T+1}
    s_mul_i32 s20, s{S_J}, 160
    v_add_u32 v{V_XOFF}, s20, v{V_XOFF}
    s_lshl_b32 s44, s22, 4
    s_lshr_b32 s{R.S_MBK}, s{S_RB}, 1
    """)
    if mode == "wo":
        srd_sel(a, 24, M*D*2, 4, 0, ws.XB)
        srd_s(a, 28, 6, ('L', ws.XA), M*D*2)
        srd_s(a, 40, 6, ('L', ws.STA), M*64)
    else:
        srd_s(a, 24, 6, ('L', ws.XA), M*D*2)
        a(f"""
        s_add_u32 s28, s6, {ws.XB}
        s_addc_u32 s29, s7, 0
        s_cmp_eq_u32 s{S_L}, 0
        s_cselect_b32 s28, s28, s8
        s_cselect_b32 s29, s29, s9
        s_and_b32 s29, s29, 0xffff
        s_mov_b32 s30, {M*D*2}
        s_mov_b32 s31, 0x20000
        """)
        srd(a, 40, 6, ws.STB, M*64)
    srd_s(a, 32, 6, ('L', act), actsz)
    a(f"""
    buffer_load_dwordx4 v[{V_XO}:{V_XO+3}], v{V_XOFF}, s[24:27], 0 offen {SCL}
    buffer_load_dwordx4 v[{V_XO+4}:{V_XO+7}], v{V_XOFF}, s[24:27], 0 offen offset:16 {SCL}
    buffer_load_dwordx2 v[{V_XO+8}:{V_XO+9}], v{V_XOFF}, s[24:27], 0 offen offset:32 {SCL}
    """)
    ops += ["X", "X", "X"]
    stamp(a, 1)
    wait_fn()
    stamp(a, 2)
    NS = 4 * NG
    for n in range(8): emit(a_bundle(n))
    def wait_for(kind, g):
        last = max(i for i, o in enumerate(ops) if o == (kind, g))
        a(f"s_waitcnt vmcnt({len(ops) - 1 - last})")
    wait_for("A", 0)
    a("s_barrier")
    stamp(a, 3)
    def read(n, ft):
        g = n >> 2; slot = g % NSLOT
        o = slot*SLOT + (n & 3)*5120 + ft*1024
        buf = V_WF + 20*(n % 3)
        a(f"ds_read_b128 v[{buf+4*ft}:{buf+4*ft+3}], v{V_R+(o>>16)} offset:{o & 0xffff}")
    for ft in range(5): read(0, ft)
    for ft in range(5): read(1, ft)
    for n in range(NS):
        tau = n >> 2
        if n + 2 < NS and (n + 2) % 4 == 0:
            g = (n + 2) >> 2
            if g >= NPRE: wait_for("D", g)
            if NG > NPRE: a("s_barrier")
        if n % 4 == 0 and n > 0: wait_for("A", tau)
        a(f"s_waitcnt lgkmcnt({5 if n + 1 < NS else 0})")
        todo = []
        if tau + 2 < NG and (n & 3) < 2:
            todo = [a_bundle(4*(tau+2) + 2*(n & 3)), a_bundle(4*(tau+2) + 2*(n & 3) + 1)]
        if NPRE <= tau + NSLOT - 1 < NG and (n & 3) >= 2:
            gg = tau + NSLOT - 1
            todo = [d_bundle(gg, j) for j in ((0, 1, 2) if (n & 3) == 2 else (3, 4))]
        buf = V_WF + 20*(n % 3)
        for ft in range(5):
            acc = f"v[{V_ACC+4*ft}:{V_ACC+4*ft+3}]"
            c = "0" if n == 0 else acc
            a(f"v_mfma_f32_16x16x32_bf16 {acc}, v[{buf+4*ft}:{buf+4*ft+3}], a[{4*n}:{4*n+3}], {c}")
            if n + 2 < NS: read(n + 2, ft)
            if ft in (0, 2, 4) and todo: emit(todo.pop(0))
        assert not todo
    stamp(a, 4)
    a("s_nop 7")
    for q in range(10):
        a(f"v_lshlrev_b32 v{e+2*q}, 16, v{V_XO+q}")
        a(f"v_and_b32 v{e+2*q+1}, 0xffff0000, v{V_XO+q}")
    for i in range(20): a(f"v_add_f32 v{e+i}, v{e+i}, v{V_ACC+i}")
    for q in range(10): a(f"v_cvt_pk_bf16_f32 v{e+24+q}, v{e+2*q}, v{e+2*q+1}")
    if mode == "w2":
        a(f"""
        s_cmp_lg_u32 s{S_L}, 0
        s_cbranch_scc1 {base}_last
        """)
    a(f"""
    buffer_store_dwordx4 v[{e+24}:{e+27}], v{V_XOFF}, s[28:31], 0 offen {SC}
    buffer_store_dwordx4 v[{e+28}:{e+31}], v{V_XOFF}, s[28:31], 0 offen offset:16 {SC}
    buffer_store_dwordx2 v[{e+32}:{e+33}], v{V_XOFF}, s[28:31], 0 offen offset:32 {SC}
    """)
    for q in range(10):
        a(f"v_lshlrev_b32 v{e+2*q}, 16, v{e+24+q}")
        a(f"v_and_b32 v{e+2*q+1}, 0xffff0000, v{e+24+q}")
    a(f"v_mov_b32 v{e+40}, 0")
    a(f"v_mov_b32 v{e+41}, 0")
    for i in range(20):
        a(f"v_add_f32 v{e+40}, v{e+40}, v{e+i}")
        a(f"v_fmac_f32 v{e+41}, v{e+i}, v{e+i}")
    a(f"""
    v_mov_b32 v{e+42}, v{e+40}
    v_mov_b32 v{e+43}, v{e+41}
    s_nop 1
    v_permlane32_swap_b32 v{e+40}, v{e+42}
    v_permlane32_swap_b32 v{e+41}, v{e+43}
    v_add_f32 v{e+40}, v{e+40}, v{e+42}
    v_add_f32 v{e+41}, v{e+41}, v{e+43}
    v_mov_b32 v{e+42}, v{e+40}
    v_mov_b32 v{e+43}, v{e+41}
    s_nop 1
    v_permlane16_swap_b32 v{e+40}, v{e+42}
    v_permlane16_swap_b32 v{e+41}, v{e+43}
    v_add_f32 v{e+40}, v{e+40}, v{e+42}
    v_add_f32 v{e+41}, v{e+41}, v{e+43}
    v_add_u32 v{V_T}, s22, v{V_TOK}
    v_lshlrev_b32 v{V_T}, 6, v{V_T}
    s_lshl_b32 s49, s{S_J}, 3
    v_mov_b32 v{V_T+1}, 0x7ffffff0
    v_cmp_eq_u32 vcc, 0, v{V_G}
    s_nop 1
    v_cndmask_b32 v{V_T}, v{V_T+1}, v{V_T}, vcc
    buffer_store_dwordx2 v[{e+40}:{e+41}], v{V_T}, s[40:43], s49 offen {SC}
    """)
    if mode == "w2":
        a(f"s_branch {base}_done")
        a.label(f"{base}_last")
        a(f"""
        buffer_store_dwordx4 v[{e+24}:{e+27}], v{V_XOFF}, s[28:31], 0 offen
        buffer_store_dwordx4 v[{e+28}:{e+31}], v{V_XOFF}, s[28:31], 0 offen offset:16
        buffer_store_dwordx2 v[{e+32}:{e+33}], v{V_XOFF}, s[28:31], 0 offen offset:32
        """)
        if ASM.STAMPS: a("s_waitcnt vmcnt(0)")
        stamp(a, 5)
        a("s_endpgm")
        a.label(f"{base}_done")

LDS_MEGA = LDS_X + 1024 + 512

def gen_mega(a, name):
    kernel_header(a, name)
    n = name
    a(f"""
    s_cmp_ge_u32 s2, 256
    s_cbranch_scc1 {n}_end
    s_load_dwordx2 s[4:5], s[0:1], 0
    s_load_dwordx2 s[6:7], s[0:1], 64
    s_load_dwordx2 s[8:9], s[0:1], 48
    v_lshrrev_b32 v1, 6, v0
    s_and_b32 s{S_X}, s2, 7
    v_readfirstlane_b32 s{S_W}, v1
    s_lshr_b32 s{S_JX}, s2, 3
    s_mov_b32 s{S_L}, 0
    s_mov_b32 s{S_LOFF}, 0
    s_mov_b32 s{S_CL}, 0
    s_waitcnt lgkmcnt(0)
    s_add_u32 s{S_CB}, s6, {ws.CNT}
    s_addc_u32 s{S_CB+1}, s7, 0
    """)
    a.label(f"{n}_layer")
    def w_qkv():
        _uid[0] += 1; u = _uid[0]
        a(f"s_cmp_eq_u32 s{S_L}, 0")
        a(f"s_cbranch_scc1 skipw_{u}")
        wait(a, f"s{LN.S_MB}", C_DN, 1, 16, prev_layer=True)
        a.label(f"skipw_{u}")
    PH[0] = 0; stamp(a, 0)
    ln_phase(a, "qkv", f"{n}_qkv", w_qkv)
    stamp(a, 5)
    arrive(a, f"s{LN.S_MB}", C_QKV)
    PH[0] = 1; stamp(a, 0)
    k_attn2.attn_phase(a, f"{n}_att", 6, ('L', ws.Q), ('L', ws.K), ('L', ws.V), ('L', ws.O), sc=SC, scl=SCL,
                       srd_fn=lambda d, off, size: srd_s(a, d, 6, off, size),
                       wait_fn=lambda: wait(a, "0", C_QKV, 16, 16), stamp_fn=stamp)
    stamp(a, 5)
    arrive(a, f"s{k_attn2.S_QB}", C_ATT)
    PH[0] = 2; stamp(a, 0)
    def w_wo():
        a(f"s_lshr_b32 s21, s{RS.S_RB}, 2")
        wait(a, "s21", C_ATT, 1, 32)
    rs_phase(a, "wo", f"{n}_wo", w_wo)
    stamp(a, 5)
    arrive(a, f"s{RS.S_MBK}", C_WO)
    PH[0] = 3; stamp(a, 0)
    ln_phase(a, "w1", f"{n}_up", lambda: wait(a, f"s{LN.S_MB}", C_WO, 1, 16))
    stamp(a, 5)
    arrive(a, f"s{LN.S_MB}", C_UP)
    PH[0] = 4; stamp(a, 0)
    rs_phase(a, "w2", f"{n}_dn", lambda: wait(a, f"s{RS.S_MBK}", C_UP, 1, 16))
    stamp(a, 5)
    arrive(a, f"s{RS.S_MBK}", C_DN)
    a(f"""
    s_mov_b32 s{S_L}, 1
    s_mov_b32 s{S_LOFF}, {LAYER_SZ}
    s_mov_b32 s{S_CL}, {NCNT*128}
    s_branch {n}_layer
    """)
    a.label(f"{n}_end")
    a("s_endpgm")
    return kernel_desc(name, 256, 256, 102)
```

```python
import sys, os
sys.path.insert(0, os.path.dirname(os.path.abspath(__file__)))
from asm import *
from layout import *
import k_prep, k_lngemm, k_attn, k_attn2, k_resgemm

NAME = "interleave_layers__mha_block__dense_activation_silu__prompt"
HDR = """; Kernarg layout for this problem (72 bytes, ptrs only, base s[0:1]):
"""
def build_mega():
    import mega
    a = Asm()
    descs = [k_prep.gen_prep(a, "prep_kernel"), mega.gen_mega(a, "mega_kernel")]
    hdr = HDR
    hdr += f"; @launch kernel=prep_kernel grid=({k_prep.NWG_PREP},1,1) block=(256,1,1) lds={k_prep.LDS_PREP}\n"
    hdr += f"; @launch kernel=mega_kernel grid=(256,1,1) block=(256,1,1) lds={mega.LDS_MEGA}\n"
    out = hdr + '.amdgcn_target "amdgcn-amd-amdhsa--gfx950"\n' + a.text()
    out += '.section .rodata,"a"\n'
    for d in descs:
        for blk in d.split(".amdhsa_kernel ")[1:]:
            out += ".p2align 6\n.amdhsa_kernel " + blk
    return out

def build(launches=None):
    if os.environ.get("MEGA"): return build_mega()
    a = Asm()
    descs = []
    descs.append(k_prep.gen_prep(a, "prep_kernel"))
    descs.append(k_lngemm.gen_lngemm(a, "qkv", [("qkv1_kernel", 0), ("qkv2_kernel", 1)]))
    ATT2 = not os.environ.get("ATT1")
    descs.append(k_attn2.gen_attn2(a, "attn_kernel") if ATT2 else k_attn.gen_attn(a, "attn_kernel"))
    descs.append(k_resgemm.gen_resgemm(a, "wo", [("wo1_kernel", 0), ("wo2_kernel", 1)]))
    descs.append(k_lngemm.gen_lngemm(a, "w1", [("up1_kernel", 0), ("up2_kernel", 1)]))
    descs.append(k_resgemm.gen_resgemm(a, "w2", [("down1_kernel", 0), ("down2_kernel", 1)]))
    L = {
     "prep": ("prep_kernel", k_prep.NWG_PREP, 256, k_prep.LDS_PREP),
     "qkv1": ("qkv1_kernel", 256, 256, k_lngemm.LDS_LN),
     "qkv2": ("qkv2_kernel", 256, 256, k_lngemm.LDS_LN),
     "attn": ("attn_kernel", 256, 256, k_attn2.LDS_ATT) if ATT2 else ("attn_kernel", 256, 512, k_attn.LDS_ATT),
     "wo1": ("wo1_kernel", 256, 256, k_resgemm.LDS_RES_WO),
     "wo2": ("wo2_kernel", 256, 256, k_resgemm.LDS_RES_WO),
     "up1": ("up1_kernel", 256, 256, k_lngemm.LDS_LN),
     "up2": ("up2_kernel", 256, 256, k_lngemm.LDS_LN),
     "down1": ("down1_kernel", 256, 256, k_resgemm.LDS_RES_W2),
     "down2": ("down2_kernel", 256, 256, k_resgemm.LDS_RES_W2),
    }
    if os.environ.get("NOOPS"):
        kernel_header(a, "noop_kernel"); a("s_endpgm")
        descs.append(kernel_desc("noop_kernel", 8, 0, 16))
        L["noop"] = ("noop_kernel", 256, 256, 0)
    order = launches or ["prep", "qkv1", "attn", "wo1", "up1", "down1", "qkv2", "attn", "wo2", "up2", "down2"]
    if os.environ.get("NOOPS"):
        nn = int(os.environ["NOOPS"]); order = order[:6] + ["noop"] * nn + order[6:]
    if os.environ.get("TWICE"): order = order + order
    if os.environ.get("PREPX"): order = ["prep"] * int(os.environ["PREPX"]) + order[1:]
    hdr = HDR
    for k in order:
        n, g, b, l = L[k]
        hdr += f"; @launch kernel={n} grid=({g},1,1) block=({b},1,1) lds={l}\n"
    body = a.text()
    if os.environ.get("DBGT"):
        import re
        idx = {"prep_kernel": 0, "qkv1_kernel": 1, "wo1_kernel": 3, "up1_kernel": 4, "down1_kernel": 5, "qkv2_kernel": 6,
               "wo2_kernel": 8, "up2_kernel": 9, "down2_kernel": 10}
        def st(i, tag):
            return f'''    s_cmp_lg_u32 s2, 0
    s_cbranch_scc1 dbgt_skip_{tag}
    s_load_dwordx2 s[60:61], s[0:1], 56
    s_memrealtime s[62:63]
    s_waitcnt lgkmcnt(0)
    s_sub_u32 s60, s60, {512*i - 4*i}
    s_subb_u32 s61, s61, 0
    v_mov_b32 v1, 0
    v_mov_b32 v2, s62
    global_store_dword v1, v2, s[60:61]
    s_add_u32 s60, s60, {512*11}
    s_addc_u32 s61, s61, 0
    global_store_dword v1, v2, s[60:61]
dbgt_skip_{tag}:
'''
        for k, i in idx.items():
            body = body.replace(f"\n{k}:\n", f"\n{k}:\n" + st(i, k))
        body = body.replace("\nattn_kernel:\n", "\nattn_kernel:\n" + st(2, "a1") + "attn_common:\n")
        body += ".text\n.globl attn2_kernel\n.p2align 8\n.type attn2_kernel,@function\nattn2_kernel:\n" + st(7, "a2") + "    s_branch attn_common\n"
        body += ".text\n.globl fin_kernel\n.p2align 8\n.type fin_kernel,@function\nfin_kernel:\n" + st(11, "fin") + "    s_endpgm\n"
        descs.append(descs[2].replace("attn_kernel", "attn2_kernel"))
        descs.append(kernel_desc("fin_kernel", 8, 0, 72))
        descs = [d.replace("next_free_sgpr 48", "next_free_sgpr 72").replace("next_free_sgpr 64", "next_free_sgpr 72") for d in descs]
        lines = hdr.split("\n")
        li = [i for i, l in enumerate(lines) if l.startswith("; @launch")]
        lines[li[7]] = lines[li[7]].replace("attn_kernel", "attn2_kernel")
        lines.insert(li[-1] + 1, "; @launch kernel=fin_kernel grid=(1,1,1) block=(64,1,1) lds=0")
        hdr = "\n".join(lines)
    out = hdr + '.amdgcn_target "amdgcn-amd-amdhsa--gfx950"\n' + body
    out += '.section .rodata,"a"\n'
    for d in descs:
        for blk in d.split(".amdhsa_kernel ")[1:]:
            out += ".p2align 6\n.amdhsa_kernel " + blk
    return out

if __name__ == "__main__":
    import asm as ASM
    if os.environ.get("STAMPS"): ASM.STAMPS = True
    dst = sys.argv[1] if len(sys.argv) > 1 else f"cdna_kernels/{NAME}.s"
    open(dst, "w").write(build())
    print("wrote", dst, os.path.getsize(dst))
```

```python
from layout import M, D, H, DH, F, EPS, al, QK1_SZ, QK2_SZ, chunk_to_hd, rho_to_ce, qkv_col, w1_col, wo_row, v_rho
class WS: pass
ws = WS()
_off = 0
def _alloc(name, size):
    global _off
    setattr(ws, name, _off); setattr(ws, name + "_SZ", size)
    _off = al(_off + size)
_alloc("WQKV", 60 * 40 * 1024)
_alloc("W1",   54 * 40 * 1024)
_alloc("WO",   8 * 20 * 5120)
_alloc("W2",   8 * 54 * 5120)
_alloc("CSQ",  8 * 1920 * 4)
_alloc("CS1",  8 * 1728 * 4)
_alloc("ST0",  M * 8)
_alloc("X0",   M * D * 2)
NCNT = 96
C_P0 = 2 * NCNT
_alloc("CNT",  (2 * NCNT + 32) * 128)
L0 = _off
_alloc("Q", QK1_SZ + QK2_SZ)
_alloc("K", QK1_SZ + QK2_SZ)
_alloc("V", 32 * 64 * 1280)
_alloc("O", 80 * M * 16)
_alloc("HH", 216 * M * 16)
_alloc("XA", M * D * 2)
_alloc("XB", M * D * 2)
_alloc("STA", 8 * M * 8)
_alloc("STB", 8 * M * 8)
LAYER_SZ = _off - L0
WS_USED = _off + LAYER_SZ
C_QKV, C_ATT, C_WO, C_UP, C_DN, T_QKV, T_ATT = 0, 16, 24, 40, 56, 72, 80
T_P0 = C_P0 + 16

def res_feat(j, ft, rho16):
    g, i = rho16 >> 2, rho16 & 3
    if ft < 2: return 80*j + 8*g + 4*ft + i
    if ft < 4: return 80*j + 32 + 8*g + 4*(ft-2) + i
    return 80*j + 64 + 4*g + i
if __name__ == "__main__":
    for k, v in vars(ws).items(): print(k, v)
    print(LAYER_SZ, WS_USED)
```

```python
import os, math, struct
from asm import *
import asm as ASM
from layout3 import *
import k_attn2

EXP = os.environ.get("EXP", "")
SC = "sc1"
SCL = os.environ.get("SCL", "sc1")
SCW = os.environ.get("SCW", "sc1")
def f32hex(x): return "0x%08x" % struct.unpack("<I", struct.pack("<f", x))[0]
QSCALE = (DH ** -0.5) * math.log2(math.e)
LOG2E = math.log2(math.e)

S_X = 12; S_JX = 13; S_L = 14; S_LOFF = 15; S_W = 16
S_CL = 97
S_CB = 98
SPIN_MAX = 1 << 18

def srd_s(a, d, ptr, off, size):
    if isinstance(off, tuple):
        a(f"s_add_u32 s{d}, s{S_LOFF}, {off[1]}")
        a(f"s_add_u32 s{d}, s{d}, s{ptr}")
        a(f"s_addc_u32 s{d+1}, s{ptr+1}, 0")
        a(f"s_and_b32 s{d+1}, s{d+1}, 0xffff")
        a(f"s_mov_b32 s{d+2}, {size}")
        a(f"s_mov_b32 s{d+3}, 0x20000")
    else:
        srd(a, d, ptr, off, size)

def srd_sel(a, d, size, first_ptr, first_off, ws_off):
    a(f"""
    s_add_u32 s{d}, s6, {ws_off}
    s_addc_u32 s{d+1}, s7, 0
    s_add_u32 s100, s{first_ptr}, {first_off}
    s_addc_u32 s101, s{first_ptr+1}, 0
    s_cmp_eq_u32 s{S_L}, 0
    s_cselect_b32 s{d}, s100, s{d}
    s_cselect_b32 s{d+1}, s101, s{d+1}
    s_and_b32 s{d+1}, s{d+1}, 0xffff
    s_mov_b32 s{d+2}, {size}
    s_mov_b32 s{d+3}, 0x20000
    """)

_uid = [0]
PH = [0]
STAMP_OFF = 60 << 20
def stamp(a, i):
    if not ASM.STAMPS: return
    _uid[0] += 1; u = _uid[0]
    k = PH[0] * 8 + i
    a(f"""
    s_cmp_lg_u32 s{S_W}, 0
    s_cbranch_scc1 st_skip_{u}
    {"s_memtime" if os.environ.get("STAMPCLK") else "s_memrealtime"} s[94:95]
    s_lshl_b32 s93, s{S_L}, 6
    s_add_u32 s93, s93, {k}
    s_lshl_b32 s93, s93, 11
    s_lshl_b32 s92, s2, 3
    s_add_u32 s93, s93, s92
    s_add_u32 s93, s93, {STAMP_OFF}
    s_waitcnt lgkmcnt(0)
    v_mov_b32 v252, s94
    v_mov_b32 v253, s95
    v_mov_b32 v254, s93
    global_store_dwordx2 v254, v[252:253], s[6:7]
    """)
    a.label(f"st_skip_{u}")

def arrive(a, idx_sgpr, first, vt=250):
    _uid[0] += 1; u = _uid[0]
    a(f"""
    s_waitcnt vmcnt(0) lgkmcnt(0)
    s_barrier
    s_cmp_lg_u32 s{S_W}, 0
    s_cbranch_scc1 arr_done_{u}
    s_add_u32 s100, {idx_sgpr}, {first}
    s_lshl_b32 s100, s100, 7
    s_add_u32 s100, s100, s{S_CL}
    v_mov_b32 v{vt}, s100
    v_mov_b32 v{vt+1}, 1
    s_mov_b64 exec, 1
    global_atomic_add v{vt}, v{vt+1}, s[{S_CB}:{S_CB+1}] sc1
    s_mov_b64 exec, -1
    """)
    a.label(f"arr_done_{u}")

def arrive_tree(a, idx_sgpr, first, per, top, vt=250):
    _uid[0] += 1; u = _uid[0]
    a(f"""
    s_waitcnt vmcnt(0) lgkmcnt(0)
    s_barrier
    s_cmp_lg_u32 s{S_W}, 0
    s_cbranch_scc1 art_done_{u}
    s_add_u32 s100, {idx_sgpr}, {first}
    s_lshl_b32 s100, s100, 7
    s_add_u32 s100, s100, s{S_CL}
    v_mov_b32 v{vt}, s100
    v_mov_b32 v{vt+1}, 1
    s_mov_b64 exec, 1
    global_atomic_add v{vt+2}, v{vt}, v{vt+1}, s[{S_CB}:{S_CB+1}] sc0 sc1
    s_waitcnt vmcnt(0)
    v_readfirstlane_b32 s100, v{vt+2}
    s_mov_b64 exec, -1
    s_cmp_lg_u32 s100, {per-1}
    s_cbranch_scc1 art_done_{u}
    v_and_b32 v{vt}, 7, v0
    v_lshlrev_b32 v{vt}, 7, v{vt}
    s_add_u32 s100, s{S_CL}, {top*128}
    v_add_u32 v{vt}, s100, v{vt}
    s_mov_b64 exec, 0xff
    global_atomic_add v{vt}, v{vt+1}, s[{S_CB}:{S_CB+1}] sc1
    s_mov_b64 exec, -1
    """)
    a.label(f"art_done_{u}")

def wait_tree(a, top, ngroups):
    a("s_and_b32 s101, s2, 7")
    wait(a, "s101", top, 1, ngroups)

def wait(a, idx_sgpr, first, nlanes, expected, prev_layer=False, vt=250):
    _uid[0] += 1; u = _uid[0]
    a(f"""
    s_cmp_lg_u32 s{S_W}, 0
    s_cbranch_scc1 wt_done_{u}
    s_add_u32 s100, {idx_sgpr}, {first}
    s_lshl_b32 s100, s100, 7
    s_add_u32 s100, s100, s{S_CL}
    """)
    if prev_layer: a(f"s_sub_u32 s100, s100, {NCNT*128}")
    a(f"""
    v_and_b32 v{vt}, {nlanes-1}, v0
    v_lshlrev_b32 v{vt}, 7, v{vt}
    v_add_u32 v{vt}, s100, v{vt}
    s_mov_b32 s101, 0
    s_mov_b64 exec, {hex((1 << nlanes) - 1)}
    """)
    a.label(f"wt_poll_{u}")
    a(f"""
    global_load_dword v{vt+1}, v{vt}, s[{S_CB}:{S_CB+1}] sc1
    s_add_u32 s101, s101, 1
    s_waitcnt vmcnt(0)
    v_cmp_le_u32 vcc, {expected}, v{vt+1}
    s_cmp_ge_u32 s101, {SPIN_MAX}
    s_cbranch_scc1 wt_ok_{u}
    s_cmp_eq_u64 vcc, exec
    s_cbranch_scc1 wt_ok_{u}
    s_sleep 1
    s_branch wt_poll_{u}
    """)
    a.label(f"wt_ok_{u}")
    a("s_mov_b64 exec, -1")
    a.label(f"wt_done_{u}")
    a("s_barrier")

LDS_X = 9 * 16384
LDS_MISC = LDS_X
class LN:
    V_LANE = 1; V_TOK = 2; V_H = 3; V_ST = 4; V_WOFF = 6
    V_R = 8; V_T = 20; V_XF = 32; V_ACC = 80; V_E = 144
    S_MB = 17; S_NB = 18; S_SL = 19
PW = int(os.environ.get("PW", "5"))

def ln_ids(a, mode):
    L = LN
    a(f"""
    s_and_b32 s20, s{S_X}, 3
    s_lshl_b32 s20, s20, 2
    s_and_b32 s21, s{S_JX}, 3
    s_add_u32 s{L.S_MB}, s20, s21
    s_lshr_b32 s20, s{S_X}, 2
    s_lshl_b32 s20, s20, 3
    s_lshr_b32 s21, s{S_JX}, 2
    s_add_u32 s{L.S_NB}, s20, s21
    """)

def ln_phase(a, mode, base, wait_fn):
    L = LN
    V_LANE, V_TOK, V_H, V_ST, V_WOFF, V_R, V_T, V_XF, V_ACC, V_E = (L.V_LANE, L.V_TOK, L.V_H, L.V_ST, L.V_WOFF, L.V_R, L.V_T, L.V_XF, L.V_ACC, L.V_E)
    S_MB, S_NB, S_SL = L.S_MB, L.S_NB, L.S_SL
    NB = 15 if mode == "qkv" else 14
    ln_ids(a, mode)
    a(f"""
    s_cmp_ge_u32 s{S_NB}, {NB}
    s_cbranch_scc1 {base}_idle
    s_lshl_b32 s{S_SL}, s{S_NB}, 2
    s_add_u32 s{S_SL}, s{S_SL}, s{S_W}          ; slice
    v_and_b32 v{V_LANE}, 63, v0
    v_and_b32 v{V_TOK}, 31, v0
    v_lshlrev_b32 v{V_WOFF}, 4, v{V_LANE}
    """)
    if mode == "qkv": wt, wtsz, cs, cssz = ws.WQKV, ws.WQKV_SZ, ws.CSQ, ws.CSQ_SZ
    else: wt, wtsz, cs, cssz = ws.W1, ws.W1_SZ, ws.CS1, ws.CS1_SZ
    srd(a, 24, 6, wt, wtsz)
    a(f"s_mul_i32 s39, s{S_SL}, 40960")
    ops = []
    def w_bundle(n):
        g, i = divmod(n, 4)
        pre = [f"s_add_u32 s41, s39, {g*4096}"] if i == 0 else []
        return (pre + [f"buffer_load_dwordx4 a[{4*n}:{4*n+3}], v{V_WOFF}, s[24:27], s41 offen offset:{i*1024} {SCW}"], ("W", g))
    def d_bundle(g, j):
        slot = g % 9
        ld = f"buffer_load_dwordx4 v{V_WOFF}, s[20:23], s42 offen offset:{(j & 1)*1024} {SCL} lds"
        if j & 1: return ([ld], ("D", g))
        return ([f"s_add_u32 m0, s40, {slot*16384 + (j >> 1)*2048}", f"s_add_u32 s42, s38, {(8*g + (j >> 1))*32768}", ld], ("D", g))
    def emit(b):
        for l in b[0]: a(l)
        ops.append(b[1])
    NF = 1920 if mode == "qkv" else 1728
    for n in range(4*PW): emit(w_bundle(n))
    srd(a, 32, 6, cs, cssz)
    a(f"""
    v_bfe_u32 v{V_H}, v0, 5, 1
    s_lshl_b32 s37, s{S_SL}, 5
    v_add_u32 v{V_T+1}, s37, v{V_TOK}
    v_lshlrev_b32 v{V_T+1}, 2, v{V_T+1}
    v_mul_u32_u24 v{V_T+2}, {16*NF}, v{V_H}
    v_add_u32 v{V_T+1}, v{V_T+1}, v{V_T+2}
    s_movk_i32 s56, {4*NF}
    s_movk_i32 s57, {8*NF}
    s_movk_i32 s58, {12*NF}
    buffer_load_dword v{V_E+8}, v{V_T+1}, s[32:35], 0 offen {SCW}
    buffer_load_dword v{V_E+9}, v{V_T+1}, s[32:35], s56 offen {SCW}
    buffer_load_dword v{V_E+10}, v{V_T+1}, s[32:35], s57 offen {SCW}
    buffer_load_dword v{V_E+11}, v{V_T+1}, s[32:35], s58 offen {SCW}
    v_lshlrev_b32 v{V_T}, 11, v{V_H}
    v_lshl_add_u32 v{V_R}, v{V_TOK}, 4, v{V_T}
    v_add_u32 v{V_R+1}, 0x10000, v{V_R}
    v_add_u32 v{V_R+2}, 0x20000, v{V_R}
    """)
    ops.extend(["C"] * 4)
    if mode == "qkv":
        srd_sel(a, 20, M*D*2, 6, ws.X0, ws.XB)
        srd_sel(a, 28, ws.STB_SZ, 6, ws.ST0, ws.STB)
        a(f"""
        s_cmp_eq_u32 s{S_L}, 0
        s_cselect_b32 s30, {ws.ST0_SZ}, s30
        """)
    else:
        srd_s(a, 20, 6, ('L', ws.XA), M*D*2)
        srd_s(a, 28, 6, ('L', ws.STA), ws.STA_SZ)
    a(f"""
    s_lshl_b32 s36, s{S_MB}, 7
    s_lshl_b32 s37, s{S_W}, 5
    s_add_u32 s36, s36, s37
    v_add_u32 v{V_T}, s36, v{V_TOK}
    v_lshlrev_b32 v{V_T}, 3, v{V_T}
    v_lshlrev_b32 v{V_ST}, 16, v{V_H}
    v_add_u32 v{V_ST}, v{V_ST}, v{V_T}
    s_lshl_b32 s38, s{S_W}, 16
    s_lshl_b32 s37, s{S_MB}, 11
    s_add_u32 s38, s38, s37
    s_lshl_b32 s40, s{S_W}, 12
    s_movk_i32 s56, 16384
    s_mov_b32 s57, 32768
    s_mov_b32 s58, 49152
    """)
    stamp(a, 1)
    wait_fn()
    stamp(a, 2)
    for j in range(4): emit(d_bundle(0, j))
    a(f"""
    buffer_load_dwordx2 v[{V_E}:{V_E+1}], v{V_ST}, s[28:31], 0 offen {SCL}
    buffer_load_dwordx2 v[{V_E+2}:{V_E+3}], v{V_ST}, s[28:31], s56 offen {SCL}
    buffer_load_dwordx2 v[{V_E+4}:{V_E+5}], v{V_ST}, s[28:31], s57 offen {SCL}
    buffer_load_dwordx2 v[{V_E+6}:{V_E+7}], v{V_ST}, s[28:31], s58 offen {SCL}
    """)
    ops += ["S"] * 4
    for j in range(4): emit(d_bundle(1, j))
    a(f"s_waitcnt vmcnt(4)")
    e = V_E
    a(f"""
    v_add_f32 v{e}, v{e}, v{e+2}
    v_add_f32 v{e+1}, v{e+1}, v{e+3}
    v_add_f32 v{e+4}, v{e+4}, v{e+6}
    v_add_f32 v{e+5}, v{e+5}, v{e+7}
    v_add_f32 v{e}, v{e}, v{e+4}
    v_add_f32 v{e+1}, v{e+1}, v{e+5}
    v_add_f32 v{e+8}, v{e+8}, v{e+9}
    v_add_f32 v{e+10}, v{e+10}, v{e+11}
    v_mov_b32 v{e+2}, v{e}
    v_mov_b32 v{e+3}, v{e+1}
    v_add_f32 v{e+12}, v{e+8}, v{e+10}
    v_add_f32 v{e+13}, v{e+8}, v{e+10}
    v_permlane32_swap_b32 v{e}, v{e+2}
    v_permlane32_swap_b32 v{e+1}, v{e+3}
    v_permlane32_swap_b32 v{e+12}, v{e+13}
    v_add_f32 v{e}, v{e}, v{e+2}
    v_add_f32 v{e+1}, v{e+1}, v{e+3}
    v_add_f32 v{e+12}, v{e+12}, v{e+13}
    v_mul_f32 v{e}, {f32hex(1.0/D)}, v{e}       ; mean
    v_mul_f32 v{e+1}, {f32hex(1.0/D)}, v{e+1}
    v_fma_f32 v{e+1}, -v{e}, v{e}, v{e+1}       ; var
    v_max_f32 v{e+1}, 0, v{e+1}
    v_add_f32 v{e+1}, {f32hex(EPS)}, v{e+1}
    v_rsq_f32 v{e+1}, v{e+1}                    ; rstd
    s_lshl_b32 s43, s{S_W}, 7
    v_lshl_add_u32 v{e+4}, v{V_TOK}, 2, s43     ; (32w+tok)*4
    v_mul_f32 v{e+2}, v{e}, v{e+1}
    v_sub_f32 v{e+2}, 0, v{e+2}
    v_add_u32 v{e+4}, {LDS_MISC}, v{e+4}
    ds_write_b32 v{e+4}, v{e+1}
    ds_write_b32 v{e+4}, v{e+2} offset:512
    ds_write_b32 v{e+4}, v{e+12} offset:1024
    s_waitcnt lgkmcnt(0)
    s_barrier
    """)
    stamp(a, 3)
    forms = ["ct", "c"] if mode == "qkv" else ["ct"]
    if mode == "qkv":
        a(f"s_cmp_ge_u32 s{S_NB}, 10")
        a(f"s_cbranch_scc1 {base}_loop_c")
    saved = list(ops)
    for form in forms:
        ops[:] = list(saved)
        a.label(f"{base}_loop_{form}")
        def wait_group(g):
            last = max(i for i, o in enumerate(ops) if o == ("D", g) or o == ("W", g))
            a(f"s_waitcnt vmcnt({len(ops) - 1 - last})")
        def read(n, t):
            g = n >> 2; sp = n & 3; slot = g % 9
            q = slot >> 2; so = (slot & 3) * 16384
            buf = V_XF + 16 * (n % 3)
            a(f"ds_read_b128 v[{buf+4*t}:{buf+4*t+3}], v{V_R+q} offset:{so + sp*4096 + t*512}")
        for t in range(4): read(0, t)
        for t in range(4): read(1, t)
        pending = []
        for g in range(2, 10):
            if g >= PW: pending += [w_bundle(4*g + i) for i in range(4)]
            pending += [d_bundle(g, j) for j in range(4)]
        for n in range(40):
            if n + 2 < 40 and (n + 2) % 4 == 0:
                wait_group((n + 2) >> 2)
                a("s_barrier")
            a(f"s_waitcnt lgkmcnt({4 if n + 1 < 40 else 0})")
            buf = V_XF + 16 * (n % 3)
            for t in range(4):
                acc = f"v[{V_ACC+16*t}:{V_ACC+16*t+15}]"
                c = "0" if n == 0 else acc
                wf = f"a[{4*n}:{4*n+3}]"; xf = f"v[{buf+4*t}:{buf+4*t+3}]"
                if form == "ct": a(f"v_mfma_f32_32x32x16_bf16 {acc}, {wf}, {xf}, {c}")
                else: a(f"v_mfma_f32_32x32x16_bf16 {acc}, {xf}, {wf}, {c}")
                if n + 2 < 40: read(n + 2, t)
                if (t in (0, 2) or n < 4) and pending: emit(pending.pop(0))
        assert not pending
        stamp(a, 4)
        if form == "ct": ln_epilogue_ct(a, mode)
        else: ln_epilogue_v(a)
        if form != forms[-1]: a(f"s_branch {base}_idle")
    a.label(f"{base}_idle")

def ln_epilogue_ct(a, mode):
    L = LN
    V_TOK, V_H, V_T, V_ACC, e = L.V_TOK, L.V_H, L.V_T, L.V_ACC, L.V_E
    S_MB, S_SL = L.S_MB, L.S_SL
    a(f"""
    v_lshlrev_b32 v{V_T}, 2, v{V_TOK}
    v_add_u32 v{V_T}, {LDS_MISC}, v{V_T}
    s_lshl_b32 s43, s{S_W}, 7
    v_lshlrev_b32 v{V_T+1}, 4, v{V_H}
    v_add_u32 v{V_T+1}, s43, v{V_T+1}
    v_add_u32 v{V_T+1}, {LDS_MISC+1024}, v{V_T+1}
    """)
    for t in range(4):
        a(f"ds_read_b32 v{e+2*t}, v{V_T} offset:{t*128}")
        a(f"ds_read_b32 v{e+2*t+1}, v{V_T} offset:{512+t*128}")
    for jj in range(4):
        a(f"ds_read_b128 v[{e+8+4*jj}:{e+11+4*jj}], v{V_T+1} offset:{jj*32}")
    CS = e + 8
    if mode == "qkv":
        a(f"""
        s_cmp_ge_u32 s{S_SL}, 20
        s_mov_b32 s44, {ws.Q}
        s_cselect_b32 s44, {ws.K}, s44
        s_cselect_b32 s45, 20, 0
        s_cselect_b32 s46, 1.0, {f32hex(QSCALE)}
        s_add_u32 s44, s44, s{S_LOFF}
        s_add_u32 s48, s6, s44
        s_addc_u32 s49, s7, 0
        s_and_b32 s49, s49, 0xffff
        s_mov_b32 s50, {ws.Q_SZ}
        s_mov_b32 s51, 0x20000
        s_sub_u32 s45, s{S_SL}, s45
        s_lshl_b32 s45, s45, 2
        s_lshl_b32 s47, s{S_MB}, 2                  ; first T
        """)
        for u in range(2):
            t0 = V_T + 2
            a(f"""
            v_add_u32 v{t0}, s45, v{V_H}
            v_add_u32 v{t0}, {2*u}, v{t0}               ; chunk
            v_mul_u32_u24 v{t0+1}, 205, v{t0}
            v_lshrrev_b32 v{t0+1}, 10, v{t0+1}          ; p
            v_mul_u32_u24 v{t0+2}, 5, v{t0+1}
            v_sub_u32 v{t0+2}, v{t0}, v{t0+2}           ; r
            v_lshrrev_b32 v{t0+3}, 1, v{t0+2}
            v_lshl_add_u32 v{t0+3}, v{t0+1}, 1, v{t0+3} ; head
            v_lshlrev_b32 v{t0+3}, 6, v{t0+3}
            v_add_u32 v{t0+3}, s47, v{t0+3}             ; head*64+T0
            v_lshlrev_b32 v{t0+3}, 10, v{t0+3}
            v_and_b32 v{t0+4}, 1, v{t0+2}
            v_lshl_add_u32 v{t0+3}, v{t0+4}, 9, v{t0+3}
            v_lshl_add_u32 v{t0+3}, v{V_TOK}, 4, v{t0+3}
            v_lshlrev_b32 v{t0+4}, 6, v{t0+1}
            v_add_u32 v{t0+4}, s47, v{t0+4}
            v_lshlrev_b32 v{t0+4}, 9, v{t0+4}
            v_lshl_add_u32 v{t0+4}, v{V_TOK}, 4, v{t0+4}
            v_add_u32 v{t0+4}, {QK1_SZ}, v{t0+4}
            v_cmp_eq_u32 vcc, 4, v{t0+2}
            v_mov_b32 v{t0+5}, 1024
            v_mov_b32 v{t0+6}, 512
            v_cndmask_b32 v{e+24+2*u}, v{t0+3}, v{t0+4}, vcc
            v_cndmask_b32 v{e+25+2*u}, v{t0+5}, v{t0+6}, vcc
            """)
        a("s_waitcnt lgkmcnt(0)")
        for t in range(4):
            a(f"v_mul_f32 v{e+2*t}, s46, v{e+2*t}")
            a(f"v_mul_f32 v{e+2*t+1}, s46, v{e+2*t+1}")
    else:
        srd_s(a, 48, 6, ('L', ws.HH), ws.HH_SZ)
        a(f"""
        s_lshl_b32 s45, s{S_SL}, 2
        v_add_u32 v{V_T+2}, s45, v{V_H}             ; chunk (u=0)
        v_lshlrev_b32 v{V_T+2}, 15, v{V_T+2}
        s_lshl_b32 s47, s{S_MB}, 11
        v_lshl_add_u32 v{V_T+2}, v{V_TOK}, 4, v{V_T+2}
        v_add_u32 v{e+24}, s47, v{V_T+2}
        v_add_u32 v{e+26}, 0x10000, v{e+24}
        v_mov_b32 v{V_T+3}, {f32hex(-LOG2E)}
        s_waitcnt lgkmcnt(0)
        """)
    a("s_nop 4")
    T = e + 32
    for t in range(4):
        A = e + 2*t
        for u in range(2):
            accb = V_ACC + 16*t + 8*u
            csb = CS + 8*u
            for pr in range(4):
                a(f"v_pk_mul_f32 v[{T+2*pr}:{T+2*pr+1}], v[{csb+2*pr}:{csb+2*pr+1}], v[{A}:{A+1}] op_sel:[0,1] op_sel_hi:[1,1]")
            for pr in range(4):
                a(f"v_pk_fma_f32 v[{T+2*pr}:{T+2*pr+1}], v[{accb+2*pr}:{accb+2*pr+1}], v[{A}:{A+1}], v[{T+2*pr}:{T+2*pr+1}] op_sel_hi:[1,0,1]")
            if mode == "w1":
                NL = V_T + 3
                for i in range(8): a(f"v_mul_f32 v{T+8+i}, v{T+i}, v{NL}")
                for i in range(8): a(f"v_exp_f32 v{T+8+i}, v{T+8+i}")
                for i in range(8): a(f"v_add_f32 v{T+8+i}, 1.0, v{T+8+i}")
                for i in range(8): a(f"v_rcp_f32 v{T+8+i}, v{T+8+i}")
                for i in range(8): a(f"v_mul_f32 v{T+i}, v{T+i}, v{T+8+i}")
            P = T + 16 + 4 * ((2*t + u) & 1)
            for pr in range(4): a(f"v_cvt_pk_bf16_f32 v{P+pr}, v{T+2*pr}, v{T+2*pr+1}")
            if mode == "qkv":
                a(f"buffer_store_dwordx4 v[{P}:{P+3}], v{e+24+2*u}, s[48:51], 0 offen {SC}")
                if t < 3: a(f"v_add_u32 v{e+24+2*u}, v{e+24+2*u}, v{e+25+2*u}")
            else:
                a(f"buffer_store_dwordx4 v[{P}:{P+3}], v{e+24+2*u}, s[48:51], 0 offen offset:{t*512} {SC}")

def ln_epilogue_v(a):
    L = LN
    V_TOK, V_H, V_T, V_ACC, e = L.V_TOK, L.V_H, L.V_T, L.V_ACC, L.V_E
    S_MB, S_SL = L.S_MB, L.S_SL
    srd_s(a, 48, 6, ('L', ws.V), ws.V_SZ)
    a(f"""
    s_sub_u32 s45, s{S_SL}, 40
    s_lshl_b32 s45, s45, 5
    v_add_u32 v{V_T}, s45, v{V_TOK}             ; f
    v_mul_u32_u24 v{V_T+1}, 3277, v{V_T}
    v_lshrrev_b32 v{V_T+1}, 16, v{V_T+1}        ; head = f/20
    v_mul_u32_u24 v{V_T+2}, 20, v{V_T+1}
    v_sub_u32 v{V_T+2}, v{V_T}, v{V_T+2}        ; d
    v_bfe_u32 v{V_T+3}, v{V_T+2}, 2, 1
    v_lshlrev_b32 v{V_T+3}, 3, v{V_T+3}
    v_bfe_u32 v{V_T+4}, v{V_T+2}, 3, 1
    v_lshl_add_u32 v{V_T+3}, v{V_T+4}, 2, v{V_T+3}
    v_and_b32 v{V_T+4}, 3, v{V_T+2}
    v_add_u32 v{V_T+3}, v{V_T+3}, v{V_T+4}
    v_cmp_le_u32 vcc, 16, v{V_T+2}
    s_lshl_b32 s47, s{S_MB}, 2
    v_lshlrev_b32 v{V_T+1}, 6, v{V_T+1}
    v_cndmask_b32 v{V_T+3}, v{V_T+3}, v{V_T+2}, vcc
    v_add_u32 v{V_T+1}, s47, v{V_T+1}           ; head*64 + T0
    v_mul_u32_u24 v{V_T+1}, 1280, v{V_T+1}
    v_mul_u32_u24 v{V_T+4}, 320, v{V_H}
    v_add_u32 v{V_T+1}, v{V_T+1}, v{V_T+4}
    v_lshl_add_u32 v{e+24}, v{V_T+3}, 4, v{V_T+1}
    v_lshlrev_b32 v{V_T+5}, 4, v{V_H}
    v_add_u32 v{V_T+5}, {LDS_MISC}, v{V_T+5}
    v_lshlrev_b32 v{V_T+6}, 2, v{V_TOK}
    s_lshl_b32 s43, s{S_W}, 7
    v_add_u32 v{V_T+6}, s43, v{V_T+6}
    v_add_u32 v{V_T+6}, {LDS_MISC+1024}, v{V_T+6}
    ds_read_b32 v{e+26}, v{V_T+6}
    """)
    T = e + 32; AB = e + 56
    for t in range(4):
        for m in range(2):
            for q in range(2):
                jj = 2*m + q
                a(f"ds_read_b128 v[{AB+4*q}:{AB+4*q+3}], v{V_T+5} offset:{(32*t+8*jj)*4}")
                a(f"ds_read_b128 v[{AB+8+4*q}:{AB+8+4*q+3}], v{V_T+5} offset:{512+(32*t+8*jj)*4}")
            a("s_waitcnt lgkmcnt(0)")
            if t == 0 and m == 0: a("s_nop 4")
            accb = V_ACC + 16*t + 8*m
            for pr in range(4):
                a(f"v_pk_mul_f32 v[{T+2*pr}:{T+2*pr+1}], v[{AB+8+2*pr}:{AB+9+2*pr}], v[{e+26}:{e+27}] op_sel_hi:[1,0]")
            for pr in range(4):
                a(f"v_pk_fma_f32 v[{T+2*pr}:{T+2*pr+1}], v[{accb+2*pr}:{accb+2*pr+1}], v[{AB+2*pr}:{AB+2*pr+1}], v[{T+2*pr}:{T+2*pr+1}]")
            P = T + 16 + 4 * m
            for pr in range(4): a(f"v_cvt_pk_bf16_f32 v{P+pr}, v{T+2*pr}, v{T+2*pr+1}")
            if m == 0: a(f"s_movk_i32 s52, {t*1280}")
            a(f"buffer_store_dwordx4 v[{P}:{P+3}], v{e+24}, s[48:51], s52 offen offset:{m*640} {SC}")

class RS:
    V_LANE = 1; V_TOK = 2; V_G = 3; V_WOFF = 4; V_AOFF = 5; V_XOFF = 6; V_XC = 7
    V_R = 8; V_T = 12; V_XO = 20; V_WF = 32; V_ACC = 92; V_E = 112
    S_RB = 17; S_J = 18; S_MBK = 19
SLOT = 20480; NSLOT = 7

def rs_ids(a):
    R = RS
    a(f"""
    s_and_b32 s20, s{S_X}, 3
    s_lshl_b32 s20, s20, 3
    s_and_b32 s21, s{S_JX}, 7
    s_add_u32 s{R.S_RB}, s20, s21
    s_lshr_b32 s20, s{S_X}, 2
    s_lshl_b32 s20, s20, 2
    s_lshr_b32 s21, s{S_JX}, 3
    s_add_u32 s{R.S_J}, s20, s21
    s_lshr_b32 s{R.S_MBK}, s{R.S_RB}, 1
    """)

def rs_phase(a, mode, base, wait_fn):
    R = RS
    V_LANE, V_TOK, V_G, V_WOFF, V_AOFF, V_XOFF, V_R, V_T, V_XO, V_WF, V_ACC, e = (R.V_LANE, R.V_TOK, R.V_G, R.V_WOFF, R.V_AOFF, R.V_XOFF, R.V_R, R.V_T, R.V_XO, R.V_WF, R.V_ACC, R.V_E)
    S_RB, S_J = R.S_RB, R.S_J
    NKS = 20 if mode == "wo" else 54
    NG = (NKS + 3) // 4
    rs_ids(a)
    if mode == "wo": act, actsz, wt, wtsz = ws.O, ws.O_SZ, ws.WO, ws.WO_SZ
    else: act, actsz, wt, wtsz = ws.HH, ws.HH_SZ, ws.W2, ws.W2_SZ
    srd(a, 36, 6, wt, wtsz)
    a(f"""
    v_and_b32 v{V_LANE}, 63, v0
    v_lshlrev_b32 v{V_WOFF}, 4, v{V_LANE}
    s_mul_i32 s45, s{S_J}, {NKS*5120}
    s_mul_i32 s46, s{S_W}, 5120
    s_add_u32 s45, s45, s46
    """)
    ops = []
    def d_bundle(g, j):
        slot = g % NSLOT
        return ([f"s_add_u32 s49, s45, {g*SLOT + j*1024}", f"s_add_u32 m0, s46, {slot*SLOT + j*1024}", "s_nop 0",
                 f"buffer_load_dwordx4 v{V_WOFF}, s[36:39], s49 offen {SCW} lds"], ("D", g))
    def a_bundle(n):
        return ([f"s_add_u32 s49, s44, {n*4*32768}",
                 f"buffer_load_dwordx4 a[{4*n}:{4*n+3}], v{V_AOFF}, s[32:35], s49 offen {SCL}"], ("A", n >> 2))
    def emit(b):
        for l in b[0]: a(l)
        ops.append(b[1])
    NPRE = min(NG, NSLOT)
    for g in range(NPRE):
        for j in range(5): emit(d_bundle(g, j))
    a(f"""
    v_and_b32 v{V_TOK}, 15, v0
    v_bfe_u32 v{V_G}, v0, 4, 2
    v_mov_b32 v{V_R}, v{V_WOFF}
    v_add_u32 v{V_R+1}, 0x10000, v{V_WOFF}
    v_add_u32 v{V_R+2}, 0x20000, v{V_WOFF}
    v_lshlrev_b32 v{V_AOFF}, 15, v{V_G}
    v_lshl_add_u32 v{V_AOFF}, v{V_TOK}, 4, v{V_AOFF}
    s_lshl_b32 s19, s{S_RB}, 6
    s_lshl_b32 s20, s{S_W}, 4
    s_add_u32 s22, s19, s20
    v_add_u32 v{V_T}, s22, v{V_TOK}             ; token
    s_mul_i32 s20, s{S_J}, 10
    v_add_u32 v{V_T+1}, s20, v{V_G}
    v_lshlrev_b32 v{V_T+1}, 15, v{V_T+1}
    v_lshl_add_u32 v{V_XOFF}, v{V_T}, 4, v{V_T+1}
    v_lshrrev_b32 v{V_T+1}, 1, v{V_G}
    v_add_u32 v{V_T+1}, s20, v{V_T+1}
    v_add_u32 v{V_T+1}, 8, v{V_T+1}
    v_lshlrev_b32 v{V_T+1}, 15, v{V_T+1}
    v_lshl_add_u32 v{V_T+1}, v{V_T}, 4, v{V_T+1}
    v_and_b32 v{V_T+2}, 1, v{V_G}
    v_lshl_add_u32 v{RS.V_XC}, v{V_T+2}, 3, v{V_T+1}
    s_mov_b32 s23, {4*32768}
    s_lshl_b32 s44, s22, 4
    s_lshr_b32 s{R.S_MBK}, s{S_RB}, 1
    """)
    if mode == "wo":
        srd_sel(a, 24, M*D*2, 6, ws.X0, ws.XB)
        srd_s(a, 28, 6, ('L', ws.XA), M*D*2)
        srd_s(a, 40, 6, ('L', ws.STA), ws.STA_SZ)
    else:
        srd_s(a, 24, 6, ('L', ws.XA), M*D*2)
        a(f"""
        s_add_u32 s28, s6, {ws.XB}
        s_addc_u32 s29, s7, 0
        s_cmp_eq_u32 s{S_L}, 0
        s_cselect_b32 s28, s28, s8
        s_cselect_b32 s29, s29, s9
        s_and_b32 s29, s29, 0xffff
        s_mov_b32 s30, {M*D*2}
        s_mov_b32 s31, 0x20000
        """)
        srd(a, 40, 6, ws.STB, ws.STB_SZ)
    srd_s(a, 32, 6, ('L', act), actsz)
    a(f"""
    buffer_load_dwordx4 v[{V_XO}:{V_XO+3}], v{V_XOFF}, s[24:27], 0 offen {SCL}
    buffer_load_dwordx4 v[{V_XO+4}:{V_XO+7}], v{V_XOFF}, s[24:27], s23 offen {SCL}
    buffer_load_dwordx2 v[{V_XO+8}:{V_XO+9}], v{RS.V_XC}, s[24:27], 0 offen {SCL}
    """)
    ops += ["X", "X", "X"]
    stamp(a, 1)
    wait_fn()
    stamp(a, 2)
    NS = 4 * NG
    for n in range(8): emit(a_bundle(n))
    def wait_for(kind, g):
        last = max(i for i, o in enumerate(ops) if o == (kind, g))
        a(f"s_waitcnt vmcnt({len(ops) - 1 - last})")
    wait_for("A", 0)
    a("s_barrier")
    stamp(a, 3)
    def read(n, ft):
        g = n >> 2; slot = g % NSLOT
        o = slot*SLOT + (n & 3)*5120 + ft*1024
        buf = V_WF + 20*(n % 3)
        a(f"ds_read_b128 v[{buf+4*ft}:{buf+4*ft+3}], v{V_R+(o>>16)} offset:{o & 0xffff}")
    for ft in range(5): read(0, ft)
    for ft in range(5): read(1, ft)
    for n in range(NS):
        tau = n >> 2
        if n + 2 < NS and (n + 2) % 4 == 0:
            g = (n + 2) >> 2
            if g >= NPRE: wait_for("D", g)
            if NG > NPRE: a("s_barrier")
        if n % 4 == 0 and n > 0: wait_for("A", tau)
        a(f"s_waitcnt lgkmcnt({5 if n + 1 < NS else 0})")
        todo = []
        if tau + 2 < NG and (n & 3) < 2:
            todo = [a_bundle(4*(tau+2) + 2*(n & 3)), a_bundle(4*(tau+2) + 2*(n & 3) + 1)]
        if NPRE <= tau + NSLOT - 1 < NG and (n & 3) >= 2:
            gg = tau + NSLOT - 1
            todo = [d_bundle(gg, j) for j in ((0, 1, 2) if (n & 3) == 2 else (3, 4))]
        buf = V_WF + 20*(n % 3)
        for ft in range(5):
            acc = f"v[{V_ACC+4*ft}:{V_ACC+4*ft+3}]"
            c = "0" if n == 0 else acc
            a(f"v_mfma_f32_16x16x32_bf16 {acc}, v[{buf+4*ft}:{buf+4*ft+3}], a[{4*n}:{4*n+3}], {c}")
            if n + 2 < NS: read(n + 2, ft)
            if ft in (0, 2, 4) and todo: emit(todo.pop(0))
        assert not todo
    stamp(a, 4)
    a("s_nop 7")
    for q in range(10):
        a(f"v_lshlrev_b32 v{e+2*q}, 16, v{V_XO+q}")
        a(f"v_and_b32 v{e+2*q+1}, 0xffff0000, v{V_XO+q}")
    for i in range(20): a(f"v_add_f32 v{e+i}, v{e+i}, v{V_ACC+i}")
    for q in range(10): a(f"v_cvt_pk_bf16_f32 v{e+24+q}, v{e+2*q}, v{e+2*q+1}")
    if mode == "w2":
        a(f"""
        s_cmp_lg_u32 s{S_L}, 0
        s_cbranch_scc1 {base}_last
        """)
    a(f"""
    buffer_store_dwordx4 v[{e+24}:{e+27}], v{V_XOFF}, s[28:31], 0 offen {SC}
    buffer_store_dwordx4 v[{e+28}:{e+31}], v{V_XOFF}, s[28:31], s23 offen {SC}
    buffer_store_dwordx2 v[{e+32}:{e+33}], v{RS.V_XC}, s[28:31], 0 offen {SC}
    """)
    for q in range(10):
        a(f"v_lshlrev_b32 v{e+2*q}, 16, v{e+24+q}")
        a(f"v_and_b32 v{e+2*q+1}, 0xffff0000, v{e+24+q}")
    a(f"v_mov_b32 v{e+40}, 0")
    a(f"v_mov_b32 v{e+41}, 0")
    for i in range(20):
        a(f"v_add_f32 v{e+40}, v{e+40}, v{e+i}")
        a(f"v_fmac_f32 v{e+41}, v{e+i}, v{e+i}")
    a(f"""
    v_mov_b32 v{e+42}, v{e+40}
    v_mov_b32 v{e+43}, v{e+41}
    s_nop 1
    v_permlane32_swap_b32 v{e+40}, v{e+42}
    v_permlane32_swap_b32 v{e+41}, v{e+43}
    v_add_f32 v{e+40}, v{e+40}, v{e+42}
    v_add_f32 v{e+41}, v{e+41}, v{e+43}
    v_mov_b32 v{e+42}, v{e+40}
    v_mov_b32 v{e+43}, v{e+41}
    s_nop 1
    v_permlane16_swap_b32 v{e+40}, v{e+42}
    v_permlane16_swap_b32 v{e+41}, v{e+43}
    v_add_f32 v{e+40}, v{e+40}, v{e+42}
    v_add_f32 v{e+41}, v{e+41}, v{e+43}
    v_add_u32 v{V_T}, s22, v{V_TOK}
    v_lshlrev_b32 v{V_T}, 3, v{V_T}
    s_lshl_b32 s49, s{S_J}, 14
    v_mov_b32 v{V_T+1}, 0x7ffffff0
    v_cmp_eq_u32 vcc, 0, v{V_G}
    s_nop 1
    v_cndmask_b32 v{V_T}, v{V_T+1}, v{V_T}, vcc
    buffer_store_dwordx2 v[{e+40}:{e+41}], v{V_T}, s[40:43], s49 offen {SC}
    """)
    if mode == "w2":
        a(f"s_branch {base}_done")
        a.label(f"{base}_last")
        a(f"""
        v_add_u32 v{V_T}, s22, v{V_TOK}
        v_mul_u32_u24 v{V_T}, 1280, v{V_T}
        s_mul_i32 s49, s{S_J}, 160
        v_lshl_add_u32 v{V_T+1}, v{V_G}, 4, v{V_T}
        v_lshl_add_u32 v{V_T+2}, v{V_G}, 3, v{V_T}
        buffer_store_dwordx4 v[{e+24}:{e+27}], v{V_T+1}, s[28:31], s49 offen
        buffer_store_dwordx4 v[{e+28}:{e+31}], v{V_T+1}, s[28:31], s49 offen offset:64
        buffer_store_dwordx2 v[{e+32}:{e+33}], v{V_T+2}, s[28:31], s49 offen offset:128
        """)
        if ASM.STAMPS: a("s_waitcnt vmcnt(0)")
        stamp(a, 5)
        a("s_endpgm")
        a.label(f"{base}_done")

P_WQKV = 60; P_WO = 62; P_W1 = 64; P_W2 = 66
LDS_R1 = 0; LDS_R2 = 32768

def unitA_load(a, n, which, vb):
    N = 1920 if which == "qkv" else 1728
    ptr = P_WQKV if which == "qkv" else P_W1
    srd(a, 20, ptr, 0, 640 * N * 2)
    a(f"""
    s_lshr_b32 s18, s17, 3                  ; nt
    s_and_b32 s19, s17, 7                   ; k8
    v_and_b32 v3, 31, v0
    v_lshrrev_b32 v4, 5, v0
    v_lshrrev_b32 v5, 3, v3
    v_and_b32 v6, 7, v3                     ; Q
    s_lshl_b32 s33, s18, 2
    v_add_u32 v7, s33, v5                   ; slice
    """)
    if which == "qkv":
        a(f"""
        s_cmp_ge_u32 s18, 10
        s_cbranch_scc1 {n}_vcol
        v_lshrrev_b32 v8, 2, v6
        v_lshlrev_b32 v8, 1, v8
        v_and_b32 v9, 1, v6
        v_add_u32 v8, v8, v9                    ; cidx
        v_bfe_u32 v9, v6, 1, 1                  ; eh
        v_cmp_le_u32 vcc, 20, v7
        s_nop 1
        v_cndmask_b32 v10, 0, 1, vcc            ; sec
        v_mul_u32_u24 v11, 20, v10
        v_sub_u32 v11, v7, v11
        v_lshl_add_u32 v11, v11, 2, v8          ; chunk
        v_mul_u32_u24 v12, 205, v11
        v_lshrrev_b32 v12, 10, v12              ; p
        v_mul_u32_u24 v13, 5, v12
        v_sub_u32 v13, v11, v13                 ; r
        v_lshrrev_b32 v14, 1, v13
        v_and_b32 v15, 1, v13
        v_lshlrev_b32 v15, 3, v15
        v_lshl_add_u32 v15, v9, 2, v15
        v_cmp_eq_u32 vcc, 4, v13
        v_mov_b32 v16, 16
        s_nop 0
        v_cndmask_b32 v14, v14, v9, vcc
        v_cndmask_b32 v15, v15, v16, vcc
        v_lshl_add_u32 v14, v12, 1, v14         ; head
        v_mul_u32_u24 v14, 20, v14
        v_add_u32 v14, v14, v15
        v_mul_u32_u24 v10, 640, v10
        v_add_u32 v8, v14, v10                  ; col
        s_branch {n}_go
        """)
        a.label(f"{n}_vcol")
        a("""
        v_lshlrev_b32 v8, 5, v7
        v_lshl_add_u32 v8, v6, 2, v8
        """)
        a.label(f"{n}_go")
    else:
        a("""
        v_lshlrev_b32 v8, 5, v7
        v_lshrrev_b32 v9, 2, v6
        v_lshl_add_u32 v8, v9, 4, v8
        v_and_b32 v9, 1, v6
        v_lshl_add_u32 v8, v9, 3, v8
        v_bfe_u32 v9, v6, 1, 1
        v_lshl_add_u32 v8, v9, 2, v8
        """)
    a(f"""
    v_mul_u32_u24 v9, {N}, v4
    v_add_u32 v9, v9, v8
    v_lshlrev_b32 v9, 1, v9
    s_mul_i32 s34, s19, {80*N*2}
    """)
    for p in range(10):
        a(f"buffer_load_dwordx2 v[{vb+2*p}:{vb+2*p+1}], v9, s[20:23], s34 offen")
        if p < 9: a(f"s_add_u32 s34, s34, {8*N*2}")

def unitA_proc(a, n, which, vb, lds, unit_sgpr):
    NF = 1920 if which == "qkv" else 1728
    wt, wtsz, cs, cssz = (ws.WQKV, ws.WQKV_SZ, ws.CSQ, ws.CSQ_SZ) if which == "qkv" else (ws.W1, ws.W1_SZ, ws.CS1, ws.CS1_SZ)
    a(f"""
    s_lshr_b32 s18, {unit_sgpr}, 3
    s_and_b32 s19, {unit_sgpr}, 7
    v_lshlrev_b32 v10, 3, v0
    v_add_u32 v10, {lds}, v10
    """)
    for p in range(10):
        a(f"ds_write_b64 v10, v[{vb+2*p}:{vb+2*p+1}] offset:{p*2048}")
    srd(a, 24, 6, wt, wtsz)
    srd(a, 28, 6, cs, cssz)
    a(f"""
    v_and_b32 v1, 63, v0
    v_lshrrev_b32 v11, 4, v1                ; G
    v_bfe_u32 v12, v1, 2, 2                 ; r
    v_and_b32 v13, 3, v1                    ; c'
    v_lshrrev_b32 v14, 1, v11
    v_lshl_add_u32 v14, v14, 3, v12
    v_lshlrev_b32 v14, 8, v14
    v_and_b32 v15, 1, v11
    v_lshl_add_u32 v15, v15, 2, v13
    s_lshl_b32 s33, s{S_W}, 3
    v_add_u32 v15, s33, v15
    v_lshl_add_u32 v14, v15, 3, v14
    v_add_u32 v14, {lds}, v14
    v_mov_b32 v16, 0x3f803f80
    v_mov_b32 v17, 0x3f803f80
    v_mov_b32 v18, 0x3f803f80
    v_mov_b32 v19, 0x3f803f80
    s_waitcnt lgkmcnt(0)
    s_barrier
    """)
    F = 70
    for ks in range(5):
        for u in range(2):
            a(f"ds_read_b64_tr_b16 v[{F+4*ks+2*u}:{F+4*ks+2*u+1}], v14 offset:{ks*4096+u*1024}")
    a(f"""
    s_lshl_b32 s33, s18, 2
    s_add_u32 s33, s33, s{S_W}
    s_mul_i32 s34, s33, 40
    s_mul_i32 s35, s19, 5
    s_add_u32 s34, s34, s35
    s_lshl_b32 s34, s34, 10
    v_lshlrev_b32 v10, 4, v1
    """)
    for ks in range(5):
        a(f"s_waitcnt lgkmcnt({8-2*ks})")
        a(f"buffer_store_dwordx4 v[{F+4*ks}:{F+4*ks+3}], v10, s[24:27], s34 offen {SC}")
        c = "0" if ks == 0 else "v[96:111]"
        a(f"v_mfma_f32_32x32x16_bf16 v[96:111], v[16:19], v[{F+4*ks}:{F+4*ks+3}], {c}")
        if ks < 4: a("s_add_u32 s34, s34, 1024")
    a(f"""
    v_and_b32 v11, 31, v1
    s_lshl_b32 s33, s33, 5
    v_add_u32 v11, s33, v11
    v_lshlrev_b32 v11, 2, v11
    v_mov_b32 v12, 0x7ffffff0
    v_cmp_gt_u32 vcc, {NF}, v11             ; byte offset < NF*4 checked below
    s_mul_i32 s35, s19, {NF*4}
    v_lshrrev_b32 v13, 2, v11
    v_cmp_gt_u32 vcc, {NF}, v13
    s_nop 7
    v_cndmask_b32 v11, v12, v11, vcc
    s_nop 3
    buffer_store_dword v96, v11, s[28:31], s35 offen {SC}
    """.replace(f"v_cmp_gt_u32 vcc, {NF}, v11             ; byte offset < NF*4 checked below\n", "").replace(f"v_cmp_gt_u32 vcc, {NF}, v13", f"v_mov_b32 v15, {NF}\n    v_cmp_gt_u32 vcc, v15, v13"))

def unitB_load(a, n, vb):
    a("""
    s_mul_i32 s35, s40, 160
    v_mov_b32 v19, 0x7ffffff0
    """)
    for p in range(7):
        a(f"""
        v_add_u32 v3, {256*p}, v0               ; i
        v_mul_u32_u24 v4, 6554, v3
        v_lshrrev_b32 v4, 16, v4                ; row
        v_mul_u32_u24 v5, 10, v4
        v_sub_u32 v5, v3, v5                    ; piece
        v_add_u32 v6, s41, v4                   ; k
        s_cmp_eq_u32 s43, 0
        s_cbranch_scc1 {n}_row{p}
        v_lshrrev_b32 v7, 3, v6                 ; chunk
        v_and_b32 v8, 7, v6
        v_mul_u32_u24 v9, 205, v7
        v_lshrrev_b32 v9, 10, v9
        v_mul_u32_u24 v10, 5, v9
        v_sub_u32 v10, v7, v10
        v_lshrrev_b32 v11, 1, v10
        v_and_b32 v12, 1, v10
        v_lshl_add_u32 v12, v12, 3, v8
        v_lshrrev_b32 v13, 2, v8
        v_and_b32 v14, 3, v8
        v_add_u32 v14, 16, v14
        v_cmp_eq_u32 vcc, 4, v10
        s_nop 1
        v_cndmask_b32 v11, v11, v13, vcc
        v_cndmask_b32 v12, v12, v14, vcc
        v_lshl_add_u32 v11, v9, 1, v11
        v_mul_u32_u24 v11, 20, v11
        v_add_u32 v6, v11, v12
        """)
        a.label(f"{n}_row{p}")
        a(f"""
        v_mul_u32_u24 v6, 1280, v6
        v_lshl_add_u32 v6, v5, 4, v6
        v_cmp_gt_u32 vcc, s42, v4
        s_nop 1
        v_cndmask_b32 v6, v19, v6, vcc
        buffer_load_dwordx4 v[{vb+4*p}:{vb+4*p+3}], v6, s[44:47], s35 offen
        """)

def unitB_proc(a, n, vb, lds):
    a(f"""
    v_lshlrev_b32 v10, 4, v0
    v_add_u32 v10, {lds}, v10
    """)
    for p in range(7):
        a(f"ds_write_b128 v10, v[{vb+4*p}:{vb+4*p+3}] offset:{p*4096}")
    a(f"""
    v_and_b32 v1, 63, v0
    v_lshrrev_b32 v11, 4, v1                ; kg
    v_bfe_u32 v12, v1, 2, 2                 ; r
    v_and_b32 v13, 3, v1                    ; c'
    v_lshl_add_u32 v12, v11, 3, v12
    v_mul_u32_u24 v12, 160, v12
    v_add_u32 v12, {lds}, v12
    v_lshl_add_u32 v14, v13, 4, v12
    v_lshl_add_u32 v15, v13, 3, v12
    v_lshlrev_b32 v10, 4, v1
    s_mov_b32 s50, s{S_W}
    s_waitcnt lgkmcnt(0)
    s_barrier
    """)
    a.label(f"{n}_ks")
    a(f"""
    s_add_u32 s33, s48, s50
    s_cmp_ge_u32 s33, s49
    s_cbranch_scc1 {n}_done
    s_mul_i32 s36, s50, {32*160}
    v_add_u32 v16, s36, v14
    v_add_u32 v17, s36, v15
    """)
    F = 70
    for ft in range(5):
        for u in range(2):
            if ft < 4: a(f"ds_read_b64_tr_b16 v[{F+4*ft+2*u}:{F+4*ft+2*u+1}], v16 offset:{u*640 + (0, 8, 64, 72)[ft]}")
            else: a(f"ds_read_b64_tr_b16 v[{F+4*ft+2*u}:{F+4*ft+2*u+1}], v17 offset:{u*640 + 128}")
    a(f"""
    s_mul_i32 s34, s40, s49
    s_add_u32 s34, s34, s33
    s_mul_i32 s34, s34, 5120
    """)
    for ft in range(5):
        a(f"s_waitcnt lgkmcnt({8-2*ft})")
        a(f"buffer_store_dwordx4 v[{F+4*ft}:{F+4*ft+3}], v10, s[24:27], s34 offen {SC}")
        if ft < 4: a("s_add_u32 s34, s34, 1024")
    a(f"""
    s_add_u32 s50, s50, 4
    s_mul_i32 s36, s50, 32
    s_cmp_lt_u32 s36, s42
    s_cbranch_scc1 {n}_ks
    """)
    a.label(f"{n}_done")

def unitC_load(a, vb):
    a(f"""
    s_sub_u32 s33, s2, 120
    s_lshl_b32 s33, s33, 4                  ; first token of the workgroup
    s_lshl_b32 s34, s{S_W}, 2
    s_add_u32 s34, s34, s33
    v_and_b32 v1, 63, v0
    v_lshrrev_b32 v3, 4, v1
    v_add_u32 v3, s34, v3                   ; row
    v_and_b32 v4, 15, v1
    v_mul_u32_u24 v5, 1280, v3
    v_lshl_add_u32 v5, v4, 4, v5
    """)
    srd(a, 20, 4, 0, M * D * 2)
    for i in range(5):
        a(f"buffer_load_dwordx4 v[{vb+4*i}:{vb+4*i+3}], v5, s[20:23], 0 offen offset:{256*i}")

def unitC_proc(a, vb, lds):
    a(f"""
    s_sub_u32 s33, s2, 120
    s_lshl_b32 s33, s33, 4
    v_and_b32 v1, 63, v0
    v_and_b32 v4, 15, v1                    ; sub
    v_lshrrev_b32 v3, 4, v0                 ; token in the workgroup (0..15)
    v_lshlrev_b32 v5, 8, v4
    v_lshl_add_u32 v5, v3, 4, v5
    v_add_u32 v5, {lds}, v5
    """)
    for i in range(5):
        a(f"ds_write_b128 v5, v[{vb+4*i}:{vb+4*i+3}] offset:{i*4096}")
    srd(a, 24, 6, ws.X0, ws.X0_SZ)
    srd(a, 28, 6, ws.ST0, ws.ST0_SZ)
    a("""
    v_mov_b32 v6, 0
    v_mov_b32 v7, 0
    """)
    for i in range(20):
        r = vb + i
        a(f"""
        v_lshlrev_b32 v8, 16, v{r}
        v_and_b32 v9, 0xffff0000, v{r}
        v_add_f32 v6, v6, v8
        v_fmac_f32 v7, v8, v8
        v_add_f32 v6, v6, v9
        v_fmac_f32 v7, v9, v9
        """)
    for rot in (8, 4, 2, 1):
        a(f"""
        s_nop 1
        v_add_f32_dpp v6, v6, v6 row_ror:{rot} row_mask:0xf bank_mask:0xf
        v_add_f32_dpp v7, v7, v7 row_ror:{rot} row_mask:0xf bank_mask:0xf
        """)
    a(f"""
    v_add_u32 v10, s33, v3
    v_lshlrev_b32 v10, 3, v10
    v_mov_b32 v11, 0x7ffffff0
    v_cmp_eq_u32 vcc, 0, v4
    v_lshlrev_b32 v12, 4, v0
    v_add_u32 v12, {lds}, v12
    v_cndmask_b32 v10, v11, v10, vcc
    buffer_store_dwordx2 v[6:7], v10, s[28:31], 0 offen {SC}
    s_waitcnt lgkmcnt(0)
    s_barrier
    """)
    F = 70
    for i in range(5):
        a(f"ds_read_b128 v[{F+4*i}:{F+4*i+3}], v12 offset:{i*4096}")
    a(f"""
    v_lshrrev_b32 v13, 4, v0
    v_lshlrev_b32 v13, 15, v13
    v_and_b32 v14, 15, v0
    v_add_u32 v14, s33, v14
    v_lshl_add_u32 v13, v14, 4, v13
    s_mov_b32 s34, 0
    """)
    for i in range(5):
        a(f"s_waitcnt lgkmcnt({4-i})")
        a(f"buffer_store_dwordx4 v[{F+4*i}:{F+4*i+3}], v13, s[24:27], s34 offen {SC}")
        if i < 4: a(f"s_add_u32 s34, s34, {16*32768}")

def p0_phase(a, n):
    V1 = 20; V2 = 40
    a(f"""
    s_cmp_lt_u32 s2, 120
    s_cbranch_scc1 {n}_l1a
    s_cmp_lt_u32 s2, 248
    s_cbranch_scc1 {n}_l1c
    s_cmp_lg_u32 s2, 255
    s_cbranch_scc1 {n}_l2
    """)
    srd(a, 20, 6, ws.CNT, ws.CNT_SZ)
    a("""
    v_mov_b32 v20, 0
    v_mov_b32 v21, 0
    v_mov_b32 v22, 0
    v_mov_b32 v23, 0
    v_lshlrev_b32 v5, 4, v0
    """)
    for i in range(ws.CNT_SZ // 4096):
        a(f"s_movk_i32 s36, {i*4096}")
        a(f"buffer_store_dwordx4 v[20:23], v5, s[20:23], s36 offen {SC}")
    a(f"""
    s_waitcnt vmcnt(0)
    s_barrier
    v_mov_b32 v5, 0
    v_mov_b32 v6, 1
    s_mov_b64 exec, 1
    global_store_dword v5, v6, s[10:11] sc1
    s_mov_b64 exec, -1
    s_branch {n}_l2
    """)
    a.label(f"{n}_l1a")
    a("s_mov_b32 s17, s2")
    unitA_load(a, f"{n}_a1", "qkv", V1)
    a(f"s_branch {n}_l2")
    a.label(f"{n}_l1c")
    unitC_load(a, V1)
    a.label(f"{n}_l2")
    a(f"""
    s_cmp_lt_u32 s2, 112
    s_cbranch_scc0 {n}_l2b
    s_mov_b32 s17, s2
    """)
    unitA_load(a, f"{n}_a2", "w1", V2)
    a(f"s_branch {n}_p1")
    a.label(f"{n}_l2b")
    a(f"""
    s_cmp_lt_u32 s2, 224
    s_cbranch_scc0 {n}_l2o
    s_sub_u32 s33, s2, 112
    s_mul_i32 s40, s33, 4682
    s_lshr_b32 s40, s40, 16                 ; j
    s_mul_i32 s34, s40, 14
    s_sub_u32 s34, s33, s34                 ; kr
    s_lshl_b32 s41, s34, 7
    s_movk_i32 s42, 128
    s_mov_b32 s43, 0
    s_lshl_b32 s48, s34, 2
    s_movk_i32 s49, 54
    """)
    srd(a, 44, P_W2, 0, 1728 * 640 * 2)
    a(f"s_branch {n}_l2g")
    a.label(f"{n}_l2o")
    a(f"""
    s_sub_u32 s33, s2, 224
    s_lshr_b32 s40, s33, 2                  ; j
    s_and_b32 s34, s33, 3
    s_mul_i32 s41, s34, 160
    s_movk_i32 s42, 160
    s_mov_b32 s43, 1
    s_mul_i32 s48, s34, 5
    s_movk_i32 s49, 20
    """)
    srd(a, 44, P_WO, 0, 640 * 640 * 2)
    a.label(f"{n}_l2g")
    unitB_load(a, f"{n}_b", V2)
    a.label(f"{n}_p1")
    stamp(a, 1)
    a(f"""
    s_waitcnt vmcnt(7)
    s_cmp_lt_u32 s2, 120
    s_cbranch_scc1 {n}_p1a
    s_cmp_lt_u32 s2, 248
    s_cbranch_scc0 {n}_arr
    """)
    unitC_proc(a, V1, LDS_R1)
    a(f"s_branch {n}_arr")
    a.label(f"{n}_p1a")
    unitA_proc(a, f"{n}_pa1", "qkv", V1, LDS_R1, "s2")
    a.label(f"{n}_arr")
    stamp(a, 2)
    a(f"""
    s_cmp_lg_u32 s{S_W}, 0
    s_cbranch_scc1 {n}_flag_ok
    v_mov_b32 v250, 0
    s_mov_b32 s101, 0
    """)
    a.label(f"{n}_flag")
    a(f"""
    global_load_dword v251, v250, s[10:11] sc1
    s_add_u32 s101, s101, 1
    s_waitcnt vmcnt(0)
    v_readfirstlane_b32 s100, v251
    s_cmp_ge_u32 s101, {SPIN_MAX}
    s_cbranch_scc1 {n}_flag_ok
    s_cmp_lg_u32 s100, 0
    s_cbranch_scc1 {n}_flag_ok
    s_sleep 1
    s_branch {n}_flag
    """)
    a.label(f"{n}_flag_ok")
    a("s_lshr_b32 s17, s2, 4")
    arrive_tree(a, "s17", C_P0, 16, T_P0)
    stamp(a, 3)
    a(f"""
    s_cmp_lt_u32 s2, 112
    s_cbranch_scc0 {n}_p2b
    """)
    unitA_proc(a, f"{n}_pa2", "w1", V2, LDS_R2, "s2")
    a(f"s_branch {n}_p2d")
    a.label(f"{n}_p2b")
    a(f"""
    s_add_u32 s24, s6, {ws.W2}
    s_addc_u32 s25, s7, 0
    s_add_u32 s100, s6, {ws.WO}
    s_addc_u32 s101, s7, 0
    s_cmp_eq_u32 s43, 0
    s_cselect_b32 s24, s24, s100
    s_cselect_b32 s25, s25, s101
    s_and_b32 s25, s25, 0xffff
    s_mov_b32 s26, {ws.WO_SZ}
    s_cselect_b32 s26, {ws.W2_SZ}, s26
    s_mov_b32 s27, 0x20000
    """)
    unitB_proc(a, f"{n}_pb", V2, LDS_R2)
    a.label(f"{n}_p2d")
    stamp(a, 4)
    wait_tree(a, T_P0, 16)
    stamp(a, 5)

LDS_MEGA = LDS_X + 1024 + 512

def gen_mega(a, name):
    kernel_header(a, name)
    n = name
    a(f"""
    s_cmp_ge_u32 s2, 256
    s_cbranch_scc1 {n}_end
    s_load_dwordx2 s[4:5], s[0:1], 0
    s_load_dwordx2 s[6:7], s[0:1], 64
    s_load_dwordx4 s[8:11], s[0:1], 48
    s_load_dwordx4 s[{P_WQKV}:{P_WQKV+3}], s[0:1], 8
    s_load_dwordx4 s[{P_W1}:{P_W1+3}], s[0:1], 32
    v_lshrrev_b32 v1, 6, v0
    s_and_b32 s{S_X}, s2, 7
    v_readfirstlane_b32 s{S_W}, v1
    s_lshr_b32 s{S_JX}, s2, 3
    s_mov_b32 s{S_L}, 0
    s_mov_b32 s{S_LOFF}, 0
    s_mov_b32 s{S_CL}, 0
    s_waitcnt lgkmcnt(0)
    s_add_u32 s{S_CB}, s6, {ws.CNT}
    s_addc_u32 s{S_CB+1}, s7, 0
    """)
    PH[0] = 5; stamp(a, 0)
    p0_phase(a, f"{n}_p0")
    a.label(f"{n}_layer")
    def w_qkv():
        _uid[0] += 1; u = _uid[0]
        a(f"s_cmp_eq_u32 s{S_L}, 0")
        a(f"s_cbranch_scc1 skipw_{u}")
        wait(a, f"s{LN.S_MB}", C_DN, 1, 16, prev_layer=True)
        a.label(f"skipw_{u}")
    PH[0] = 0; stamp(a, 0)
    ln_phase(a, "qkv", f"{n}_qkv", w_qkv)
    stamp(a, 5)
    arrive_tree(a, f"s{LN.S_MB}", C_QKV, 16, T_QKV)
    PH[0] = 1; stamp(a, 0)
    k_attn2.attn_phase(a, f"{n}_att", 6, ('L', ws.Q), ('L', ws.K), ('L', ws.V), ('L', ws.O), sc=SC, scl=SCL,
                       srd_fn=lambda d, off, size: srd_s(a, d, 6, off, size),
                       wait_fn=lambda: wait_tree(a, T_QKV, 16), stamp_fn=stamp)
    stamp(a, 5)
    arrive(a, f"s{k_attn2.S_QB}", C_ATT)
    PH[0] = 2; stamp(a, 0)
    def w_wo():
        a(f"s_lshr_b32 s21, s{RS.S_RB}, 2")
        wait(a, "s21", C_ATT, 1, 32)
    rs_phase(a, "wo", f"{n}_wo", w_wo)
    stamp(a, 5)
    arrive(a, f"s{RS.S_MBK}", C_WO)
    PH[0] = 3; stamp(a, 0)
    ln_phase(a, "w1", f"{n}_up", lambda: wait(a, f"s{LN.S_MB}", C_WO, 1, 16))
    stamp(a, 5)
    arrive(a, f"s{LN.S_MB}", C_UP)
    PH[0] = 4; stamp(a, 0)
    rs_phase(a, "w2", f"{n}_dn", lambda: wait(a, f"s{RS.S_MBK}", C_UP, 1, 16))
    stamp(a, 5)
    arrive(a, f"s{RS.S_MBK}", C_DN)
    a(f"""
    s_mov_b32 s{S_L}, 1
    s_mov_b32 s{S_LOFF}, {LAYER_SZ}
    s_mov_b32 s{S_CL}, {NCNT*128}
    s_branch {n}_layer
    """)
    a.label(f"{n}_end")
    a("s_endpgm")
    return kernel_desc(name, 256, 256, 102)
```

```python
import sys, os
sys.path.insert(0, os.path.dirname(os.path.abspath(__file__)))
from asm import *
from layout import *
import k_prep, k_lngemm, k_attn, k_attn2, k_resgemm

NAME = "interleave_layers__mha_block__dense_activation_silu__prompt"
HDR = """; Kernarg layout for this problem (72 bytes, ptrs only, base s[0:1]):
"""
def build_mega2():
    import mega2
    a = Asm()
    descs = [mega2.gen_mega(a, "mega_kernel")]
    hdr = HDR
    hdr += f"; @launch kernel=mega_kernel grid=(256,1,1) block=(256,1,1) lds={mega2.LDS_MEGA}\n"
    out = hdr + '.amdgcn_target "amdgcn-amd-amdhsa--gfx950"\n' + a.text()
    out += '.section .rodata,"a"\n'
    for d in descs:
        for blk in d.split(".amdhsa_kernel ")[1:]:
            out += ".p2align 6\n.amdhsa_kernel " + blk
    return out

def build_mega():
    if os.environ.get("MEGA") == "2": return build_mega2()
    import mega
    a = Asm()
    descs = [k_prep.gen_prep(a, "prep_kernel"), mega.gen_mega(a, "mega_kernel")]
    hdr = HDR
    hdr += f"; @launch kernel=prep_kernel grid=({k_prep.NWG_PREP},1,1) block=(256,1,1) lds={k_prep.LDS_PREP}\n"
    hdr += f"; @launch kernel=mega_kernel grid=(256,1,1) block=(256,1,1) lds={mega.LDS_MEGA}\n"
    out = hdr + '.amdgcn_target "amdgcn-amd-amdhsa--gfx950"\n' + a.text()
    out += '.section .rodata,"a"\n'
    for d in descs:
        for blk in d.split(".amdhsa_kernel ")[1:]:
            out += ".p2align 6\n.amdhsa_kernel " + blk
    return out

def build(launches=None):
    if os.environ.get("MEGA"): return build_mega()
    a = Asm()
    descs = []
    descs.append(k_prep.gen_prep(a, "prep_kernel"))
    descs.append(k_lngemm.gen_lngemm(a, "qkv", [("qkv1_kernel", 0), ("qkv2_kernel", 1)]))
    ATT2 = not os.environ.get("ATT1")
    descs.append(k_attn2.gen_attn2(a, "attn_kernel") if ATT2 else k_attn.gen_attn(a, "attn_kernel"))
    descs.append(k_resgemm.gen_resgemm(a, "wo", [("wo1_kernel", 0), ("wo2_kernel", 1)]))
    descs.append(k_lngemm.gen_lngemm(a, "w1", [("up1_kernel", 0), ("up2_kernel", 1)]))
    descs.append(k_resgemm.gen_resgemm(a, "w2", [("down1_kernel", 0), ("down2_kernel", 1)]))
    L = {
     "prep": ("prep_kernel", k_prep.NWG_PREP, 256, k_prep.LDS_PREP),
     "qkv1": ("qkv1_kernel", 256, 256, k_lngemm.LDS_LN),
     "qkv2": ("qkv2_kernel", 256, 256, k_lngemm.LDS_LN),
     "attn": ("attn_kernel", 256, 256, k_attn2.LDS_ATT) if ATT2 else ("attn_kernel", 256, 512, k_attn.LDS_ATT),
     "wo1": ("wo1_kernel", 256, 256, k_resgemm.LDS_RES_WO),
     "wo2": ("wo2_kernel", 256, 256, k_resgemm.LDS_RES_WO),
     "up1": ("up1_kernel", 256, 256, k_lngemm.LDS_LN),
     "up2": ("up2_kernel", 256, 256, k_lngemm.LDS_LN),
     "down1": ("down1_kernel", 256, 256, k_resgemm.LDS_RES_W2),
     "down2": ("down2_kernel", 256, 256, k_resgemm.LDS_RES_W2),
    }
    if os.environ.get("NOOPS"):
        kernel_header(a, "noop_kernel"); a("s_endpgm")
        descs.append(kernel_desc("noop_kernel", 8, 0, 16))
        L["noop"] = ("noop_kernel", 256, 256, 0)
    order = launches or ["prep", "qkv1", "attn", "wo1", "up1", "down1", "qkv2", "attn", "wo2", "up2", "down2"]
    if os.environ.get("NOOPS"):
        nn = int(os.environ["NOOPS"]); order = order[:6] + ["noop"] * nn + order[6:]
    if os.environ.get("TWICE"): order = order + order
    if os.environ.get("PREPX"): order = ["prep"] * int(os.environ["PREPX"]) + order[1:]
    hdr = HDR
    for k in order:
        n, g, b, l = L[k]
        hdr += f"; @launch kernel={n} grid=({g},1,1) block=({b},1,1) lds={l}\n"
    body = a.text()
    if os.environ.get("DBGT"):
        import re
        idx = {"prep_kernel": 0, "qkv1_kernel": 1, "wo1_kernel": 3, "up1_kernel": 4, "down1_kernel": 5, "qkv2_kernel": 6,
               "wo2_kernel": 8, "up2_kernel": 9, "down2_kernel": 10}
        def st(i, tag):
            return f'''    s_cmp_lg_u32 s2, 0
    s_cbranch_scc1 dbgt_skip_{tag}
    s_load_dwordx2 s[60:61], s[0:1], 56
    s_memrealtime s[62:63]
    s_waitcnt lgkmcnt(0)
    s_sub_u32 s60, s60, {512*i - 4*i}
    s_subb_u32 s61, s61, 0
    v_mov_b32 v1, 0
    v_mov_b32 v2, s62
    global_store_dword v1, v2, s[60:61]
    s_add_u32 s60, s60, {512*11}
    s_addc_u32 s61, s61, 0
    global_store_dword v1, v2, s[60:61]
dbgt_skip_{tag}:
'''
        for k, i in idx.items():
            body = body.replace(f"\n{k}:\n", f"\n{k}:\n" + st(i, k))
        body = body.replace("\nattn_kernel:\n", "\nattn_kernel:\n" + st(2, "a1") + "attn_common:\n")
        body += ".text\n.globl attn2_kernel\n.p2align 8\n.type attn2_kernel,@function\nattn2_kernel:\n" + st(7, "a2") + "    s_branch attn_common\n"
        body += ".text\n.globl fin_kernel\n.p2align 8\n.type fin_kernel,@function\nfin_kernel:\n" + st(11, "fin") + "    s_endpgm\n"
        descs.append(descs[2].replace("attn_kernel", "attn2_kernel"))
        descs.append(kernel_desc("fin_kernel", 8, 0, 72))
        descs = [d.replace("next_free_sgpr 48", "next_free_sgpr 72").replace("next_free_sgpr 64", "next_free_sgpr 72") for d in descs]
        lines = hdr.split("\n")
        li = [i for i, l in enumerate(lines) if l.startswith("; @launch")]
        lines[li[7]] = lines[li[7]].replace("attn_kernel", "attn2_kernel")
        lines.insert(li[-1] + 1, "; @launch kernel=fin_kernel grid=(1,1,1) block=(64,1,1) lds=0")
        hdr = "\n".join(lines)
    out = hdr + '.amdgcn_target "amdgcn-amd-amdhsa--gfx950"\n' + body
    out += '.section .rodata,"a"\n'
    for d in descs:
        for blk in d.split(".amdhsa_kernel ")[1:]:
            out += ".p2align 6\n.amdhsa_kernel " + blk
    return out

if __name__ == "__main__":
    import asm as ASM
    if os.environ.get("STAMPS"): ASM.STAMPS = True
    dst = sys.argv[1] if len(sys.argv) > 1 else f"cdna_kernels/{NAME}.s"
    open(dst, "w").write(build())
    print("wrote", dst, os.path.getsize(dst))
```

```python
import os, math, struct
from asm import *
import asm as ASM
from layout3 import *
import k_attn2

EXP = os.environ.get("EXP", "")
SC = "sc1"
SCL = os.environ.get("SCL", "sc1")
SCW = os.environ.get("SCW", "sc1")
def f32hex(x): return "0x%08x" % struct.unpack("<I", struct.pack("<f", x))[0]
QSCALE = (DH ** -0.5) * math.log2(math.e)
LOG2E = math.log2(math.e)

S_X = 12; S_JX = 13; S_L = 14; S_LOFF = 15; S_W = 16
S_CL = 97
S_CB = 98
SPIN_MAX = 1 << 18

def srd_s(a, d, ptr, off, size):
    if isinstance(off, tuple):
        a(f"s_add_u32 s{d}, s{S_LOFF}, {off[1]}")
        a(f"s_add_u32 s{d}, s{d}, s{ptr}")
        a(f"s_addc_u32 s{d+1}, s{ptr+1}, 0")
        a(f"s_and_b32 s{d+1}, s{d+1}, 0xffff")
        a(f"s_mov_b32 s{d+2}, {size}")
        a(f"s_mov_b32 s{d+3}, 0x20000")
    else:
        srd(a, d, ptr, off, size)

def srd_sel(a, d, size, first_ptr, first_off, ws_off):
    a(f"""
    s_add_u32 s{d}, s6, {ws_off}
    s_addc_u32 s{d+1}, s7, 0
    s_add_u32 s100, s{first_ptr}, {first_off}
    s_addc_u32 s101, s{first_ptr+1}, 0
    s_cmp_eq_u32 s{S_L}, 0
    s_cselect_b32 s{d}, s100, s{d}
    s_cselect_b32 s{d+1}, s101, s{d+1}
    s_and_b32 s{d+1}, s{d+1}, 0xffff
    s_mov_b32 s{d+2}, {size}
    s_mov_b32 s{d+3}, 0x20000
    """)

_uid = [0]
PH = [0]
STAMP_OFF = 60 << 20
DBGW = os.environ.get("DBGW")
def dbgw(a, slot):
    if DBGW is None: return
    _uid[0] += 1; u = _uid[0]
    a(f"""
    s_cmp_lg_u32 s{S_W}, 0
    s_cbranch_scc1 dw_skip_{u}
    s_cmp_lg_u32 s2, {int(DBGW)}
    s_cbranch_scc1 dw_skip_{u}
    s_memrealtime s[94:95]
    s_mul_i32 s93, s{S_L}, 5
    s_add_u32 s93, s93, {slot}
    s_lshl_b32 s93, s93, 2
    s_waitcnt lgkmcnt(0)
    v_mov_b32 v252, s94
    v_mov_b32 v254, s93
    global_store_dword v254, v252, s[10:11]
    """)
    a.label(f"dw_skip_{u}")

def stamp(a, i):
    if i == 0 and PH[0] < 5: dbgw(a, 3 + PH[0])
    if not ASM.STAMPS: return
    _uid[0] += 1; u = _uid[0]
    k = PH[0] * 8 + i
    a(f"""
    s_cmp_lg_u32 s{S_W}, 0
    s_cbranch_scc1 st_skip_{u}
    {"s_memtime" if os.environ.get("STAMPCLK") else "s_memrealtime"} s[94:95]
    s_lshl_b32 s93, s{S_L}, 6
    s_add_u32 s93, s93, {k}
    s_lshl_b32 s93, s93, 11
    s_lshl_b32 s92, s2, 3
    s_add_u32 s93, s93, s92
    s_add_u32 s93, s93, {STAMP_OFF}
    s_waitcnt lgkmcnt(0)
    v_mov_b32 v252, s94
    v_mov_b32 v253, s95
    v_mov_b32 v254, s93
    global_store_dwordx2 v254, v[252:253], s[6:7]
    """)
    a.label(f"st_skip_{u}")

def arrive(a, idx_sgpr, first, vt=250):
    _uid[0] += 1; u = _uid[0]
    a(f"""
    s_waitcnt vmcnt(0) lgkmcnt(0)
    s_barrier
    s_cmp_lg_u32 s{S_W}, 0
    s_cbranch_scc1 arr_done_{u}
    s_add_u32 s100, {idx_sgpr}, {first}
    s_lshl_b32 s100, s100, 7
    s_add_u32 s100, s100, s{S_CL}
    v_mov_b32 v{vt}, s100
    v_mov_b32 v{vt+1}, 1
    s_mov_b64 exec, 1
    global_atomic_add v{vt}, v{vt+1}, s[{S_CB}:{S_CB+1}] sc1
    s_mov_b64 exec, -1
    """)
    a.label(f"arr_done_{u}")

def arrive_tree(a, idx_sgpr, first, per, top, vt=250):
    _uid[0] += 1; u = _uid[0]
    a(f"""
    s_waitcnt vmcnt(0) lgkmcnt(0)
    s_barrier
    s_cmp_lg_u32 s{S_W}, 0
    s_cbranch_scc1 art_done_{u}
    s_add_u32 s100, {idx_sgpr}, {first}
    s_lshl_b32 s100, s100, 7
    s_add_u32 s100, s100, s{S_CL}
    v_mov_b32 v{vt}, s100
    v_mov_b32 v{vt+1}, 1
    s_mov_b64 exec, 1
    global_atomic_add v{vt+2}, v{vt}, v{vt+1}, s[{S_CB}:{S_CB+1}] sc0 sc1
    s_waitcnt vmcnt(0)
    v_readfirstlane_b32 s100, v{vt+2}
    s_mov_b64 exec, -1
    s_cmp_lg_u32 s100, {per-1}
    s_cbranch_scc1 art_done_{u}
    v_and_b32 v{vt}, 7, v0
    v_lshlrev_b32 v{vt}, 7, v{vt}
    s_add_u32 s100, s{S_CL}, {top*128}
    v_add_u32 v{vt}, s100, v{vt}
    s_mov_b64 exec, 0xff
    global_atomic_add v{vt}, v{vt+1}, s[{S_CB}:{S_CB+1}] sc1
    s_mov_b64 exec, -1
    """)
    a.label(f"art_done_{u}")

def wait_tree(a, top, ngroups):
    a("s_and_b32 s101, s2, 7")
    wait(a, "s101", top, 1, ngroups)

def wait(a, idx_sgpr, first, nlanes, expected, prev_layer=False, vt=250):
    _uid[0] += 1; u = _uid[0]
    a(f"""
    s_cmp_lg_u32 s{S_W}, 0
    s_cbranch_scc1 wt_done_{u}
    s_add_u32 s100, {idx_sgpr}, {first}
    s_lshl_b32 s100, s100, 7
    s_add_u32 s100, s100, s{S_CL}
    """)
    if prev_layer: a(f"s_sub_u32 s100, s100, {NCNT*128}")
    a(f"""
    v_and_b32 v{vt}, {nlanes-1}, v0
    v_lshlrev_b32 v{vt}, 7, v{vt}
    v_add_u32 v{vt}, s100, v{vt}
    s_mov_b32 s101, 0
    s_mov_b64 exec, {hex((1 << nlanes) - 1)}
    """)
    a.label(f"wt_poll_{u}")
    a(f"""
    global_load_dword v{vt+1}, v{vt}, s[{S_CB}:{S_CB+1}] sc1
    s_add_u32 s101, s101, 1
    s_waitcnt vmcnt(0)
    v_cmp_le_u32 vcc, {expected}, v{vt+1}
    s_cmp_ge_u32 s101, {SPIN_MAX}
    s_cbranch_scc1 wt_ok_{u}
    s_cmp_eq_u64 vcc, exec
    s_cbranch_scc1 wt_ok_{u}
    s_sleep 1
    s_branch wt_poll_{u}
    """)
    a.label(f"wt_ok_{u}")
    a("s_mov_b64 exec, -1")
    a.label(f"wt_done_{u}")
    a("s_barrier")

LDS_X = 9 * 16384
LDS_MISC = LDS_X
class LN:
    V_LANE = 1; V_TOK = 2; V_H = 3; V_ST = 4; V_WOFF = 6
    V_R = 8; V_T = 20; V_XF = 32; V_ACC = 80; V_E = 144
    S_MB = 17; S_NB = 18; S_SL = 19
PW = int(os.environ.get("PW", "5"))

def ln_ids(a, mode):
    L = LN
    a(f"""
    s_and_b32 s20, s{S_X}, 3
    s_lshl_b32 s20, s20, 2
    s_and_b32 s21, s{S_JX}, 3
    s_add_u32 s{L.S_MB}, s20, s21
    s_lshr_b32 s20, s{S_X}, 2
    s_lshl_b32 s20, s20, 3
    s_lshr_b32 s21, s{S_JX}, 2
    s_add_u32 s{L.S_NB}, s20, s21
    """)

def ln_phase(a, mode, base, wait_fn):
    L = LN
    V_LANE, V_TOK, V_H, V_ST, V_WOFF, V_R, V_T, V_XF, V_ACC, V_E = (L.V_LANE, L.V_TOK, L.V_H, L.V_ST, L.V_WOFF, L.V_R, L.V_T, L.V_XF, L.V_ACC, L.V_E)
    S_MB, S_NB, S_SL = L.S_MB, L.S_NB, L.S_SL
    NB = 15 if mode == "qkv" else 14
    ln_ids(a, mode)
    a(f"""
    s_cmp_ge_u32 s{S_NB}, {NB}
    s_cbranch_scc1 {base}_idle
    s_lshl_b32 s{S_SL}, s{S_NB}, 2
    s_add_u32 s{S_SL}, s{S_SL}, s{S_W}          ; slice
    v_and_b32 v{V_LANE}, 63, v0
    v_and_b32 v{V_TOK}, 31, v0
    v_lshlrev_b32 v{V_WOFF}, 4, v{V_LANE}
    """)
    if mode == "qkv": wt, wtsz, cs, cssz = ws.WQKV, ws.WQKV_SZ, ws.CSQ, ws.CSQ_SZ
    else: wt, wtsz, cs, cssz = ws.W1, ws.W1_SZ, ws.CS1, ws.CS1_SZ
    srd(a, 24, 6, wt, wtsz)
    a(f"s_mul_i32 s39, s{S_SL}, 40960")
    ops = []
    def w_bundle(n):
        g, i = divmod(n, 4)
        pre = [f"s_add_u32 s41, s39, {g*4096}"] if i == 0 else []
        return (pre + [f"buffer_load_dwordx4 a[{4*n}:{4*n+3}], v{V_WOFF}, s[24:27], s41 offen offset:{i*1024} {SCW}"], ("W", g))
    def d_bundle(g, j):
        slot = g % 9
        ld = f"buffer_load_dwordx4 v{V_WOFF}, s[20:23], s42 offen offset:{(j & 1)*1024} {SCL} lds"
        if j & 1: return ([ld], ("D", g))
        return ([f"s_add_u32 m0, s40, {slot*16384 + (j >> 1)*2048}", f"s_add_u32 s42, s38, {(8*g + (j >> 1))*32768}", ld], ("D", g))
    def emit(b):
        for l in b[0]: a(l)
        ops.append(b[1])
    NF = 1920 if mode == "qkv" else 1728
    for n in range(4*PW): emit(w_bundle(n))
    srd(a, 32, 6, cs, cssz)
    a(f"""
    v_bfe_u32 v{V_H}, v0, 5, 1
    s_lshl_b32 s37, s{S_SL}, 5
    v_add_u32 v{V_T+1}, s37, v{V_TOK}
    v_lshlrev_b32 v{V_T+1}, 2, v{V_T+1}
    v_mul_u32_u24 v{V_T+2}, {16*NF}, v{V_H}
    v_add_u32 v{V_T+1}, v{V_T+1}, v{V_T+2}
    s_movk_i32 s56, {4*NF}
    s_movk_i32 s57, {8*NF}
    s_movk_i32 s58, {12*NF}
    buffer_load_dword v{V_E+8}, v{V_T+1}, s[32:35], 0 offen {SCW}
    buffer_load_dword v{V_E+9}, v{V_T+1}, s[32:35], s56 offen {SCW}
    buffer_load_dword v{V_E+10}, v{V_T+1}, s[32:35], s57 offen {SCW}
    buffer_load_dword v{V_E+11}, v{V_T+1}, s[32:35], s58 offen {SCW}
    v_lshlrev_b32 v{V_T}, 11, v{V_H}
    v_lshl_add_u32 v{V_R}, v{V_TOK}, 4, v{V_T}
    v_add_u32 v{V_R+1}, 0x10000, v{V_R}
    v_add_u32 v{V_R+2}, 0x20000, v{V_R}
    """)
    ops.extend(["C"] * 4)
    if mode == "qkv":
        srd_sel(a, 20, M*D*2, 6, ws.X0, ws.XB)
        srd_sel(a, 28, ws.STB_SZ, 6, ws.ST0, ws.STB)
        a(f"""
        s_cmp_eq_u32 s{S_L}, 0
        s_cselect_b32 s30, {ws.ST0_SZ}, s30
        """)
    else:
        srd_s(a, 20, 6, ('L', ws.XA), M*D*2)
        srd_s(a, 28, 6, ('L', ws.STA), ws.STA_SZ)
    a(f"""
    s_lshl_b32 s36, s{S_MB}, 7
    s_lshl_b32 s37, s{S_W}, 5
    s_add_u32 s36, s36, s37
    v_add_u32 v{V_T}, s36, v{V_TOK}
    v_lshlrev_b32 v{V_T}, 3, v{V_T}
    v_lshlrev_b32 v{V_ST}, 16, v{V_H}
    v_add_u32 v{V_ST}, v{V_ST}, v{V_T}
    s_lshl_b32 s38, s{S_W}, 16
    s_lshl_b32 s37, s{S_MB}, 11
    s_add_u32 s38, s38, s37
    s_lshl_b32 s40, s{S_W}, 12
    s_movk_i32 s56, 16384
    s_mov_b32 s57, 32768
    s_mov_b32 s58, 49152
    """)
    stamp(a, 1)
    wait_fn()
    stamp(a, 2)
    for j in range(4): emit(d_bundle(0, j))
    a(f"""
    buffer_load_dwordx2 v[{V_E}:{V_E+1}], v{V_ST}, s[28:31], 0 offen {SCL}
    buffer_load_dwordx2 v[{V_E+2}:{V_E+3}], v{V_ST}, s[28:31], s56 offen {SCL}
    buffer_load_dwordx2 v[{V_E+4}:{V_E+5}], v{V_ST}, s[28:31], s57 offen {SCL}
    buffer_load_dwordx2 v[{V_E+6}:{V_E+7}], v{V_ST}, s[28:31], s58 offen {SCL}
    """)
    ops += ["S"] * 4
    for j in range(4): emit(d_bundle(1, j))
    a(f"s_waitcnt vmcnt(4)")
    e = V_E
    a(f"""
    v_add_f32 v{e}, v{e}, v{e+2}
    v_add_f32 v{e+1}, v{e+1}, v{e+3}
    v_add_f32 v{e+4}, v{e+4}, v{e+6}
    v_add_f32 v{e+5}, v{e+5}, v{e+7}
    v_add_f32 v{e}, v{e}, v{e+4}
    v_add_f32 v{e+1}, v{e+1}, v{e+5}
    v_add_f32 v{e+8}, v{e+8}, v{e+9}
    v_add_f32 v{e+10}, v{e+10}, v{e+11}
    v_mov_b32 v{e+2}, v{e}
    v_mov_b32 v{e+3}, v{e+1}
    v_add_f32 v{e+12}, v{e+8}, v{e+10}
    v_add_f32 v{e+13}, v{e+8}, v{e+10}
    v_permlane32_swap_b32 v{e}, v{e+2}
    v_permlane32_swap_b32 v{e+1}, v{e+3}
    v_permlane32_swap_b32 v{e+12}, v{e+13}
    v_add_f32 v{e}, v{e}, v{e+2}
    v_add_f32 v{e+1}, v{e+1}, v{e+3}
    v_add_f32 v{e+12}, v{e+12}, v{e+13}
    v_mul_f32 v{e}, {f32hex(1.0/D)}, v{e}       ; mean
    v_mul_f32 v{e+1}, {f32hex(1.0/D)}, v{e+1}
    v_fma_f32 v{e+1}, -v{e}, v{e}, v{e+1}       ; var
    v_max_f32 v{e+1}, 0, v{e+1}
    v_add_f32 v{e+1}, {f32hex(EPS)}, v{e+1}
    v_rsq_f32 v{e+1}, v{e+1}                    ; rstd
    s_lshl_b32 s43, s{S_W}, 7
    v_lshl_add_u32 v{e+4}, v{V_TOK}, 2, s43     ; (32w+tok)*4
    v_mul_f32 v{e+2}, v{e}, v{e+1}
    v_sub_f32 v{e+2}, 0, v{e+2}
    v_add_u32 v{e+4}, {LDS_MISC}, v{e+4}
    ds_write_b32 v{e+4}, v{e+1}
    ds_write_b32 v{e+4}, v{e+2} offset:512
    ds_write_b32 v{e+4}, v{e+12} offset:1024
    s_waitcnt lgkmcnt(0)
    s_barrier
    """)
    stamp(a, 3)
    forms = ["ct", "c"] if mode == "qkv" else ["ct"]
    if mode == "qkv":
        a(f"s_cmp_ge_u32 s{S_NB}, 10")
        a(f"s_cbranch_scc1 {base}_loop_c")
    saved = list(ops)
    for form in forms:
        ops[:] = list(saved)
        a.label(f"{base}_loop_{form}")
        def wait_group(g):
            last = max(i for i, o in enumerate(ops) if o == ("D", g) or o == ("W", g))
            a(f"s_waitcnt vmcnt({len(ops) - 1 - last})")
        def read(n, t):
            g = n >> 2; sp = n & 3; slot = g % 9
            q = slot >> 2; so = (slot & 3) * 16384
            buf = V_XF + 16 * (n % 3)
            a(f"ds_read_b128 v[{buf+4*t}:{buf+4*t+3}], v{V_R+q} offset:{so + sp*4096 + t*512}")
        for t in range(4): read(0, t)
        for t in range(4): read(1, t)
        pending = []
        for g in range(2, 10):
            if g >= PW: pending += [w_bundle(4*g + i) for i in range(4)]
            pending += [d_bundle(g, j) for j in range(4)]
        for n in range(40):
            if n + 2 < 40 and (n + 2) % 4 == 0:
                wait_group((n + 2) >> 2)
                a("s_barrier")
            a(f"s_waitcnt lgkmcnt({4 if n + 1 < 40 else 0})")
            buf = V_XF + 16 * (n % 3)
            for t in range(4):
                acc = f"v[{V_ACC+16*t}:{V_ACC+16*t+15}]"
                c = "0" if n == 0 else acc
                wf = f"a[{4*n}:{4*n+3}]"; xf = f"v[{buf+4*t}:{buf+4*t+3}]"
                if form == "ct": a(f"v_mfma_f32_32x32x16_bf16 {acc}, {wf}, {xf}, {c}")
                else: a(f"v_mfma_f32_32x32x16_bf16 {acc}, {xf}, {wf}, {c}")
                if n + 2 < 40: read(n + 2, t)
                if (t in (0, 2) or n < 4) and pending: emit(pending.pop(0))
        assert not pending
        stamp(a, 4)
        if form == "ct": ln_epilogue_ct(a, mode)
        else: ln_epilogue_v(a)
        if form != forms[-1]: a(f"s_branch {base}_idle")
    a.label(f"{base}_idle")

def ln_epilogue_ct(a, mode):
    L = LN
    V_TOK, V_H, V_T, V_ACC, e = L.V_TOK, L.V_H, L.V_T, L.V_ACC, L.V_E
    S_MB, S_SL = L.S_MB, L.S_SL
    a(f"""
    v_lshlrev_b32 v{V_T}, 2, v{V_TOK}
    v_add_u32 v{V_T}, {LDS_MISC}, v{V_T}
    s_lshl_b32 s43, s{S_W}, 7
    v_lshlrev_b32 v{V_T+1}, 4, v{V_H}
    v_add_u32 v{V_T+1}, s43, v{V_T+1}
    v_add_u32 v{V_T+1}, {LDS_MISC+1024}, v{V_T+1}
    """)
    for t in range(4):
        a(f"ds_read_b32 v{e+2*t}, v{V_T} offset:{t*128}")
        a(f"ds_read_b32 v{e+2*t+1}, v{V_T} offset:{512+t*128}")
    for jj in range(4):
        a(f"ds_read_b128 v[{e+8+4*jj}:{e+11+4*jj}], v{V_T+1} offset:{jj*32}")
    CS = e + 8
    if mode == "qkv":
        a(f"""
        s_cmp_ge_u32 s{S_SL}, 20
        s_mov_b32 s44, {ws.Q}
        s_cselect_b32 s44, {ws.K}, s44
        s_cselect_b32 s45, 20, 0
        s_cselect_b32 s46, 1.0, {f32hex(QSCALE)}
        s_add_u32 s44, s44, s{S_LOFF}
        s_add_u32 s48, s6, s44
        s_addc_u32 s49, s7, 0
        s_and_b32 s49, s49, 0xffff
        s_mov_b32 s50, {ws.Q_SZ}
        s_mov_b32 s51, 0x20000
        s_sub_u32 s45, s{S_SL}, s45
        s_lshl_b32 s45, s45, 2
        s_lshl_b32 s47, s{S_MB}, 2                  ; first T
        """)
        for u in range(2):
            t0 = V_T + 2
            a(f"""
            v_add_u32 v{t0}, s45, v{V_H}
            v_add_u32 v{t0}, {2*u}, v{t0}               ; chunk
            v_mul_u32_u24 v{t0+1}, 205, v{t0}
            v_lshrrev_b32 v{t0+1}, 10, v{t0+1}          ; p
            v_mul_u32_u24 v{t0+2}, 5, v{t0+1}
            v_sub_u32 v{t0+2}, v{t0}, v{t0+2}           ; r
            v_lshrrev_b32 v{t0+3}, 1, v{t0+2}
            v_lshl_add_u32 v{t0+3}, v{t0+1}, 1, v{t0+3} ; head
            v_lshlrev_b32 v{t0+3}, 6, v{t0+3}
            v_add_u32 v{t0+3}, s47, v{t0+3}             ; head*64+T0
            v_lshlrev_b32 v{t0+3}, 10, v{t0+3}
            v_and_b32 v{t0+4}, 1, v{t0+2}
            v_lshl_add_u32 v{t0+3}, v{t0+4}, 9, v{t0+3}
            v_lshl_add_u32 v{t0+3}, v{V_TOK}, 4, v{t0+3}
            v_lshlrev_b32 v{t0+4}, 6, v{t0+1}
            v_add_u32 v{t0+4}, s47, v{t0+4}
            v_lshlrev_b32 v{t0+4}, 9, v{t0+4}
            v_lshl_add_u32 v{t0+4}, v{V_TOK}, 4, v{t0+4}
            v_add_u32 v{t0+4}, {QK1_SZ}, v{t0+4}
            v_cmp_eq_u32 vcc, 4, v{t0+2}
            v_mov_b32 v{t0+5}, 1024
            v_mov_b32 v{t0+6}, 512
            v_cndmask_b32 v{e+24+2*u}, v{t0+3}, v{t0+4}, vcc
            v_cndmask_b32 v{e+25+2*u}, v{t0+5}, v{t0+6}, vcc
            """)
        a("s_waitcnt lgkmcnt(0)")
        for t in range(4):
            a(f"v_mul_f32 v{e+2*t}, s46, v{e+2*t}")
            a(f"v_mul_f32 v{e+2*t+1}, s46, v{e+2*t+1}")
    else:
        srd_s(a, 48, 6, ('L', ws.HH), ws.HH_SZ)
        a(f"""
        s_lshl_b32 s45, s{S_SL}, 2
        v_add_u32 v{V_T+2}, s45, v{V_H}             ; chunk (u=0)
        v_lshlrev_b32 v{V_T+2}, 15, v{V_T+2}
        s_lshl_b32 s47, s{S_MB}, 11
        v_lshl_add_u32 v{V_T+2}, v{V_TOK}, 4, v{V_T+2}
        v_add_u32 v{e+24}, s47, v{V_T+2}
        v_add_u32 v{e+26}, 0x10000, v{e+24}
        v_mov_b32 v{V_T+3}, {f32hex(-LOG2E)}
        s_waitcnt lgkmcnt(0)
        """)
    a("s_nop 4")
    T = e + 32
    for t in range(4):
        A = e + 2*t
        for u in range(2):
            accb = V_ACC + 16*t + 8*u
            csb = CS + 8*u
            for pr in range(4):
                a(f"v_pk_mul_f32 v[{T+2*pr}:{T+2*pr+1}], v[{csb+2*pr}:{csb+2*pr+1}], v[{A}:{A+1}] op_sel:[0,1] op_sel_hi:[1,1]")
            for pr in range(4):
                a(f"v_pk_fma_f32 v[{T+2*pr}:{T+2*pr+1}], v[{accb+2*pr}:{accb+2*pr+1}], v[{A}:{A+1}], v[{T+2*pr}:{T+2*pr+1}] op_sel_hi:[1,0,1]")
            if mode == "w1":
                NL = V_T + 3
                for i in range(8): a(f"v_mul_f32 v{T+8+i}, v{T+i}, v{NL}")
                for i in range(8): a(f"v_exp_f32 v{T+8+i}, v{T+8+i}")
                for i in range(8): a(f"v_add_f32 v{T+8+i}, 1.0, v{T+8+i}")
                for i in range(8): a(f"v_rcp_f32 v{T+8+i}, v{T+8+i}")
                for i in range(8): a(f"v_mul_f32 v{T+i}, v{T+i}, v{T+8+i}")
            P = T + 16 + 4 * ((2*t + u) & 1)
            for pr in range(4): a(f"v_cvt_pk_bf16_f32 v{P+pr}, v{T+2*pr}, v{T+2*pr+1}")
            if mode == "qkv":
                a(f"buffer_store_dwordx4 v[{P}:{P+3}], v{e+24+2*u}, s[48:51], 0 offen {SC}")
                if t < 3: a(f"v_add_u32 v{e+24+2*u}, v{e+24+2*u}, v{e+25+2*u}")
            else:
                a(f"buffer_store_dwordx4 v[{P}:{P+3}], v{e+24+2*u}, s[48:51], 0 offen offset:{t*512} {SC}")

def ln_epilogue_v(a):
    L = LN
    V_TOK, V_H, V_T, V_ACC, e = L.V_TOK, L.V_H, L.V_T, L.V_ACC, L.V_E
    S_MB, S_SL = L.S_MB, L.S_SL
    srd_s(a, 48, 6, ('L', ws.V), ws.V_SZ)
    a(f"""
    s_sub_u32 s45, s{S_SL}, 40
    s_lshl_b32 s45, s45, 5
    v_add_u32 v{V_T}, s45, v{V_TOK}             ; f
    v_mul_u32_u24 v{V_T+1}, 3277, v{V_T}
    v_lshrrev_b32 v{V_T+1}, 16, v{V_T+1}        ; head = f/20
    v_mul_u32_u24 v{V_T+2}, 20, v{V_T+1}
    v_sub_u32 v{V_T+2}, v{V_T}, v{V_T+2}        ; d
    v_bfe_u32 v{V_T+3}, v{V_T+2}, 2, 1
    v_lshlrev_b32 v{V_T+3}, 3, v{V_T+3}
    v_bfe_u32 v{V_T+4}, v{V_T+2}, 3, 1
    v_lshl_add_u32 v{V_T+3}, v{V_T+4}, 2, v{V_T+3}
    v_and_b32 v{V_T+4}, 3, v{V_T+2}
    v_add_u32 v{V_T+3}, v{V_T+3}, v{V_T+4}
    v_cmp_le_u32 vcc, 16, v{V_T+2}
    s_lshl_b32 s47, s{S_MB}, 2
    v_lshlrev_b32 v{V_T+1}, 6, v{V_T+1}
    v_cndmask_b32 v{V_T+3}, v{V_T+3}, v{V_T+2}, vcc
    v_add_u32 v{V_T+1}, s47, v{V_T+1}           ; head*64 + T0
    v_mul_u32_u24 v{V_T+1}, 1280, v{V_T+1}
    v_mul_u32_u24 v{V_T+4}, 320, v{V_H}
    v_add_u32 v{V_T+1}, v{V_T+1}, v{V_T+4}
    v_lshl_add_u32 v{e+24}, v{V_T+3}, 4, v{V_T+1}
    v_lshlrev_b32 v{V_T+5}, 4, v{V_H}
    v_add_u32 v{V_T+5}, {LDS_MISC}, v{V_T+5}
    v_lshlrev_b32 v{V_T+6}, 2, v{V_TOK}
    s_lshl_b32 s43, s{S_W}, 7
    v_add_u32 v{V_T+6}, s43, v{V_T+6}
    v_add_u32 v{V_T+6}, {LDS_MISC+1024}, v{V_T+6}
    ds_read_b32 v{e+26}, v{V_T+6}
    """)
    T = e + 32; AB = e + 56
    for t in range(4):
        for m in range(2):
            for q in range(2):
                jj = 2*m + q
                a(f"ds_read_b128 v[{AB+4*q}:{AB+4*q+3}], v{V_T+5} offset:{(32*t+8*jj)*4}")
                a(f"ds_read_b128 v[{AB+8+4*q}:{AB+8+4*q+3}], v{V_T+5} offset:{512+(32*t+8*jj)*4}")
            a("s_waitcnt lgkmcnt(0)")
            if t == 0 and m == 0: a("s_nop 4")
            accb = V_ACC + 16*t + 8*m
            for pr in range(4):
                a(f"v_pk_mul_f32 v[{T+2*pr}:{T+2*pr+1}], v[{AB+8+2*pr}:{AB+9+2*pr}], v[{e+26}:{e+27}] op_sel_hi:[1,0]")
            for pr in range(4):
                a(f"v_pk_fma_f32 v[{T+2*pr}:{T+2*pr+1}], v[{accb+2*pr}:{accb+2*pr+1}], v[{AB+2*pr}:{AB+2*pr+1}], v[{T+2*pr}:{T+2*pr+1}]")
            P = T + 16 + 4 * m
            for pr in range(4): a(f"v_cvt_pk_bf16_f32 v{P+pr}, v{T+2*pr}, v{T+2*pr+1}")
            if m == 0: a(f"s_movk_i32 s52, {t*1280}")
            a(f"buffer_store_dwordx4 v[{P}:{P+3}], v{e+24}, s[48:51], s52 offen offset:{m*640} {SC}")

class RS:
    V_LANE = 1; V_TOK = 2; V_G = 3; V_WOFF = 4; V_AOFF = 5; V_XOFF = 6; V_XC = 7
    V_R = 8; V_T = 12; V_XO = 20; V_WF = 32; V_ACC = 92; V_E = 112
    S_RB = 17; S_J = 18; S_MBK = 19
SLOT = 20480; NSLOT = 7

def rs_ids(a):
    R = RS
    a(f"""
    s_and_b32 s20, s{S_X}, 3
    s_lshl_b32 s20, s20, 3
    s_and_b32 s21, s{S_JX}, 7
    s_add_u32 s{R.S_RB}, s20, s21
    s_lshr_b32 s20, s{S_X}, 2
    s_lshl_b32 s20, s20, 2
    s_lshr_b32 s21, s{S_JX}, 3
    s_add_u32 s{R.S_J}, s20, s21
    s_lshr_b32 s{R.S_MBK}, s{R.S_RB}, 1
    """)

def rs_phase(a, mode, base, wait_fn):
    R = RS
    V_LANE, V_TOK, V_G, V_WOFF, V_AOFF, V_XOFF, V_R, V_T, V_XO, V_WF, V_ACC, e = (R.V_LANE, R.V_TOK, R.V_G, R.V_WOFF, R.V_AOFF, R.V_XOFF, R.V_R, R.V_T, R.V_XO, R.V_WF, R.V_ACC, R.V_E)
    S_RB, S_J = R.S_RB, R.S_J
    NKS = 20 if mode == "wo" else 54
    NG = (NKS + 3) // 4
    rs_ids(a)
    if mode == "wo": act, actsz, wt, wtsz = ws.O, ws.O_SZ, ws.WO, ws.WO_SZ
    else: act, actsz, wt, wtsz = ws.HH, ws.HH_SZ, ws.W2, ws.W2_SZ
    srd(a, 36, 6, wt, wtsz)
    a(f"""
    v_and_b32 v{V_LANE}, 63, v0
    v_lshlrev_b32 v{V_WOFF}, 4, v{V_LANE}
    s_mul_i32 s45, s{S_J}, {NKS*5120}
    s_mul_i32 s46, s{S_W}, 5120
    s_add_u32 s45, s45, s46
    """)
    ops = []
    def d_bundle(g, j):
        slot = g % NSLOT
        return ([f"s_add_u32 s49, s45, {g*SLOT + j*1024}", f"s_add_u32 m0, s46, {slot*SLOT + j*1024}", "s_nop 0",
                 f"buffer_load_dwordx4 v{V_WOFF}, s[36:39], s49 offen {SCW} lds"], ("D", g))
    def a_bundle(n):
        return ([f"s_add_u32 s49, s44, {n*4*32768}",
                 f"buffer_load_dwordx4 a[{4*n}:{4*n+3}], v{V_AOFF}, s[32:35], s49 offen {SCL}"], ("A", n >> 2))
    def emit(b):
        for l in b[0]: a(l)
        ops.append(b[1])
    NPRE = min(NG, NSLOT)
    for g in range(NPRE):
        for j in range(5): emit(d_bundle(g, j))
    a(f"""
    v_and_b32 v{V_TOK}, 15, v0
    v_bfe_u32 v{V_G}, v0, 4, 2
    v_mov_b32 v{V_R}, v{V_WOFF}
    v_add_u32 v{V_R+1}, 0x10000, v{V_WOFF}
    v_add_u32 v{V_R+2}, 0x20000, v{V_WOFF}
    v_lshlrev_b32 v{V_AOFF}, 15, v{V_G}
    v_lshl_add_u32 v{V_AOFF}, v{V_TOK}, 4, v{V_AOFF}
    s_lshl_b32 s19, s{S_RB}, 6
    s_lshl_b32 s20, s{S_W}, 4
    s_add_u32 s22, s19, s20
    v_add_u32 v{V_T}, s22, v{V_TOK}             ; token
    s_mul_i32 s20, s{S_J}, 10
    v_add_u32 v{V_T+1}, s20, v{V_G}
    v_lshlrev_b32 v{V_T+1}, 15, v{V_T+1}
    v_lshl_add_u32 v{V_XOFF}, v{V_T}, 4, v{V_T+1}
    v_lshrrev_b32 v{V_T+1}, 1, v{V_G}
    v_add_u32 v{V_T+1}, s20, v{V_T+1}
    v_add_u32 v{V_T+1}, 8, v{V_T+1}
    v_lshlrev_b32 v{V_T+1}, 15, v{V_T+1}
    v_lshl_add_u32 v{V_T+1}, v{V_T}, 4, v{V_T+1}
    v_and_b32 v{V_T+2}, 1, v{V_G}
    v_lshl_add_u32 v{RS.V_XC}, v{V_T+2}, 3, v{V_T+1}
    s_mov_b32 s23, {4*32768}
    s_lshl_b32 s44, s22, 4
    s_lshr_b32 s{R.S_MBK}, s{S_RB}, 1
    """)
    if mode == "wo":
        srd_sel(a, 24, M*D*2, 6, ws.X0, ws.XB)
        srd_s(a, 28, 6, ('L', ws.XA), M*D*2)
        srd_s(a, 40, 6, ('L', ws.STA), ws.STA_SZ)
    else:
        srd_s(a, 24, 6, ('L', ws.XA), M*D*2)
        a(f"""
        s_add_u32 s28, s6, {ws.XB}
        s_addc_u32 s29, s7, 0
        s_cmp_eq_u32 s{S_L}, 0
        s_cselect_b32 s28, s28, s8
        s_cselect_b32 s29, s29, s9
        s_and_b32 s29, s29, 0xffff
        s_mov_b32 s30, {M*D*2}
        s_mov_b32 s31, 0x20000
        """)
        srd(a, 40, 6, ws.STB, ws.STB_SZ)
    srd_s(a, 32, 6, ('L', act), actsz)
    a(f"""
    buffer_load_dwordx4 v[{V_XO}:{V_XO+3}], v{V_XOFF}, s[24:27], 0 offen {SCL}
    buffer_load_dwordx4 v[{V_XO+4}:{V_XO+7}], v{V_XOFF}, s[24:27], s23 offen {SCL}
    buffer_load_dwordx2 v[{V_XO+8}:{V_XO+9}], v{RS.V_XC}, s[24:27], 0 offen {SCL}
    """)
    ops += ["X", "X", "X"]
    stamp(a, 1)
    wait_fn()
    stamp(a, 2)
    NS = 4 * NG
    for n in range(8): emit(a_bundle(n))
    def wait_for(kind, g):
        last = max(i for i, o in enumerate(ops) if o == (kind, g))
        a(f"s_waitcnt vmcnt({len(ops) - 1 - last})")
    wait_for("A", 0)
    a("s_barrier")
    stamp(a, 3)
    def read(n, ft):
        g = n >> 2; slot = g % NSLOT
        o = slot*SLOT + (n & 3)*5120 + ft*1024
        buf = V_WF + 20*(n % 3)
        a(f"ds_read_b128 v[{buf+4*ft}:{buf+4*ft+3}], v{V_R+(o>>16)} offset:{o & 0xffff}")
    for ft in range(5): read(0, ft)
    for ft in range(5): read(1, ft)
    for n in range(NS):
        tau = n >> 2
        if n + 2 < NS and (n + 2) % 4 == 0:
            g = (n + 2) >> 2
            if g >= NPRE: wait_for("D", g)
            if NG > NPRE: a("s_barrier")
        if n % 4 == 0 and n > 0: wait_for("A", tau)
        a(f"s_waitcnt lgkmcnt({5 if n + 1 < NS else 0})")
        todo = []
        if tau + 2 < NG and (n & 3) < 2:
            todo = [a_bundle(4*(tau+2) + 2*(n & 3)), a_bundle(4*(tau+2) + 2*(n & 3) + 1)]
        if NPRE <= tau + NSLOT - 1 < NG and (n & 3) >= 2:
            gg = tau + NSLOT - 1
            todo = [d_bundle(gg, j) for j in ((0, 1, 2) if (n & 3) == 2 else (3, 4))]
        buf = V_WF + 20*(n % 3)
        for ft in range(5):
            acc = f"v[{V_ACC+4*ft}:{V_ACC+4*ft+3}]"
            c = "0" if n == 0 else acc
            a(f"v_mfma_f32_16x16x32_bf16 {acc}, v[{buf+4*ft}:{buf+4*ft+3}], a[{4*n}:{4*n+3}], {c}")
            if n + 2 < NS: read(n + 2, ft)
            if ft in (0, 2, 4) and todo: emit(todo.pop(0))
        assert not todo
    stamp(a, 4)
    a("s_nop 7")
    for q in range(10):
        a(f"v_lshlrev_b32 v{e+2*q}, 16, v{V_XO+q}")
        a(f"v_and_b32 v{e+2*q+1}, 0xffff0000, v{V_XO+q}")
    for i in range(20): a(f"v_add_f32 v{e+i}, v{e+i}, v{V_ACC+i}")
    for q in range(10): a(f"v_cvt_pk_bf16_f32 v{e+24+q}, v{e+2*q}, v{e+2*q+1}")
    if mode == "w2":
        a(f"""
        s_cmp_lg_u32 s{S_L}, 0
        s_cbranch_scc1 {base}_last
        """)
    a(f"""
    buffer_store_dwordx4 v[{e+24}:{e+27}], v{V_XOFF}, s[28:31], 0 offen {SC}
    buffer_store_dwordx4 v[{e+28}:{e+31}], v{V_XOFF}, s[28:31], s23 offen {SC}
    buffer_store_dwordx2 v[{e+32}:{e+33}], v{RS.V_XC}, s[28:31], 0 offen {SC}
    """)
    for q in range(10):
        a(f"v_lshlrev_b32 v{e+2*q}, 16, v{e+24+q}")
        a(f"v_and_b32 v{e+2*q+1}, 0xffff0000, v{e+24+q}")
    a(f"v_mov_b32 v{e+40}, 0")
    a(f"v_mov_b32 v{e+41}, 0")
    for i in range(20):
        a(f"v_add_f32 v{e+40}, v{e+40}, v{e+i}")
        a(f"v_fmac_f32 v{e+41}, v{e+i}, v{e+i}")
    a(f"""
    v_mov_b32 v{e+42}, v{e+40}
    v_mov_b32 v{e+43}, v{e+41}
    s_nop 1
    v_permlane32_swap_b32 v{e+40}, v{e+42}
    v_permlane32_swap_b32 v{e+41}, v{e+43}
    v_add_f32 v{e+40}, v{e+40}, v{e+42}
    v_add_f32 v{e+41}, v{e+41}, v{e+43}
    v_mov_b32 v{e+42}, v{e+40}
    v_mov_b32 v{e+43}, v{e+41}
    s_nop 1
    v_permlane16_swap_b32 v{e+40}, v{e+42}
    v_permlane16_swap_b32 v{e+41}, v{e+43}
    v_add_f32 v{e+40}, v{e+40}, v{e+42}
    v_add_f32 v{e+41}, v{e+41}, v{e+43}
    v_add_u32 v{V_T}, s22, v{V_TOK}
    v_lshlrev_b32 v{V_T}, 3, v{V_T}
    s_lshl_b32 s49, s{S_J}, 14
    v_mov_b32 v{V_T+1}, 0x7ffffff0
    v_cmp_eq_u32 vcc, 0, v{V_G}
    s_nop 1
    v_cndmask_b32 v{V_T}, v{V_T+1}, v{V_T}, vcc
    buffer_store_dwordx2 v[{e+40}:{e+41}], v{V_T}, s[40:43], s49 offen {SC}
    """)
    if mode == "w2":
        a(f"s_branch {base}_done")
        a.label(f"{base}_last")
        a(f"""
        v_add_u32 v{V_T}, s22, v{V_TOK}
        v_mul_u32_u24 v{V_T}, 1280, v{V_T}
        s_mul_i32 s49, s{S_J}, 160
        v_lshl_add_u32 v{V_T+1}, v{V_G}, 4, v{V_T}
        v_lshl_add_u32 v{V_T+2}, v{V_G}, 3, v{V_T}
        buffer_store_dwordx4 v[{e+24}:{e+27}], v{V_T+1}, s[28:31], s49 offen
        buffer_store_dwordx4 v[{e+28}:{e+31}], v{V_T+1}, s[28:31], s49 offen offset:64
        buffer_store_dwordx2 v[{e+32}:{e+33}], v{V_T+2}, s[28:31], s49 offen offset:128
        """)
        if ASM.STAMPS: a("s_waitcnt vmcnt(0)")
        stamp(a, 5)
        dbgw(a, 8)
        a("s_endpgm")
        a.label(f"{base}_done")

P_WQKV = 60; P_WO = 62; P_W1 = 64; P_W2 = 66
LDS_R1 = 0; LDS_R2 = 32768

def unitA_load(a, n, which, vb):
    N = 1920 if which == "qkv" else 1728
    ptr = P_WQKV if which == "qkv" else P_W1
    srd(a, 20, ptr, 0, 640 * N * 2)
    a(f"""
    s_lshr_b32 s18, s17, 3                  ; nt
    s_and_b32 s19, s17, 7                   ; k8
    v_and_b32 v3, 31, v0
    v_lshrrev_b32 v4, 5, v0
    v_lshrrev_b32 v5, 3, v3
    v_and_b32 v6, 7, v3                     ; Q
    s_lshl_b32 s33, s18, 2
    v_add_u32 v7, s33, v5                   ; slice
    """)
    if which == "qkv":
        a(f"""
        s_cmp_ge_u32 s18, 10
        s_cbranch_scc1 {n}_vcol
        v_lshrrev_b32 v8, 2, v6
        v_lshlrev_b32 v8, 1, v8
        v_and_b32 v9, 1, v6
        v_add_u32 v8, v8, v9                    ; cidx
        v_bfe_u32 v9, v6, 1, 1                  ; eh
        v_cmp_le_u32 vcc, 20, v7
        s_nop 1
        v_cndmask_b32 v10, 0, 1, vcc            ; sec
        v_mul_u32_u24 v11, 20, v10
        v_sub_u32 v11, v7, v11
        v_lshl_add_u32 v11, v11, 2, v8          ; chunk
        v_mul_u32_u24 v12, 205, v11
        v_lshrrev_b32 v12, 10, v12              ; p
        v_mul_u32_u24 v13, 5, v12
        v_sub_u32 v13, v11, v13                 ; r
        v_lshrrev_b32 v14, 1, v13
        v_and_b32 v15, 1, v13
        v_lshlrev_b32 v15, 3, v15
        v_lshl_add_u32 v15, v9, 2, v15
        v_cmp_eq_u32 vcc, 4, v13
        v_mov_b32 v16, 16
        s_nop 0
        v_cndmask_b32 v14, v14, v9, vcc
        v_cndmask_b32 v15, v15, v16, vcc
        v_lshl_add_u32 v14, v12, 1, v14         ; head
        v_mul_u32_u24 v14, 20, v14
        v_add_u32 v14, v14, v15
        v_mul_u32_u24 v10, 640, v10
        v_add_u32 v8, v14, v10                  ; col
        s_branch {n}_go
        """)
        a.label(f"{n}_vcol")
        a("""
        v_lshlrev_b32 v8, 5, v7
        v_lshl_add_u32 v8, v6, 2, v8
        """)
        a.label(f"{n}_go")
    else:
        a("""
        v_lshlrev_b32 v8, 5, v7
        v_lshrrev_b32 v9, 2, v6
        v_lshl_add_u32 v8, v9, 4, v8
        v_and_b32 v9, 1, v6
        v_lshl_add_u32 v8, v9, 3, v8
        v_bfe_u32 v9, v6, 1, 1
        v_lshl_add_u32 v8, v9, 2, v8
        """)
    a(f"""
    v_mul_u32_u24 v9, {N}, v4
    v_add_u32 v9, v9, v8
    v_lshlrev_b32 v9, 1, v9
    s_mul_i32 s34, s19, {80*N*2}
    """)
    for p in range(10):
        a(f"buffer_load_dwordx2 v[{vb+2*p}:{vb+2*p+1}], v9, s[20:23], s34 offen")
        if p < 9: a(f"s_add_u32 s34, s34, {8*N*2}")

def unitA_proc(a, n, which, vb, lds, unit_sgpr):
    NF = 1920 if which == "qkv" else 1728
    wt, wtsz, cs, cssz = (ws.WQKV, ws.WQKV_SZ, ws.CSQ, ws.CSQ_SZ) if which == "qkv" else (ws.W1, ws.W1_SZ, ws.CS1, ws.CS1_SZ)
    a(f"""
    s_lshr_b32 s18, {unit_sgpr}, 3
    s_and_b32 s19, {unit_sgpr}, 7
    v_lshlrev_b32 v10, 3, v0
    v_add_u32 v10, {lds}, v10
    """)
    for p in range(10):
        a(f"ds_write_b64 v10, v[{vb+2*p}:{vb+2*p+1}] offset:{p*2048}")
    srd(a, 24, 6, wt, wtsz)
    srd(a, 28, 6, cs, cssz)
    a(f"""
    v_and_b32 v1, 63, v0
    v_lshrrev_b32 v11, 4, v1                ; G
    v_bfe_u32 v12, v1, 2, 2                 ; r
    v_and_b32 v13, 3, v1                    ; c'
    v_lshrrev_b32 v14, 1, v11
    v_lshl_add_u32 v14, v14, 3, v12
    v_lshlrev_b32 v14, 8, v14
    v_and_b32 v15, 1, v11
    v_lshl_add_u32 v15, v15, 2, v13
    s_lshl_b32 s33, s{S_W}, 3
    v_add_u32 v15, s33, v15
    v_lshl_add_u32 v14, v15, 3, v14
    v_add_u32 v14, {lds}, v14
    v_mov_b32 v16, 0x3f803f80
    v_mov_b32 v17, 0x3f803f80
    v_mov_b32 v18, 0x3f803f80
    v_mov_b32 v19, 0x3f803f80
    s_waitcnt lgkmcnt(0)
    s_barrier
    """)
    F = 70
    for ks in range(5):
        for u in range(2):
            a(f"ds_read_b64_tr_b16 v[{F+4*ks+2*u}:{F+4*ks+2*u+1}], v14 offset:{ks*4096+u*1024}")
    a(f"""
    s_lshl_b32 s33, s18, 2
    s_add_u32 s33, s33, s{S_W}
    s_mul_i32 s34, s33, 40
    s_mul_i32 s35, s19, 5
    s_add_u32 s34, s34, s35
    s_lshl_b32 s34, s34, 10
    v_lshlrev_b32 v10, 4, v1
    """)
    for ks in range(5):
        a(f"s_waitcnt lgkmcnt({8-2*ks})")
        a(f"buffer_store_dwordx4 v[{F+4*ks}:{F+4*ks+3}], v10, s[24:27], s34 offen {SC}")
        c = "0" if ks == 0 else "v[96:111]"
        a(f"v_mfma_f32_32x32x16_bf16 v[96:111], v[16:19], v[{F+4*ks}:{F+4*ks+3}], {c}")
        if ks < 4: a("s_add_u32 s34, s34, 1024")
    a(f"""
    v_and_b32 v11, 31, v1
    s_lshl_b32 s33, s33, 5
    v_add_u32 v11, s33, v11
    v_lshlrev_b32 v11, 2, v11
    v_mov_b32 v12, 0x7ffffff0
    v_cmp_gt_u32 vcc, {NF}, v11             ; byte offset < NF*4 checked below
    s_mul_i32 s35, s19, {NF*4}
    v_lshrrev_b32 v13, 2, v11
    v_cmp_gt_u32 vcc, {NF}, v13
    s_nop 7
    v_cndmask_b32 v11, v12, v11, vcc
    s_nop 3
    buffer_store_dword v96, v11, s[28:31], s35 offen {SC}
    """.replace(f"v_cmp_gt_u32 vcc, {NF}, v11             ; byte offset < NF*4 checked below\n", "").replace(f"v_cmp_gt_u32 vcc, {NF}, v13", f"v_mov_b32 v15, {NF}\n    v_cmp_gt_u32 vcc, v15, v13"))

def unitB_load(a, n, vb):
    a("""
    s_mul_i32 s35, s40, 160
    v_mov_b32 v19, 0x7ffffff0
    """)
    for p in range(7):
        a(f"""
        v_add_u32 v3, {256*p}, v0               ; i
        v_mul_u32_u24 v4, 6554, v3
        v_lshrrev_b32 v4, 16, v4                ; row
        v_mul_u32_u24 v5, 10, v4
        v_sub_u32 v5, v3, v5                    ; piece
        v_add_u32 v6, s41, v4                   ; k
        s_cmp_eq_u32 s43, 0
        s_cbranch_scc1 {n}_row{p}
        v_lshrrev_b32 v7, 3, v6                 ; chunk
        v_and_b32 v8, 7, v6
        v_mul_u32_u24 v9, 205, v7
        v_lshrrev_b32 v9, 10, v9
        v_mul_u32_u24 v10, 5, v9
        v_sub_u32 v10, v7, v10
        v_lshrrev_b32 v11, 1, v10
        v_and_b32 v12, 1, v10
        v_lshl_add_u32 v12, v12, 3, v8
        v_lshrrev_b32 v13, 2, v8
        v_and_b32 v14, 3, v8
        v_add_u32 v14, 16, v14
        v_cmp_eq_u32 vcc, 4, v10
        s_nop 1
        v_cndmask_b32 v11, v11, v13, vcc
        v_cndmask_b32 v12, v12, v14, vcc
        v_lshl_add_u32 v11, v9, 1, v11
        v_mul_u32_u24 v11, 20, v11
        v_add_u32 v6, v11, v12
        """)
        a.label(f"{n}_row{p}")
        a(f"""
        v_mul_u32_u24 v6, 1280, v6
        v_lshl_add_u32 v6, v5, 4, v6
        v_cmp_gt_u32 vcc, s42, v4
        s_nop 1
        v_cndmask_b32 v6, v19, v6, vcc
        buffer_load_dwordx4 v[{vb+4*p}:{vb+4*p+3}], v6, s[44:47], s35 offen
        """)

def unitB_proc(a, n, vb, lds):
    a(f"""
    v_lshlrev_b32 v10, 4, v0
    v_add_u32 v10, {lds}, v10
    """)
    for p in range(7):
        a(f"ds_write_b128 v10, v[{vb+4*p}:{vb+4*p+3}] offset:{p*4096}")
    a(f"""
    v_and_b32 v1, 63, v0
    v_lshrrev_b32 v11, 4, v1                ; kg
    v_bfe_u32 v12, v1, 2, 2                 ; r
    v_and_b32 v13, 3, v1                    ; c'
    v_lshl_add_u32 v12, v11, 3, v12
    v_mul_u32_u24 v12, 160, v12
    v_add_u32 v12, {lds}, v12
    v_lshl_add_u32 v14, v13, 4, v12
    v_lshl_add_u32 v15, v13, 3, v12
    v_lshlrev_b32 v10, 4, v1
    s_mov_b32 s50, s{S_W}
    s_waitcnt lgkmcnt(0)
    s_barrier
    """)
    a.label(f"{n}_ks")
    a(f"""
    s_add_u32 s33, s48, s50
    s_cmp_ge_u32 s33, s49
    s_cbranch_scc1 {n}_done
    s_mul_i32 s36, s50, {32*160}
    v_add_u32 v16, s36, v14
    v_add_u32 v17, s36, v15
    """)
    F = 70
    for ft in range(5):
        for u in range(2):
            if ft < 4: a(f"ds_read_b64_tr_b16 v[{F+4*ft+2*u}:{F+4*ft+2*u+1}], v16 offset:{u*640 + (0, 8, 64, 72)[ft]}")
            else: a(f"ds_read_b64_tr_b16 v[{F+4*ft+2*u}:{F+4*ft+2*u+1}], v17 offset:{u*640 + 128}")
    a(f"""
    s_mul_i32 s34, s40, s49
    s_add_u32 s34, s34, s33
    s_mul_i32 s34, s34, 5120
    """)
    for ft in range(5):
        a(f"s_waitcnt lgkmcnt({8-2*ft})")
        a(f"buffer_store_dwordx4 v[{F+4*ft}:{F+4*ft+3}], v10, s[24:27], s34 offen {SC}")
        if ft < 4: a("s_add_u32 s34, s34, 1024")
    a(f"""
    s_add_u32 s50, s50, 4
    s_mul_i32 s36, s50, 32
    s_cmp_lt_u32 s36, s42
    s_cbranch_scc1 {n}_ks
    """)
    a.label(f"{n}_done")

def unitC_load(a, vb):
    a(f"""
    s_sub_u32 s33, s2, 120
    s_lshl_b32 s33, s33, 4                  ; first token of the workgroup
    s_lshl_b32 s34, s{S_W}, 2
    s_add_u32 s34, s34, s33
    v_and_b32 v1, 63, v0
    v_lshrrev_b32 v3, 4, v1
    v_add_u32 v3, s34, v3                   ; row
    v_and_b32 v4, 15, v1
    v_mul_u32_u24 v5, 1280, v3
    v_lshl_add_u32 v5, v4, 4, v5
    """)
    srd(a, 20, 4, 0, M * D * 2)
    for i in range(5):
        a(f"buffer_load_dwordx4 v[{vb+4*i}:{vb+4*i+3}], v5, s[20:23], 0 offen offset:{256*i}")

def unitC_proc(a, vb, lds):
    a(f"""
    s_sub_u32 s33, s2, 120
    s_lshl_b32 s33, s33, 4
    v_and_b32 v1, 63, v0
    v_and_b32 v4, 15, v1                    ; sub
    v_lshrrev_b32 v3, 4, v0                 ; token in the workgroup (0..15)
    v_lshlrev_b32 v5, 8, v4
    v_lshl_add_u32 v5, v3, 4, v5
    v_add_u32 v5, {lds}, v5
    """)
    for i in range(5):
        a(f"ds_write_b128 v5, v[{vb+4*i}:{vb+4*i+3}] offset:{i*4096}")
    srd(a, 24, 6, ws.X0, ws.X0_SZ)
    srd(a, 28, 6, ws.ST0, ws.ST0_SZ)
    a("""
    v_mov_b32 v6, 0
    v_mov_b32 v7, 0
    """)
    for i in range(20):
        r = vb + i
        a(f"""
        v_lshlrev_b32 v8, 16, v{r}
        v_and_b32 v9, 0xffff0000, v{r}
        v_add_f32 v6, v6, v8
        v_fmac_f32 v7, v8, v8
        v_add_f32 v6, v6, v9
        v_fmac_f32 v7, v9, v9
        """)
    for rot in (8, 4, 2, 1):
        a(f"""
        s_nop 1
        v_add_f32_dpp v6, v6, v6 row_ror:{rot} row_mask:0xf bank_mask:0xf
        v_add_f32_dpp v7, v7, v7 row_ror:{rot} row_mask:0xf bank_mask:0xf
        """)
    a(f"""
    v_add_u32 v10, s33, v3
    v_lshlrev_b32 v10, 3, v10
    v_mov_b32 v11, 0x7ffffff0
    v_cmp_eq_u32 vcc, 0, v4
    v_lshlrev_b32 v12, 4, v0
    v_add_u32 v12, {lds}, v12
    v_cndmask_b32 v10, v11, v10, vcc
    buffer_store_dwordx2 v[6:7], v10, s[28:31], 0 offen {SC}
    s_waitcnt lgkmcnt(0)
    s_barrier
    """)
    F = 70
    for i in range(5):
        a(f"ds_read_b128 v[{F+4*i}:{F+4*i+3}], v12 offset:{i*4096}")
    a(f"""
    v_lshrrev_b32 v13, 4, v0
    v_lshlrev_b32 v13, 15, v13
    v_and_b32 v14, 15, v0
    v_add_u32 v14, s33, v14
    v_lshl_add_u32 v13, v14, 4, v13
    s_mov_b32 s34, 0
    """)
    for i in range(5):
        a(f"s_waitcnt lgkmcnt({4-i})")
        a(f"buffer_store_dwordx4 v[{F+4*i}:{F+4*i+3}], v13, s[24:27], s34 offen {SC}")
        if i < 4: a(f"s_add_u32 s34, s34, {16*32768}")

def p0_phase(a, n):
    V1 = 20; V2 = 40
    a(f"""
    s_cmp_lt_u32 s2, 120
    s_cbranch_scc1 {n}_l1a
    s_cmp_lt_u32 s2, 248
    s_cbranch_scc1 {n}_l1c
    s_cmp_lg_u32 s2, 255
    s_cbranch_scc1 {n}_l2
    """)
    srd(a, 20, 6, ws.CNT, ws.CNT_SZ)
    a("""
    v_mov_b32 v20, 0
    v_mov_b32 v21, 0
    v_mov_b32 v22, 0
    v_mov_b32 v23, 0
    v_lshlrev_b32 v5, 4, v0
    """)
    for i in range(ws.CNT_SZ // 4096):
        a(f"s_movk_i32 s36, {i*4096}")
        a(f"buffer_store_dwordx4 v[20:23], v5, s[20:23], s36 offen {SC}")
    a(f"""
    s_waitcnt vmcnt(0)
    s_barrier
    v_mov_b32 v5, 0
    v_mov_b32 v6, 1
    s_mov_b64 exec, 1
    global_store_dword v5, v6, s[10:11] sc1
    s_mov_b64 exec, -1
    s_branch {n}_l2
    """)
    a.label(f"{n}_l1a")
    a("s_mov_b32 s17, s2")
    unitA_load(a, f"{n}_a1", "qkv", V1)
    a(f"s_branch {n}_l2")
    a.label(f"{n}_l1c")
    unitC_load(a, V1)
    a.label(f"{n}_l2")
    a(f"""
    s_cmp_lt_u32 s2, 112
    s_cbranch_scc0 {n}_l2b
    s_mov_b32 s17, s2
    """)
    unitA_load(a, f"{n}_a2", "w1", V2)
    a(f"s_branch {n}_p1")
    a.label(f"{n}_l2b")
    a(f"""
    s_cmp_lt_u32 s2, 224
    s_cbranch_scc0 {n}_l2o
    s_sub_u32 s33, s2, 112
    s_mul_i32 s40, s33, 4682
    s_lshr_b32 s40, s40, 16                 ; j
    s_mul_i32 s34, s40, 14
    s_sub_u32 s34, s33, s34                 ; kr
    s_lshl_b32 s41, s34, 7
    s_movk_i32 s42, 128
    s_mov_b32 s43, 0
    s_lshl_b32 s48, s34, 2
    s_movk_i32 s49, 54
    """)
    srd(a, 44, P_W2, 0, 1728 * 640 * 2)
    a(f"s_branch {n}_l2g")
    a.label(f"{n}_l2o")
    a(f"""
    s_sub_u32 s33, s2, 224
    s_lshr_b32 s40, s33, 2                  ; j
    s_and_b32 s34, s33, 3
    s_mul_i32 s41, s34, 160
    s_movk_i32 s42, 160
    s_mov_b32 s43, 1
    s_mul_i32 s48, s34, 5
    s_movk_i32 s49, 20
    """)
    srd(a, 44, P_WO, 0, 640 * 640 * 2)
    a.label(f"{n}_l2g")
    unitB_load(a, f"{n}_b", V2)
    a.label(f"{n}_p1")
    stamp(a, 1)
    a(f"""
    s_waitcnt vmcnt(7)
    s_cmp_lt_u32 s2, 120
    s_cbranch_scc1 {n}_p1a
    s_cmp_lt_u32 s2, 248
    s_cbranch_scc0 {n}_arr
    """)
    unitC_proc(a, V1, LDS_R1)
    a(f"s_branch {n}_arr")
    a.label(f"{n}_p1a")
    unitA_proc(a, f"{n}_pa1", "qkv", V1, LDS_R1, "s2")
    a.label(f"{n}_arr")
    stamp(a, 2)
    dbgw(a, 2)
    a(f"""
    s_cmp_lg_u32 s{S_W}, 0
    s_cbranch_scc1 {n}_flag_ok
    v_mov_b32 v250, 0
    s_mov_b32 s101, 0
    """)
    a.label(f"{n}_flag")
    a(f"""
    global_load_dword v251, v250, s[10:11] sc1
    s_add_u32 s101, s101, 1
    s_waitcnt vmcnt(0)
    v_readfirstlane_b32 s100, v251
    s_cmp_ge_u32 s101, {SPIN_MAX}
    s_cbranch_scc1 {n}_flag_ok
    s_cmp_lg_u32 s100, 0
    s_cbranch_scc1 {n}_flag_ok
    s_sleep 1
    s_branch {n}_flag
    """)
    a.label(f"{n}_flag_ok")
    a("s_lshr_b32 s17, s2, 4")
    arrive_tree(a, "s17", C_P0, 16, T_P0)
    stamp(a, 3)
    a(f"""
    s_cmp_lt_u32 s2, 112
    s_cbranch_scc0 {n}_p2b
    """)
    unitA_proc(a, f"{n}_pa2", "w1", V2, LDS_R2, "s2")
    a(f"s_branch {n}_p2d")
    a.label(f"{n}_p2b")
    a(f"""
    s_add_u32 s24, s6, {ws.W2}
    s_addc_u32 s25, s7, 0
    s_add_u32 s100, s6, {ws.WO}
    s_addc_u32 s101, s7, 0
    s_cmp_eq_u32 s43, 0
    s_cselect_b32 s24, s24, s100
    s_cselect_b32 s25, s25, s101
    s_and_b32 s25, s25, 0xffff
    s_mov_b32 s26, {ws.WO_SZ}
    s_cselect_b32 s26, {ws.W2_SZ}, s26
    s_mov_b32 s27, 0x20000
    """)
    unitB_proc(a, f"{n}_pb", V2, LDS_R2)
    a.label(f"{n}_p2d")
    stamp(a, 4)
    wait_tree(a, T_P0, 16)
    stamp(a, 5)

LDS_MEGA = LDS_X + 1024 + 512

def gen_mega(a, name):
    kernel_header(a, name)
    n = name
    a(f"""
    s_cmp_ge_u32 s2, 256
    s_cbranch_scc1 {n}_end
    s_load_dwordx2 s[4:5], s[0:1], 0
    s_load_dwordx2 s[6:7], s[0:1], 64
    s_load_dwordx4 s[8:11], s[0:1], 48
    s_load_dwordx4 s[{P_WQKV}:{P_WQKV+3}], s[0:1], 8
    s_load_dwordx4 s[{P_W1}:{P_W1+3}], s[0:1], 32
    v_lshrrev_b32 v1, 6, v0
    s_and_b32 s{S_X}, s2, 7
    v_readfirstlane_b32 s{S_W}, v1
    s_lshr_b32 s{S_JX}, s2, 3
    s_mov_b32 s{S_L}, 0
    s_mov_b32 s{S_LOFF}, 0
    s_mov_b32 s{S_CL}, 0
    s_waitcnt lgkmcnt(0)
    s_add_u32 s{S_CB}, s6, {ws.CNT}
    s_addc_u32 s{S_CB+1}, s7, 0
    """)
    PH[0] = 5; stamp(a, 0)
    dbgw(a, 1)
    p0_phase(a, f"{n}_p0")
    a.label(f"{n}_layer")
    def w_qkv():
        _uid[0] += 1; u = _uid[0]
        a(f"s_cmp_eq_u32 s{S_L}, 0")
        a(f"s_cbranch_scc1 skipw_{u}")
        wait(a, f"s{LN.S_MB}", C_DN, 1, 16, prev_layer=True)
        a.label(f"skipw_{u}")
    PH[0] = 0; stamp(a, 0)
    ln_phase(a, "qkv", f"{n}_qkv", w_qkv)
    stamp(a, 5)
    arrive_tree(a, f"s{LN.S_MB}", C_QKV, 16, T_QKV)
    PH[0] = 1; stamp(a, 0)
    k_attn2.attn_phase(a, f"{n}_att", 6, ('L', ws.Q), ('L', ws.K), ('L', ws.V), ('L', ws.O), sc=SC, scl=SCL,
                       srd_fn=lambda d, off, size: srd_s(a, d, 6, off, size),
                       wait_fn=lambda: wait_tree(a, T_QKV, 16), stamp_fn=stamp)
    stamp(a, 5)
    arrive(a, f"s{k_attn2.S_QB}", C_ATT)
    PH[0] = 2; stamp(a, 0)
    def w_wo():
        a(f"s_lshr_b32 s21, s{RS.S_RB}, 2")
        wait(a, "s21", C_ATT, 1, 32)
    rs_phase(a, "wo", f"{n}_wo", w_wo)
    stamp(a, 5)
    arrive(a, f"s{RS.S_MBK}", C_WO)
    PH[0] = 3; stamp(a, 0)
    ln_phase(a, "w1", f"{n}_up", lambda: wait(a, f"s{LN.S_MB}", C_WO, 1, 16))
    stamp(a, 5)
    arrive(a, f"s{LN.S_MB}", C_UP)
    PH[0] = 4; stamp(a, 0)
    rs_phase(a, "w2", f"{n}_dn", lambda: wait(a, f"s{RS.S_MBK}", C_UP, 1, 16))
    stamp(a, 5)
    arrive(a, f"s{RS.S_MBK}", C_DN)
    a(f"""
    s_mov_b32 s{S_L}, 1
    s_mov_b32 s{S_LOFF}, {LAYER_SZ}
    s_mov_b32 s{S_CL}, {NCNT*128}
    s_branch {n}_layer
    """)
    a.label(f"{n}_end")
    a("s_endpgm")
    return kernel_desc(name, 256, 256, 102)
```

```python
import sys, os
sys.path.insert(0, os.path.dirname(os.path.abspath(__file__)))
from asm import *
from layout import *
import k_prep, k_lngemm, k_attn, k_attn2, k_resgemm

NAME = "interleave_layers__mha_block__dense_activation_silu__prompt"
HDR = """; Kernarg layout for this problem (72 bytes, ptrs only, base s[0:1]):
"""
def build_mega2():
    import mega2
    a = Asm()
    KN = NAME + "_kernel"
    descs = [mega2.gen_mega(a, KN)]
    hdr = HDR
    hdr += f"; @launch grid=(256,1,1) block=(256,1,1) lds={mega2.LDS_MEGA}\n"
    out = hdr + '.amdgcn_target "amdgcn-amd-amdhsa--gfx950"\n' + a.text()
    out += '.section .rodata,"a"\n'
    for d in descs:
        for blk in d.split(".amdhsa_kernel ")[1:]:
            out += ".p2align 6\n.amdhsa_kernel " + blk
    return out

def build_mega():
    if os.environ.get("MEGA") == "2": return build_mega2()
    import mega
    a = Asm()
    descs = [k_prep.gen_prep(a, "prep_kernel"), mega.gen_mega(a, "mega_kernel")]
    hdr = HDR
    hdr += f"; @launch kernel=prep_kernel grid=({k_prep.NWG_PREP},1,1) block=(256,1,1) lds={k_prep.LDS_PREP}\n"
    hdr += f"; @launch kernel=mega_kernel grid=(256,1,1) block=(256,1,1) lds={mega.LDS_MEGA}\n"
    out = hdr + '.amdgcn_target "amdgcn-amd-amdhsa--gfx950"\n' + a.text()
    out += '.section .rodata,"a"\n'
    for d in descs:
        for blk in d.split(".amdhsa_kernel ")[1:]:
            out += ".p2align 6\n.amdhsa_kernel " + blk
    return out

def build(launches=None):
    if os.environ.get("MEGA"): return build_mega()
    a = Asm()
    descs = []
    descs.append(k_prep.gen_prep(a, "prep_kernel"))
    descs.append(k_lngemm.gen_lngemm(a, "qkv", [("qkv1_kernel", 0), ("qkv2_kernel", 1)]))
    ATT2 = not os.environ.get("ATT1")
    descs.append(k_attn2.gen_attn2(a, "attn_kernel") if ATT2 else k_attn.gen_attn(a, "attn_kernel"))
    descs.append(k_resgemm.gen_resgemm(a, "wo", [("wo1_kernel", 0), ("wo2_kernel", 1)]))
    descs.append(k_lngemm.gen_lngemm(a, "w1", [("up1_kernel", 0), ("up2_kernel", 1)]))
    descs.append(k_resgemm.gen_resgemm(a, "w2", [("down1_kernel", 0), ("down2_kernel", 1)]))
    L = {
     "prep": ("prep_kernel", k_prep.NWG_PREP, 256, k_prep.LDS_PREP),
     "qkv1": ("qkv1_kernel", 256, 256, k_lngemm.LDS_LN),
     "qkv2": ("qkv2_kernel", 256, 256, k_lngemm.LDS_LN),
     "attn": ("attn_kernel", 256, 256, k_attn2.LDS_ATT) if ATT2 else ("attn_kernel", 256, 512, k_attn.LDS_ATT),
     "wo1": ("wo1_kernel", 256, 256, k_resgemm.LDS_RES_WO),
     "wo2": ("wo2_kernel", 256, 256, k_resgemm.LDS_RES_WO),
     "up1": ("up1_kernel", 256, 256, k_lngemm.LDS_LN),
     "up2": ("up2_kernel", 256, 256, k_lngemm.LDS_LN),
     "down1": ("down1_kernel", 256, 256, k_resgemm.LDS_RES_W2),
     "down2": ("down2_kernel", 256, 256, k_resgemm.LDS_RES_W2),
    }
    if os.environ.get("NOOPS"):
        kernel_header(a, "noop_kernel"); a("s_endpgm")
        descs.append(kernel_desc("noop_kernel", 8, 0, 16))
        L["noop"] = ("noop_kernel", 256, 256, 0)
    order = launches or ["prep", "qkv1", "attn", "wo1", "up1", "down1", "qkv2", "attn", "wo2", "up2", "down2"]
    if os.environ.get("NOOPS"):
        nn = int(os.environ["NOOPS"]); order = order[:6] + ["noop"] * nn + order[6:]
    if os.environ.get("TWICE"): order = order + order
    if os.environ.get("PREPX"): order = ["prep"] * int(os.environ["PREPX"]) + order[1:]
    hdr = HDR
    for k in order:
        n, g, b, l = L[k]
        hdr += f"; @launch kernel={n} grid=({g},1,1) block=({b},1,1) lds={l}\n"
    body = a.text()
    if os.environ.get("DBGT"):
        import re
        idx = {"prep_kernel": 0, "qkv1_kernel": 1, "wo1_kernel": 3, "up1_kernel": 4, "down1_kernel": 5, "qkv2_kernel": 6,
               "wo2_kernel": 8, "up2_kernel": 9, "down2_kernel": 10}
        def st(i, tag):
            return f'''    s_cmp_lg_u32 s2, 0
    s_cbranch_scc1 dbgt_skip_{tag}
    s_load_dwordx2 s[60:61], s[0:1], 56
    s_memrealtime s[62:63]
    s_waitcnt lgkmcnt(0)
    s_sub_u32 s60, s60, {512*i - 4*i}
    s_subb_u32 s61, s61, 0
    v_mov_b32 v1, 0
    v_mov_b32 v2, s62
    global_store_dword v1, v2, s[60:61]
    s_add_u32 s60, s60, {512*11}
    s_addc_u32 s61, s61, 0
    global_store_dword v1, v2, s[60:61]
dbgt_skip_{tag}:
'''
        for k, i in idx.items():
            body = body.replace(f"\n{k}:\n", f"\n{k}:\n" + st(i, k))
        body = body.replace("\nattn_kernel:\n", "\nattn_kernel:\n" + st(2, "a1") + "attn_common:\n")
        body += ".text\n.globl attn2_kernel\n.p2align 8\n.type attn2_kernel,@function\nattn2_kernel:\n" + st(7, "a2") + "    s_branch attn_common\n"
        body += ".text\n.globl fin_kernel\n.p2align 8\n.type fin_kernel,@function\nfin_kernel:\n" + st(11, "fin") + "    s_endpgm\n"
        descs.append(descs[2].replace("attn_kernel", "attn2_kernel"))
        descs.append(kernel_desc("fin_kernel", 8, 0, 72))
        descs = [d.replace("next_free_sgpr 48", "next_free_sgpr 72").replace("next_free_sgpr 64", "next_free_sgpr 72") for d in descs]
        lines = hdr.split("\n")
        li = [i for i, l in enumerate(lines) if l.startswith("; @launch")]
        lines[li[7]] = lines[li[7]].replace("attn_kernel", "attn2_kernel")
        lines.insert(li[-1] + 1, "; @launch kernel=fin_kernel grid=(1,1,1) block=(64,1,1) lds=0")
        hdr = "\n".join(lines)
    out = hdr + '.amdgcn_target "amdgcn-amd-amdhsa--gfx950"\n' + body
    out += '.section .rodata,"a"\n'
    for d in descs:
        for blk in d.split(".amdhsa_kernel ")[1:]:
            out += ".p2align 6\n.amdhsa_kernel " + blk
    return out

if __name__ == "__main__":
    import asm as ASM
    if os.environ.get("STAMPS"): ASM.STAMPS = True
    dst = sys.argv[1] if len(sys.argv) > 1 else f"cdna_kernels/{NAME}.s"
    open(dst, "w").write(build())
    print("wrote", dst, os.path.getsize(dst))
```

```python
import os, math, struct
from asm import *
import asm as ASM
from layout3 import *
import k_attn2

EXP = os.environ.get("EXP", "")
SC = "sc1"
SCL = os.environ.get("SCL", "sc1")
SCW = os.environ.get("SCW", "sc1")
def f32hex(x): return "0x%08x" % struct.unpack("<I", struct.pack("<f", x))[0]
QSCALE = (DH ** -0.5) * math.log2(math.e)
LOG2E = math.log2(math.e)

S_X = 12; S_JX = 13; S_L = 14; S_LOFF = 15; S_W = 16
S_CL = 97
S_CB = 98
SPIN_MAX = 1 << 18

def srd_s(a, d, ptr, off, size):
    if isinstance(off, tuple):
        a(f"s_add_u32 s{d}, s{S_LOFF}, {off[1]}")
        a(f"s_add_u32 s{d}, s{d}, s{ptr}")
        a(f"s_addc_u32 s{d+1}, s{ptr+1}, 0")
        a(f"s_and_b32 s{d+1}, s{d+1}, 0xffff")
        a(f"s_mov_b32 s{d+2}, {size}")
        a(f"s_mov_b32 s{d+3}, 0x20000")
    else:
        srd(a, d, ptr, off, size)

def srd_sel(a, d, size, first_ptr, first_off, ws_off):
    a(f"""
    s_add_u32 s{d}, s6, {ws_off}
    s_addc_u32 s{d+1}, s7, 0
    s_add_u32 s100, s{first_ptr}, {first_off}
    s_addc_u32 s101, s{first_ptr+1}, 0
    s_cmp_eq_u32 s{S_L}, 0
    s_cselect_b32 s{d}, s100, s{d}
    s_cselect_b32 s{d+1}, s101, s{d+1}
    s_and_b32 s{d+1}, s{d+1}, 0xffff
    s_mov_b32 s{d+2}, {size}
    s_mov_b32 s{d+3}, 0x20000
    """)

_uid = [0]
PH = [0]
STAMP_OFF = 60 << 20
DBGW = os.environ.get("DBGW")
def dbgw(a, slot):
    if DBGW is None: return
    _uid[0] += 1; u = _uid[0]
    a(f"""
    s_cmp_lg_u32 s{S_W}, 0
    s_cbranch_scc1 dw_skip_{u}
    s_cmp_lg_u32 s2, {int(DBGW)}
    s_cbranch_scc1 dw_skip_{u}
    s_memrealtime s[94:95]
    s_mul_i32 s93, s{S_L}, 5
    s_add_u32 s93, s93, {slot}
    s_lshl_b32 s93, s93, 2
    s_waitcnt lgkmcnt(0)
    v_mov_b32 v252, s94
    v_mov_b32 v254, s93
    global_store_dword v254, v252, s[10:11]
    """)
    a.label(f"dw_skip_{u}")

def stamp(a, i):
    if i == 0 and PH[0] < 5: dbgw(a, 3 + PH[0])
    if not ASM.STAMPS: return
    _uid[0] += 1; u = _uid[0]
    k = PH[0] * 8 + i
    a(f"""
    s_cmp_lg_u32 s{S_W}, 0
    s_cbranch_scc1 st_skip_{u}
    {"s_memtime" if os.environ.get("STAMPCLK") else "s_memrealtime"} s[94:95]
    s_lshl_b32 s93, s{S_L}, 6
    s_add_u32 s93, s93, {k}
    s_lshl_b32 s93, s93, 11
    s_lshl_b32 s92, s2, 3
    s_add_u32 s93, s93, s92
    s_add_u32 s93, s93, {STAMP_OFF}
    s_waitcnt lgkmcnt(0)
    v_mov_b32 v252, s94
    v_mov_b32 v253, s95
    v_mov_b32 v254, s93
    global_store_dwordx2 v254, v[252:253], s[6:7]
    """)
    a.label(f"st_skip_{u}")

def arrive(a, idx_sgpr, first, vt=250):
    _uid[0] += 1; u = _uid[0]
    a(f"""
    s_waitcnt vmcnt(0) lgkmcnt(0)
    s_barrier
    s_cmp_lg_u32 s{S_W}, 0
    s_cbranch_scc1 arr_done_{u}
    s_add_u32 s100, {idx_sgpr}, {first}
    s_lshl_b32 s100, s100, 7
    s_add_u32 s100, s100, s{S_CL}
    v_mov_b32 v{vt}, s100
    v_mov_b32 v{vt+1}, 1
    s_mov_b64 exec, 1
    global_atomic_add v{vt}, v{vt+1}, s[{S_CB}:{S_CB+1}] sc1
    s_mov_b64 exec, -1
    """)
    a.label(f"arr_done_{u}")

def arrive_tree(a, idx_sgpr, first, per, top, vt=250):
    _uid[0] += 1; u = _uid[0]
    a(f"""
    s_waitcnt vmcnt(0) lgkmcnt(0)
    s_barrier
    s_cmp_lg_u32 s{S_W}, 0
    s_cbranch_scc1 art_done_{u}
    s_add_u32 s100, {idx_sgpr}, {first}
    s_lshl_b32 s100, s100, 7
    s_add_u32 s100, s100, s{S_CL}
    v_mov_b32 v{vt}, s100
    v_mov_b32 v{vt+1}, 1
    s_mov_b64 exec, 1
    global_atomic_add v{vt+2}, v{vt}, v{vt+1}, s[{S_CB}:{S_CB+1}] sc0 sc1
    s_waitcnt vmcnt(0)
    v_readfirstlane_b32 s100, v{vt+2}
    s_mov_b64 exec, -1
    s_cmp_lg_u32 s100, {per-1}
    s_cbranch_scc1 art_done_{u}
    v_and_b32 v{vt}, 7, v0
    v_lshlrev_b32 v{vt}, 7, v{vt}
    s_add_u32 s100, s{S_CL}, {top*128}
    v_add_u32 v{vt}, s100, v{vt}
    s_mov_b64 exec, 0xff
    global_atomic_add v{vt}, v{vt+1}, s[{S_CB}:{S_CB+1}] sc1
    s_mov_b64 exec, -1
    """)
    a.label(f"art_done_{u}")

def wait_tree(a, top, ngroups):
    a("s_and_b32 s101, s2, 7")
    wait(a, "s101", top, 1, ngroups)

def wait(a, idx_sgpr, first, nlanes, expected, prev_layer=False, vt=250):
    _uid[0] += 1; u = _uid[0]
    a(f"""
    s_cmp_lg_u32 s{S_W}, 0
    s_cbranch_scc1 wt_done_{u}
    s_add_u32 s100, {idx_sgpr}, {first}
    s_lshl_b32 s100, s100, 7
    s_add_u32 s100, s100, s{S_CL}
    """)
    if prev_layer: a(f"s_sub_u32 s100, s100, {NCNT*128}")
    a(f"""
    v_and_b32 v{vt}, {nlanes-1}, v0
    v_lshlrev_b32 v{vt}, 7, v{vt}
    v_add_u32 v{vt}, s100, v{vt}
    s_mov_b32 s101, 0
    s_mov_b64 exec, {hex((1 << nlanes) - 1)}
    """)
    a.label(f"wt_poll_{u}")
    a(f"""
    global_load_dword v{vt+1}, v{vt}, s[{S_CB}:{S_CB+1}] sc1
    s_add_u32 s101, s101, 1
    s_waitcnt vmcnt(0)
    v_cmp_le_u32 vcc, {expected}, v{vt+1}
    s_cmp_ge_u32 s101, {SPIN_MAX}
    s_cbranch_scc1 wt_ok_{u}
    s_cmp_eq_u64 vcc, exec
    s_cbranch_scc1 wt_ok_{u}
    s_sleep 1
    s_branch wt_poll_{u}
    """)
    a.label(f"wt_ok_{u}")
    a("s_mov_b64 exec, -1")
    a.label(f"wt_done_{u}")
    a("s_barrier")

LDS_X = 9 * 16384
LDS_MISC = LDS_X
class LN:
    V_LANE = 1; V_TOK = 2; V_H = 3; V_ST = 4; V_WOFF = 6
    V_R = 8; V_T = 20; V_XF = 32; V_ACC = 80; V_E = 144
    S_MB = 17; S_NB = 18; S_SL = 19
PW = int(os.environ.get("PW", "5"))

def ln_ids(a, mode):
    L = LN
    a(f"""
    s_and_b32 s20, s{S_X}, 3
    s_lshl_b32 s20, s20, 2
    s_and_b32 s21, s{S_JX}, 3
    s_add_u32 s{L.S_MB}, s20, s21
    s_lshr_b32 s20, s{S_X}, 2
    s_lshl_b32 s20, s20, 3
    s_lshr_b32 s21, s{S_JX}, 2
    s_add_u32 s{L.S_NB}, s20, s21
    """)

def ln_phase(a, mode, base, wait_fn):
    L = LN
    V_LANE, V_TOK, V_H, V_ST, V_WOFF, V_R, V_T, V_XF, V_ACC, V_E = (L.V_LANE, L.V_TOK, L.V_H, L.V_ST, L.V_WOFF, L.V_R, L.V_T, L.V_XF, L.V_ACC, L.V_E)
    S_MB, S_NB, S_SL = L.S_MB, L.S_NB, L.S_SL
    NB = 15 if mode == "qkv" else 14
    ln_ids(a, mode)
    a(f"""
    s_cmp_ge_u32 s{S_NB}, {NB}
    s_cbranch_scc1 {base}_idle
    s_lshl_b32 s{S_SL}, s{S_NB}, 2
    s_add_u32 s{S_SL}, s{S_SL}, s{S_W}          ; slice
    v_and_b32 v{V_LANE}, 63, v0
    v_and_b32 v{V_TOK}, 31, v0
    v_lshlrev_b32 v{V_WOFF}, 4, v{V_LANE}
    """)
    if mode == "qkv": wt, wtsz, cs, cssz = ws.WQKV, ws.WQKV_SZ, ws.CSQ, ws.CSQ_SZ
    else: wt, wtsz, cs, cssz = ws.W1, ws.W1_SZ, ws.CS1, ws.CS1_SZ
    srd(a, 24, 6, wt, wtsz)
    a(f"s_mul_i32 s39, s{S_SL}, 40960")
    ops = []
    def w_bundle(n):
        g, i = divmod(n, 4)
        pre = [f"s_add_u32 s41, s39, {g*4096}"] if i == 0 else []
        return (pre + [f"buffer_load_dwordx4 a[{4*n}:{4*n+3}], v{V_WOFF}, s[24:27], s41 offen offset:{i*1024} {SCW}"], ("W", g))
    def d_bundle(g, j):
        slot = g % 9
        ld = f"buffer_load_dwordx4 v{V_WOFF}, s[20:23], s42 offen offset:{(j & 1)*1024} {SCL} lds"
        if j & 1: return ([ld], ("D", g))
        return ([f"s_add_u32 m0, s40, {slot*16384 + (j >> 1)*2048}", f"s_add_u32 s42, s38, {(8*g + (j >> 1))*32768}", ld], ("D", g))
    def emit(b):
        for l in b[0]: a(l)
        ops.append(b[1])
    NF = 1920 if mode == "qkv" else 1728
    for n in range(4*PW): emit(w_bundle(n))
    srd(a, 32, 6, cs, cssz)
    a(f"""
    v_bfe_u32 v{V_H}, v0, 5, 1
    s_lshl_b32 s37, s{S_SL}, 5
    v_add_u32 v{V_T+1}, s37, v{V_TOK}
    v_lshlrev_b32 v{V_T+1}, 2, v{V_T+1}
    v_mul_u32_u24 v{V_T+2}, {16*NF}, v{V_H}
    v_add_u32 v{V_T+1}, v{V_T+1}, v{V_T+2}
    s_movk_i32 s56, {4*NF}
    s_movk_i32 s57, {8*NF}
    s_movk_i32 s58, {12*NF}
    buffer_load_dword v{V_E+8}, v{V_T+1}, s[32:35], 0 offen {SCW}
    buffer_load_dword v{V_E+9}, v{V_T+1}, s[32:35], s56 offen {SCW}
    buffer_load_dword v{V_E+10}, v{V_T+1}, s[32:35], s57 offen {SCW}
    buffer_load_dword v{V_E+11}, v{V_T+1}, s[32:35], s58 offen {SCW}
    v_lshlrev_b32 v{V_T}, 11, v{V_H}
    v_lshl_add_u32 v{V_R}, v{V_TOK}, 4, v{V_T}
    v_add_u32 v{V_R+1}, 0x10000, v{V_R}
    v_add_u32 v{V_R+2}, 0x20000, v{V_R}
    """)
    ops.extend(["C"] * 4)
    if mode == "qkv":
        srd_sel(a, 20, M*D*2, 6, ws.X0, ws.XB)
        srd_sel(a, 28, ws.STB_SZ, 6, ws.ST0, ws.STB)
        a(f"""
        s_cmp_eq_u32 s{S_L}, 0
        s_cselect_b32 s30, {ws.ST0_SZ}, s30
        """)
    else:
        srd_s(a, 20, 6, ('L', ws.XA), M*D*2)
        srd_s(a, 28, 6, ('L', ws.STA), ws.STA_SZ)
    a(f"""
    s_lshl_b32 s36, s{S_MB}, 7
    s_lshl_b32 s37, s{S_W}, 5
    s_add_u32 s36, s36, s37
    v_add_u32 v{V_T}, s36, v{V_TOK}
    v_lshlrev_b32 v{V_T}, 3, v{V_T}
    v_lshlrev_b32 v{V_ST}, 16, v{V_H}
    v_add_u32 v{V_ST}, v{V_ST}, v{V_T}
    s_lshl_b32 s38, s{S_W}, 16
    s_lshl_b32 s37, s{S_MB}, 11
    s_add_u32 s38, s38, s37
    s_lshl_b32 s40, s{S_W}, 12
    s_movk_i32 s56, 16384
    s_mov_b32 s57, 32768
    s_mov_b32 s58, 49152
    """)
    stamp(a, 1)
    wait_fn()
    stamp(a, 2)
    for j in range(4): emit(d_bundle(0, j))
    a(f"""
    buffer_load_dwordx2 v[{V_E}:{V_E+1}], v{V_ST}, s[28:31], 0 offen {SCL}
    buffer_load_dwordx2 v[{V_E+2}:{V_E+3}], v{V_ST}, s[28:31], s56 offen {SCL}
    buffer_load_dwordx2 v[{V_E+4}:{V_E+5}], v{V_ST}, s[28:31], s57 offen {SCL}
    buffer_load_dwordx2 v[{V_E+6}:{V_E+7}], v{V_ST}, s[28:31], s58 offen {SCL}
    """)
    ops += ["S"] * 4
    for j in range(4): emit(d_bundle(1, j))
    a(f"s_waitcnt vmcnt(4)")
    e = V_E
    a(f"""
    v_add_f32 v{e}, v{e}, v{e+2}
    v_add_f32 v{e+1}, v{e+1}, v{e+3}
    v_add_f32 v{e+4}, v{e+4}, v{e+6}
    v_add_f32 v{e+5}, v{e+5}, v{e+7}
    v_add_f32 v{e}, v{e}, v{e+4}
    v_add_f32 v{e+1}, v{e+1}, v{e+5}
    v_add_f32 v{e+8}, v{e+8}, v{e+9}
    v_add_f32 v{e+10}, v{e+10}, v{e+11}
    v_mov_b32 v{e+2}, v{e}
    v_mov_b32 v{e+3}, v{e+1}
    v_add_f32 v{e+12}, v{e+8}, v{e+10}
    v_add_f32 v{e+13}, v{e+8}, v{e+10}
    v_permlane32_swap_b32 v{e}, v{e+2}
    v_permlane32_swap_b32 v{e+1}, v{e+3}
    v_permlane32_swap_b32 v{e+12}, v{e+13}
    v_add_f32 v{e}, v{e}, v{e+2}
    v_add_f32 v{e+1}, v{e+1}, v{e+3}
    v_add_f32 v{e+12}, v{e+12}, v{e+13}
    v_mul_f32 v{e}, {f32hex(1.0/D)}, v{e}       ; mean
    v_mul_f32 v{e+1}, {f32hex(1.0/D)}, v{e+1}
    v_fma_f32 v{e+1}, -v{e}, v{e}, v{e+1}       ; var
    v_max_f32 v{e+1}, 0, v{e+1}
    v_add_f32 v{e+1}, {f32hex(EPS)}, v{e+1}
    v_rsq_f32 v{e+1}, v{e+1}                    ; rstd
    s_lshl_b32 s43, s{S_W}, 7
    v_lshl_add_u32 v{e+4}, v{V_TOK}, 2, s43     ; (32w+tok)*4
    v_mul_f32 v{e+2}, v{e}, v{e+1}
    v_sub_f32 v{e+2}, 0, v{e+2}
    v_add_u32 v{e+4}, {LDS_MISC}, v{e+4}
    ds_write_b32 v{e+4}, v{e+1}
    ds_write_b32 v{e+4}, v{e+2} offset:512
    ds_write_b32 v{e+4}, v{e+12} offset:1024
    s_waitcnt lgkmcnt(0)
    s_barrier
    """)
    stamp(a, 3)
    forms = ["ct", "c"] if mode == "qkv" else ["ct"]
    if mode == "qkv":
        a(f"s_cmp_ge_u32 s{S_NB}, 10")
        a(f"s_cbranch_scc1 {base}_loop_c")
    saved = list(ops)
    for form in forms:
        ops[:] = list(saved)
        a.label(f"{base}_loop_{form}")
        def wait_group(g):
            last = max(i for i, o in enumerate(ops) if o == ("D", g) or o == ("W", g))
            a(f"s_waitcnt vmcnt({len(ops) - 1 - last})")
        def read(n, t):
            g = n >> 2; sp = n & 3; slot = g % 9
            q = slot >> 2; so = (slot & 3) * 16384
            buf = V_XF + 16 * (n % 3)
            a(f"ds_read_b128 v[{buf+4*t}:{buf+4*t+3}], v{V_R+q} offset:{so + sp*4096 + t*512}")
        for t in range(4): read(0, t)
        for t in range(4): read(1, t)
        pending = []
        for g in range(2, 10):
            if g >= PW: pending += [w_bundle(4*g + i) for i in range(4)]
            pending += [d_bundle(g, j) for j in range(4)]
        for n in range(40):
            if n + 2 < 40 and (n + 2) % 4 == 0:
                wait_group((n + 2) >> 2)
                a("s_barrier")
            a(f"s_waitcnt lgkmcnt({4 if n + 1 < 40 else 0})")
            buf = V_XF + 16 * (n % 3)
            for t in range(4):
                acc = f"v[{V_ACC+16*t}:{V_ACC+16*t+15}]"
                c = "0" if n == 0 else acc
                wf = f"a[{4*n}:{4*n+3}]"; xf = f"v[{buf+4*t}:{buf+4*t+3}]"
                if form == "ct": a(f"v_mfma_f32_32x32x16_bf16 {acc}, {wf}, {xf}, {c}")
                else: a(f"v_mfma_f32_32x32x16_bf16 {acc}, {xf}, {wf}, {c}")
                if n + 2 < 40: read(n + 2, t)
                if (t in (0, 2) or n < 4) and pending: emit(pending.pop(0))
        assert not pending
        stamp(a, 4)
        if form == "ct": ln_epilogue_ct(a, mode)
        else: ln_epilogue_v(a)
        if form != forms[-1]: a(f"s_branch {base}_idle")
    a.label(f"{base}_idle")

def ln_epilogue_ct(a, mode):
    L = LN
    V_TOK, V_H, V_T, V_ACC, e = L.V_TOK, L.V_H, L.V_T, L.V_ACC, L.V_E
    S_MB, S_SL = L.S_MB, L.S_SL
    a(f"""
    v_lshlrev_b32 v{V_T}, 2, v{V_TOK}
    v_add_u32 v{V_T}, {LDS_MISC}, v{V_T}
    s_lshl_b32 s43, s{S_W}, 7
    v_lshlrev_b32 v{V_T+1}, 4, v{V_H}
    v_add_u32 v{V_T+1}, s43, v{V_T+1}
    v_add_u32 v{V_T+1}, {LDS_MISC+1024}, v{V_T+1}
    """)
    for t in range(4):
        a(f"ds_read_b32 v{e+2*t}, v{V_T} offset:{t*128}")
        a(f"ds_read_b32 v{e+2*t+1}, v{V_T} offset:{512+t*128}")
    for jj in range(4):
        a(f"ds_read_b128 v[{e+8+4*jj}:{e+11+4*jj}], v{V_T+1} offset:{jj*32}")
    CS = e + 8
    if mode == "qkv":
        a(f"""
        s_cmp_ge_u32 s{S_SL}, 20
        s_mov_b32 s44, {ws.Q}
        s_cselect_b32 s44, {ws.K}, s44
        s_cselect_b32 s45, 20, 0
        s_cselect_b32 s46, 1.0, {f32hex(QSCALE)}
        s_add_u32 s44, s44, s{S_LOFF}
        s_add_u32 s48, s6, s44
        s_addc_u32 s49, s7, 0
        s_and_b32 s49, s49, 0xffff
        s_mov_b32 s50, {ws.Q_SZ}
        s_mov_b32 s51, 0x20000
        s_sub_u32 s45, s{S_SL}, s45
        s_lshl_b32 s45, s45, 2
        s_lshl_b32 s47, s{S_MB}, 2                  ; first T
        """)
        for u in range(2):
            t0 = V_T + 2
            a(f"""
            v_add_u32 v{t0}, s45, v{V_H}
            v_add_u32 v{t0}, {2*u}, v{t0}               ; chunk
            v_mul_u32_u24 v{t0+1}, 205, v{t0}
            v_lshrrev_b32 v{t0+1}, 10, v{t0+1}          ; p
            v_mul_u32_u24 v{t0+2}, 5, v{t0+1}
            v_sub_u32 v{t0+2}, v{t0}, v{t0+2}           ; r
            v_lshrrev_b32 v{t0+3}, 1, v{t0+2}
            v_lshl_add_u32 v{t0+3}, v{t0+1}, 1, v{t0+3} ; head
            v_lshlrev_b32 v{t0+3}, 6, v{t0+3}
            v_add_u32 v{t0+3}, s47, v{t0+3}             ; head*64+T0
            v_lshlrev_b32 v{t0+3}, 10, v{t0+3}
            v_and_b32 v{t0+4}, 1, v{t0+2}
            v_lshl_add_u32 v{t0+3}, v{t0+4}, 9, v{t0+3}
            v_lshl_add_u32 v{t0+3}, v{V_TOK}, 4, v{t0+3}
            v_lshlrev_b32 v{t0+4}, 6, v{t0+1}
            v_add_u32 v{t0+4}, s47, v{t0+4}
            v_lshlrev_b32 v{t0+4}, 9, v{t0+4}
            v_lshl_add_u32 v{t0+4}, v{V_TOK}, 4, v{t0+4}
            v_add_u32 v{t0+4}, {QK1_SZ}, v{t0+4}
            v_cmp_eq_u32 vcc, 4, v{t0+2}
            v_mov_b32 v{t0+5}, 1024
            v_mov_b32 v{t0+6}, 512
            v_cndmask_b32 v{e+24+2*u}, v{t0+3}, v{t0+4}, vcc
            v_cndmask_b32 v{e+25+2*u}, v{t0+5}, v{t0+6}, vcc
            """)
        a("s_waitcnt lgkmcnt(0)")
        for t in range(4):
            a(f"v_mul_f32 v{e+2*t}, s46, v{e+2*t}")
            a(f"v_mul_f32 v{e+2*t+1}, s46, v{e+2*t+1}")
    else:
        srd_s(a, 48, 6, ('L', ws.HH), ws.HH_SZ)
        a(f"""
        s_lshl_b32 s45, s{S_SL}, 2
        v_add_u32 v{V_T+2}, s45, v{V_H}             ; chunk (u=0)
        v_lshlrev_b32 v{V_T+2}, 15, v{V_T+2}
        s_lshl_b32 s47, s{S_MB}, 11
        v_lshl_add_u32 v{V_T+2}, v{V_TOK}, 4, v{V_T+2}
        v_add_u32 v{e+24}, s47, v{V_T+2}
        v_add_u32 v{e+26}, 0x10000, v{e+24}
        v_mov_b32 v{V_T+3}, {f32hex(-LOG2E)}
        s_waitcnt lgkmcnt(0)
        """)
    a("s_nop 4")
    T = e + 32
    for t in range(4):
        A = e + 2*t
        for u in range(2):
            accb = V_ACC + 16*t + 8*u
            csb = CS + 8*u
            for pr in range(4):
                a(f"v_pk_mul_f32 v[{T+2*pr}:{T+2*pr+1}], v[{csb+2*pr}:{csb+2*pr+1}], v[{A}:{A+1}] op_sel:[0,1] op_sel_hi:[1,1]")
            for pr in range(4):
                a(f"v_pk_fma_f32 v[{T+2*pr}:{T+2*pr+1}], v[{accb+2*pr}:{accb+2*pr+1}], v[{A}:{A+1}], v[{T+2*pr}:{T+2*pr+1}] op_sel_hi:[1,0,1]")
            if mode == "w1":
                NL = V_T + 3
                for i in range(8): a(f"v_mul_f32 v{T+8+i}, v{T+i}, v{NL}")
                for i in range(8): a(f"v_exp_f32 v{T+8+i}, v{T+8+i}")
                for i in range(8): a(f"v_add_f32 v{T+8+i}, 1.0, v{T+8+i}")
                for i in range(8): a(f"v_rcp_f32 v{T+8+i}, v{T+8+i}")
                for i in range(8): a(f"v_mul_f32 v{T+i}, v{T+i}, v{T+8+i}")
            P = T + 16 + 4 * ((2*t + u) & 1)
            for pr in range(4): a(f"v_cvt_pk_bf16_f32 v{P+pr}, v{T+2*pr}, v{T+2*pr+1}")
            if mode == "qkv":
                a(f"buffer_store_dwordx4 v[{P}:{P+3}], v{e+24+2*u}, s[48:51], 0 offen {SC}")
                if t < 3: a(f"v_add_u32 v{e+24+2*u}, v{e+24+2*u}, v{e+25+2*u}")
            else:
                a(f"buffer_store_dwordx4 v[{P}:{P+3}], v{e+24+2*u}, s[48:51], 0 offen offset:{t*512} {SC}")

def ln_epilogue_v(a):
    L = LN
    V_TOK, V_H, V_T, V_ACC, e = L.V_TOK, L.V_H, L.V_T, L.V_ACC, L.V_E
    S_MB, S_SL = L.S_MB, L.S_SL
    srd_s(a, 48, 6, ('L', ws.V), ws.V_SZ)
    a(f"""
    s_sub_u32 s45, s{S_SL}, 40
    s_lshl_b32 s45, s45, 5
    v_add_u32 v{V_T}, s45, v{V_TOK}             ; f
    v_mul_u32_u24 v{V_T+1}, 3277, v{V_T}
    v_lshrrev_b32 v{V_T+1}, 16, v{V_T+1}        ; head = f/20
    v_mul_u32_u24 v{V_T+2}, 20, v{V_T+1}
    v_sub_u32 v{V_T+2}, v{V_T}, v{V_T+2}        ; d
    v_bfe_u32 v{V_T+3}, v{V_T+2}, 2, 1
    v_lshlrev_b32 v{V_T+3}, 3, v{V_T+3}
    v_bfe_u32 v{V_T+4}, v{V_T+2}, 3, 1
    v_lshl_add_u32 v{V_T+3}, v{V_T+4}, 2, v{V_T+3}
    v_and_b32 v{V_T+4}, 3, v{V_T+2}
    v_add_u32 v{V_T+3}, v{V_T+3}, v{V_T+4}
    v_cmp_le_u32 vcc, 16, v{V_T+2}
    s_lshl_b32 s47, s{S_MB}, 2
    v_lshlrev_b32 v{V_T+1}, 6, v{V_T+1}
    v_cndmask_b32 v{V_T+3}, v{V_T+3}, v{V_T+2}, vcc
    v_add_u32 v{V_T+1}, s47, v{V_T+1}           ; head*64 + T0
    v_mul_u32_u24 v{V_T+1}, 1280, v{V_T+1}
    v_mul_u32_u24 v{V_T+4}, 320, v{V_H}
    v_add_u32 v{V_T+1}, v{V_T+1}, v{V_T+4}
    v_lshl_add_u32 v{e+24}, v{V_T+3}, 4, v{V_T+1}
    v_lshlrev_b32 v{V_T+5}, 4, v{V_H}
    v_add_u32 v{V_T+5}, {LDS_MISC}, v{V_T+5}
    v_lshlrev_b32 v{V_T+6}, 2, v{V_TOK}
    s_lshl_b32 s43, s{S_W}, 7
    v_add_u32 v{V_T+6}, s43, v{V_T+6}
    v_add_u32 v{V_T+6}, {LDS_MISC+1024}, v{V_T+6}
    ds_read_b32 v{e+26}, v{V_T+6}
    """)
    T = e + 32; AB = e + 56
    for t in range(4):
        for m in range(2):
            for q in range(2):
                jj = 2*m + q
                a(f"ds_read_b128 v[{AB+4*q}:{AB+4*q+3}], v{V_T+5} offset:{(32*t+8*jj)*4}")
                a(f"ds_read_b128 v[{AB+8+4*q}:{AB+8+4*q+3}], v{V_T+5} offset:{512+(32*t+8*jj)*4}")
            a("s_waitcnt lgkmcnt(0)")
            if t == 0 and m == 0: a("s_nop 4")
            accb = V_ACC + 16*t + 8*m
            for pr in range(4):
                a(f"v_pk_mul_f32 v[{T+2*pr}:{T+2*pr+1}], v[{AB+8+2*pr}:{AB+9+2*pr}], v[{e+26}:{e+27}] op_sel_hi:[1,0]")
            for pr in range(4):
                a(f"v_pk_fma_f32 v[{T+2*pr}:{T+2*pr+1}], v[{accb+2*pr}:{accb+2*pr+1}], v[{AB+2*pr}:{AB+2*pr+1}], v[{T+2*pr}:{T+2*pr+1}]")
            P = T + 16 + 4 * m
            for pr in range(4): a(f"v_cvt_pk_bf16_f32 v{P+pr}, v{T+2*pr}, v{T+2*pr+1}")
            if m == 0: a(f"s_movk_i32 s52, {t*1280}")
            a(f"buffer_store_dwordx4 v[{P}:{P+3}], v{e+24}, s[48:51], s52 offen offset:{m*640} {SC}")

class RS:
    V_LANE = 1; V_TOK = 2; V_G = 3; V_WOFF = 4; V_AOFF = 5; V_XOFF = 6; V_XC = 7
    V_R = 8; V_T = 12; V_XO = 20; V_WF = 32; V_ACC = 92; V_E = 112
    S_RB = 17; S_J = 18; S_MBK = 19
SLOT = 20480; NSLOT = 7

def rs_ids(a):
    R = RS
    a(f"""
    s_and_b32 s20, s{S_X}, 3
    s_lshl_b32 s20, s20, 3
    s_and_b32 s21, s{S_JX}, 7
    s_add_u32 s{R.S_RB}, s20, s21
    s_lshr_b32 s20, s{S_X}, 2
    s_lshl_b32 s20, s20, 2
    s_lshr_b32 s21, s{S_JX}, 3
    s_add_u32 s{R.S_J}, s20, s21
    s_lshr_b32 s{R.S_MBK}, s{R.S_RB}, 1
    """)

def rs_phase(a, mode, base, wait_fn):
    R = RS
    V_LANE, V_TOK, V_G, V_WOFF, V_AOFF, V_XOFF, V_R, V_T, V_XO, V_WF, V_ACC, e = (R.V_LANE, R.V_TOK, R.V_G, R.V_WOFF, R.V_AOFF, R.V_XOFF, R.V_R, R.V_T, R.V_XO, R.V_WF, R.V_ACC, R.V_E)
    S_RB, S_J = R.S_RB, R.S_J
    NKS = 20 if mode == "wo" else 54
    NG = (NKS + 3) // 4
    rs_ids(a)
    if mode == "wo": act, actsz, wt, wtsz = ws.O, ws.O_SZ, ws.WO, ws.WO_SZ
    else: act, actsz, wt, wtsz = ws.HH, ws.HH_SZ, ws.W2, ws.W2_SZ
    srd(a, 36, 6, wt, wtsz)
    a(f"""
    v_and_b32 v{V_LANE}, 63, v0
    v_lshlrev_b32 v{V_WOFF}, 4, v{V_LANE}
    s_mul_i32 s45, s{S_J}, {NKS*5120}
    s_mul_i32 s46, s{S_W}, 5120
    s_add_u32 s45, s45, s46
    """)
    ops = []
    def d_bundle(g, j):
        slot = g % NSLOT
        return ([f"s_add_u32 s49, s45, {g*SLOT + j*1024}", f"s_add_u32 m0, s46, {slot*SLOT + j*1024}", "s_nop 0",
                 f"buffer_load_dwordx4 v{V_WOFF}, s[36:39], s49 offen {SCW} lds"], ("D", g))
    def a_bundle(n):
        return ([f"s_add_u32 s49, s44, {n*4*32768}",
                 f"buffer_load_dwordx4 a[{4*n}:{4*n+3}], v{V_AOFF}, s[32:35], s49 offen {SCL}"], ("A", n >> 2))
    def emit(b):
        for l in b[0]: a(l)
        ops.append(b[1])
    NPRE = min(NG, NSLOT)
    for g in range(NPRE):
        for j in range(5): emit(d_bundle(g, j))
    a(f"""
    v_and_b32 v{V_TOK}, 15, v0
    v_bfe_u32 v{V_G}, v0, 4, 2
    v_mov_b32 v{V_R}, v{V_WOFF}
    v_add_u32 v{V_R+1}, 0x10000, v{V_WOFF}
    v_add_u32 v{V_R+2}, 0x20000, v{V_WOFF}
    v_lshlrev_b32 v{V_AOFF}, 15, v{V_G}
    v_lshl_add_u32 v{V_AOFF}, v{V_TOK}, 4, v{V_AOFF}
    s_lshl_b32 s19, s{S_RB}, 6
    s_lshl_b32 s20, s{S_W}, 4
    s_add_u32 s22, s19, s20
    v_add_u32 v{V_T}, s22, v{V_TOK}             ; token
    s_mul_i32 s20, s{S_J}, 10
    v_add_u32 v{V_T+1}, s20, v{V_G}
    v_lshlrev_b32 v{V_T+1}, 15, v{V_T+1}
    v_lshl_add_u32 v{V_XOFF}, v{V_T}, 4, v{V_T+1}
    v_lshrrev_b32 v{V_T+1}, 1, v{V_G}
    v_add_u32 v{V_T+1}, s20, v{V_T+1}
    v_add_u32 v{V_T+1}, 8, v{V_T+1}
    v_lshlrev_b32 v{V_T+1}, 15, v{V_T+1}
    v_lshl_add_u32 v{V_T+1}, v{V_T}, 4, v{V_T+1}
    v_and_b32 v{V_T+2}, 1, v{V_G}
    v_lshl_add_u32 v{RS.V_XC}, v{V_T+2}, 3, v{V_T+1}
    s_mov_b32 s23, {4*32768}
    s_lshl_b32 s44, s22, 4
    s_lshr_b32 s{R.S_MBK}, s{S_RB}, 1
    """)
    if mode == "wo":
        srd_sel(a, 24, M*D*2, 6, ws.X0, ws.XB)
        srd_s(a, 28, 6, ('L', ws.XA), M*D*2)
        srd_s(a, 40, 6, ('L', ws.STA), ws.STA_SZ)
    else:
        srd_s(a, 24, 6, ('L', ws.XA), M*D*2)
        a(f"""
        s_add_u32 s28, s6, {ws.XB}
        s_addc_u32 s29, s7, 0
        s_cmp_eq_u32 s{S_L}, 0
        s_cselect_b32 s28, s28, s8
        s_cselect_b32 s29, s29, s9
        s_and_b32 s29, s29, 0xffff
        s_mov_b32 s30, {M*D*2}
        s_mov_b32 s31, 0x20000
        """)
        srd(a, 40, 6, ws.STB, ws.STB_SZ)
    srd_s(a, 32, 6, ('L', act), actsz)
    a(f"""
    buffer_load_dwordx4 v[{V_XO}:{V_XO+3}], v{V_XOFF}, s[24:27], 0 offen {SCL}
    buffer_load_dwordx4 v[{V_XO+4}:{V_XO+7}], v{V_XOFF}, s[24:27], s23 offen {SCL}
    buffer_load_dwordx2 v[{V_XO+8}:{V_XO+9}], v{RS.V_XC}, s[24:27], 0 offen {SCL}
    """)
    ops += ["X", "X", "X"]
    stamp(a, 1)
    wait_fn()
    stamp(a, 2)
    NS = 4 * NG
    for n in range(8): emit(a_bundle(n))
    def wait_for(kind, g):
        last = max(i for i, o in enumerate(ops) if o == (kind, g))
        a(f"s_waitcnt vmcnt({len(ops) - 1 - last})")
    wait_for("A", 0)
    a("s_barrier")
    stamp(a, 3)
    def read(n, ft):
        g = n >> 2; slot = g % NSLOT
        o = slot*SLOT + (n & 3)*5120 + ft*1024
        buf = V_WF + 20*(n % 3)
        a(f"ds_read_b128 v[{buf+4*ft}:{buf+4*ft+3}], v{V_R+(o>>16)} offset:{o & 0xffff}")
    for ft in range(5): read(0, ft)
    for ft in range(5): read(1, ft)
    for n in range(NS):
        tau = n >> 2
        if n + 2 < NS and (n + 2) % 4 == 0:
            g = (n + 2) >> 2
            if g >= NPRE: wait_for("D", g)
            if NG > NPRE: a("s_barrier")
        if n % 4 == 0 and n > 0: wait_for("A", tau)
        a(f"s_waitcnt lgkmcnt({5 if n + 1 < NS else 0})")
        todo = []
        if tau + 2 < NG and (n & 3) < 2:
            todo = [a_bundle(4*(tau+2) + 2*(n & 3)), a_bundle(4*(tau+2) + 2*(n & 3) + 1)]
        if NPRE <= tau + NSLOT - 1 < NG and (n & 3) >= 2:
            gg = tau + NSLOT - 1
            todo = [d_bundle(gg, j) for j in ((0, 1, 2) if (n & 3) == 2 else (3, 4))]
        buf = V_WF + 20*(n % 3)
        for ft in range(5):
            acc = f"v[{V_ACC+4*ft}:{V_ACC+4*ft+3}]"
            c = "0" if n == 0 else acc
            a(f"v_mfma_f32_16x16x32_bf16 {acc}, v[{buf+4*ft}:{buf+4*ft+3}], a[{4*n}:{4*n+3}], {c}")
            if n + 2 < NS: read(n + 2, ft)
            if ft in (0, 2, 4) and todo: emit(todo.pop(0))
        assert not todo
    stamp(a, 4)
    a("s_nop 7")
    for q in range(10):
        a(f"v_lshlrev_b32 v{e+2*q}, 16, v{V_XO+q}")
        a(f"v_and_b32 v{e+2*q+1}, 0xffff0000, v{V_XO+q}")
    for i in range(20): a(f"v_add_f32 v{e+i}, v{e+i}, v{V_ACC+i}")
    for q in range(10): a(f"v_cvt_pk_bf16_f32 v{e+24+q}, v{e+2*q}, v{e+2*q+1}")
    if mode == "w2":
        a(f"""
        s_cmp_lg_u32 s{S_L}, 0
        s_cbranch_scc1 {base}_last
        """)
    a(f"""
    buffer_store_dwordx4 v[{e+24}:{e+27}], v{V_XOFF}, s[28:31], 0 offen {SC}
    buffer_store_dwordx4 v[{e+28}:{e+31}], v{V_XOFF}, s[28:31], s23 offen {SC}
    buffer_store_dwordx2 v[{e+32}:{e+33}], v{RS.V_XC}, s[28:31], 0 offen {SC}
    """)
    for q in range(10):
        a(f"v_lshlrev_b32 v{e+2*q}, 16, v{e+24+q}")
        a(f"v_and_b32 v{e+2*q+1}, 0xffff0000, v{e+24+q}")
    a(f"v_mov_b32 v{e+40}, 0")
    a(f"v_mov_b32 v{e+41}, 0")
    for i in range(20):
        a(f"v_add_f32 v{e+40}, v{e+40}, v{e+i}")
        a(f"v_fmac_f32 v{e+41}, v{e+i}, v{e+i}")
    a(f"""
    v_mov_b32 v{e+42}, v{e+40}
    v_mov_b32 v{e+43}, v{e+41}
    s_nop 1
    v_permlane32_swap_b32 v{e+40}, v{e+42}
    v_permlane32_swap_b32 v{e+41}, v{e+43}
    v_add_f32 v{e+40}, v{e+40}, v{e+42}
    v_add_f32 v{e+41}, v{e+41}, v{e+43}
    v_mov_b32 v{e+42}, v{e+40}
    v_mov_b32 v{e+43}, v{e+41}
    s_nop 1
    v_permlane16_swap_b32 v{e+40}, v{e+42}
    v_permlane16_swap_b32 v{e+41}, v{e+43}
    v_add_f32 v{e+40}, v{e+40}, v{e+42}
    v_add_f32 v{e+41}, v{e+41}, v{e+43}
    v_add_u32 v{V_T}, s22, v{V_TOK}
    v_lshlrev_b32 v{V_T}, 3, v{V_T}
    s_lshl_b32 s49, s{S_J}, 14
    v_mov_b32 v{V_T+1}, 0x7ffffff0
    v_cmp_eq_u32 vcc, 0, v{V_G}
    s_nop 1
    v_cndmask_b32 v{V_T}, v{V_T+1}, v{V_T}, vcc
    buffer_store_dwordx2 v[{e+40}:{e+41}], v{V_T}, s[40:43], s49 offen {SC}
    """)
    if mode == "w2":
        a(f"s_branch {base}_done")
        a.label(f"{base}_last")
        a(f"""
        v_add_u32 v{V_T}, s22, v{V_TOK}
        v_mul_u32_u24 v{V_T}, 1280, v{V_T}
        s_mul_i32 s49, s{S_J}, 160
        v_lshl_add_u32 v{V_T+1}, v{V_G}, 4, v{V_T}
        v_lshl_add_u32 v{V_T+2}, v{V_G}, 3, v{V_T}
        buffer_store_dwordx4 v[{e+24}:{e+27}], v{V_T+1}, s[28:31], s49 offen
        buffer_store_dwordx4 v[{e+28}:{e+31}], v{V_T+1}, s[28:31], s49 offen offset:64
        buffer_store_dwordx2 v[{e+32}:{e+33}], v{V_T+2}, s[28:31], s49 offen offset:128
        """)
        if ASM.STAMPS: a("s_waitcnt vmcnt(0)")
        stamp(a, 5)
        dbgw(a, 8)
        a("s_endpgm")
        a.label(f"{base}_done")

P_WQKV = 60; P_WO = 62; P_W1 = 64; P_W2 = 66
LDS_R1 = 0; LDS_R2 = 32768

def unitA_load(a, n, which, vb):
    N = 1920 if which == "qkv" else 1728
    ptr = P_WQKV if which == "qkv" else P_W1
    srd(a, 20, ptr, 0, 640 * N * 2)
    a(f"""
    s_lshr_b32 s18, s17, 3                  ; nt
    s_and_b32 s19, s17, 7                   ; k8
    v_and_b32 v3, 31, v0
    v_lshrrev_b32 v4, 5, v0
    v_lshrrev_b32 v5, 3, v3
    v_and_b32 v6, 7, v3                     ; Q
    s_lshl_b32 s33, s18, 2
    v_add_u32 v7, s33, v5                   ; slice
    """)
    if which == "qkv":
        a(f"""
        s_cmp_ge_u32 s18, 10
        s_cbranch_scc1 {n}_vcol
        v_lshrrev_b32 v8, 2, v6
        v_lshlrev_b32 v8, 1, v8
        v_and_b32 v9, 1, v6
        v_add_u32 v8, v8, v9                    ; cidx
        v_bfe_u32 v9, v6, 1, 1                  ; eh
        v_cmp_le_u32 vcc, 20, v7
        s_nop 1
        v_cndmask_b32 v10, 0, 1, vcc            ; sec
        v_mul_u32_u24 v11, 20, v10
        v_sub_u32 v11, v7, v11
        v_lshl_add_u32 v11, v11, 2, v8          ; chunk
        v_mul_u32_u24 v12, 205, v11
        v_lshrrev_b32 v12, 10, v12              ; p
        v_mul_u32_u24 v13, 5, v12
        v_sub_u32 v13, v11, v13                 ; r
        v_lshrrev_b32 v14, 1, v13
        v_and_b32 v15, 1, v13
        v_lshlrev_b32 v15, 3, v15
        v_lshl_add_u32 v15, v9, 2, v15
        v_cmp_eq_u32 vcc, 4, v13
        v_mov_b32 v16, 16
        s_nop 0
        v_cndmask_b32 v14, v14, v9, vcc
        v_cndmask_b32 v15, v15, v16, vcc
        v_lshl_add_u32 v14, v12, 1, v14         ; head
        v_mul_u32_u24 v14, 20, v14
        v_add_u32 v14, v14, v15
        v_mul_u32_u24 v10, 640, v10
        v_add_u32 v8, v14, v10                  ; col
        s_branch {n}_go
        """)
        a.label(f"{n}_vcol")
        a("""
        v_lshlrev_b32 v8, 5, v7
        v_lshl_add_u32 v8, v6, 2, v8
        """)
        a.label(f"{n}_go")
    else:
        a("""
        v_lshlrev_b32 v8, 5, v7
        v_lshrrev_b32 v9, 2, v6
        v_lshl_add_u32 v8, v9, 4, v8
        v_and_b32 v9, 1, v6
        v_lshl_add_u32 v8, v9, 3, v8
        v_bfe_u32 v9, v6, 1, 1
        v_lshl_add_u32 v8, v9, 2, v8
        """)
    a(f"""
    v_mul_u32_u24 v9, {N}, v4
    v_add_u32 v9, v9, v8
    v_lshlrev_b32 v9, 1, v9
    s_mul_i32 s34, s19, {80*N*2}
    """)
    for p in range(10):
        a(f"buffer_load_dwordx2 v[{vb+2*p}:{vb+2*p+1}], v9, s[20:23], s34 offen")
        if p < 9: a(f"s_add_u32 s34, s34, {8*N*2}")

def unitA_proc(a, n, which, vb, lds, unit_sgpr):
    NF = 1920 if which == "qkv" else 1728
    wt, wtsz, cs, cssz = (ws.WQKV, ws.WQKV_SZ, ws.CSQ, ws.CSQ_SZ) if which == "qkv" else (ws.W1, ws.W1_SZ, ws.CS1, ws.CS1_SZ)
    a(f"""
    s_lshr_b32 s18, {unit_sgpr}, 3
    s_and_b32 s19, {unit_sgpr}, 7
    v_lshlrev_b32 v10, 3, v0
    v_add_u32 v10, {lds}, v10
    """)
    for p in range(10):
        a(f"ds_write_b64 v10, v[{vb+2*p}:{vb+2*p+1}] offset:{p*2048}")
    srd(a, 24, 6, wt, wtsz)
    srd(a, 28, 6, cs, cssz)
    a(f"""
    v_and_b32 v1, 63, v0
    v_lshrrev_b32 v11, 4, v1                ; G
    v_bfe_u32 v12, v1, 2, 2                 ; r
    v_and_b32 v13, 3, v1                    ; c'
    v_lshrrev_b32 v14, 1, v11
    v_lshl_add_u32 v14, v14, 3, v12
    v_lshlrev_b32 v14, 8, v14
    v_and_b32 v15, 1, v11
    v_lshl_add_u32 v15, v15, 2, v13
    s_lshl_b32 s33, s{S_W}, 3
    v_add_u32 v15, s33, v15
    v_lshl_add_u32 v14, v15, 3, v14
    v_add_u32 v14, {lds}, v14
    v_mov_b32 v16, 0x3f803f80
    v_mov_b32 v17, 0x3f803f80
    v_mov_b32 v18, 0x3f803f80
    v_mov_b32 v19, 0x3f803f80
    s_waitcnt lgkmcnt(0)
    s_barrier
    """)
    F = 70
    for ks in range(5):
        for u in range(2):
            a(f"ds_read_b64_tr_b16 v[{F+4*ks+2*u}:{F+4*ks+2*u+1}], v14 offset:{ks*4096+u*1024}")
    a(f"""
    s_lshl_b32 s33, s18, 2
    s_add_u32 s33, s33, s{S_W}
    s_mul_i32 s34, s33, 40
    s_mul_i32 s35, s19, 5
    s_add_u32 s34, s34, s35
    s_lshl_b32 s34, s34, 10
    v_lshlrev_b32 v10, 4, v1
    """)
    for ks in range(5):
        a(f"s_waitcnt lgkmcnt({8-2*ks})")
        a(f"buffer_store_dwordx4 v[{F+4*ks}:{F+4*ks+3}], v10, s[24:27], s34 offen {SC}")
        c = "0" if ks == 0 else "v[96:111]"
        a(f"v_mfma_f32_32x32x16_bf16 v[96:111], v[16:19], v[{F+4*ks}:{F+4*ks+3}], {c}")
        if ks < 4: a("s_add_u32 s34, s34, 1024")
    a(f"""
    v_and_b32 v11, 31, v1
    s_lshl_b32 s33, s33, 5
    v_add_u32 v11, s33, v11
    v_lshlrev_b32 v11, 2, v11
    v_mov_b32 v12, 0x7ffffff0
    v_cmp_gt_u32 vcc, {NF}, v11             ; byte offset < NF*4 checked below
    s_mul_i32 s35, s19, {NF*4}
    v_lshrrev_b32 v13, 2, v11
    v_cmp_gt_u32 vcc, {NF}, v13
    s_nop 7
    v_cndmask_b32 v11, v12, v11, vcc
    s_nop 3
    buffer_store_dword v96, v11, s[28:31], s35 offen {SC}
    """.replace(f"v_cmp_gt_u32 vcc, {NF}, v11             ; byte offset < NF*4 checked below\n", "").replace(f"v_cmp_gt_u32 vcc, {NF}, v13", f"v_mov_b32 v15, {NF}\n    v_cmp_gt_u32 vcc, v15, v13"))

def unitB_load(a, n, vb):
    a("""
    s_mul_i32 s35, s40, 160
    v_mov_b32 v19, 0x7ffffff0
    """)
    for p in range(7):
        a(f"""
        v_add_u32 v3, {256*p}, v0               ; i
        v_mul_u32_u24 v4, 6554, v3
        v_lshrrev_b32 v4, 16, v4                ; row
        v_mul_u32_u24 v5, 10, v4
        v_sub_u32 v5, v3, v5                    ; piece
        v_add_u32 v6, s41, v4                   ; k
        s_cmp_eq_u32 s43, 0
        s_cbranch_scc1 {n}_row{p}
        v_lshrrev_b32 v7, 3, v6                 ; chunk
        v_and_b32 v8, 7, v6
        v_mul_u32_u24 v9, 205, v7
        v_lshrrev_b32 v9, 10, v9
        v_mul_u32_u24 v10, 5, v9
        v_sub_u32 v10, v7, v10
        v_lshrrev_b32 v11, 1, v10
        v_and_b32 v12, 1, v10
        v_lshl_add_u32 v12, v12, 3, v8
        v_lshrrev_b32 v13, 2, v8
        v_and_b32 v14, 3, v8
        v_add_u32 v14, 16, v14
        v_cmp_eq_u32 vcc, 4, v10
        s_nop 1
        v_cndmask_b32 v11, v11, v13, vcc
        v_cndmask_b32 v12, v12, v14, vcc
        v_lshl_add_u32 v11, v9, 1, v11
        v_mul_u32_u24 v11, 20, v11
        v_add_u32 v6, v11, v12
        """)
        a.label(f"{n}_row{p}")
        a(f"""
        v_mul_u32_u24 v6, 1280, v6
        v_lshl_add_u32 v6, v5, 4, v6
        v_cmp_gt_u32 vcc, s42, v4
        s_nop 1
        v_cndmask_b32 v6, v19, v6, vcc
        buffer_load_dwordx4 v[{vb+4*p}:{vb+4*p+3}], v6, s[44:47], s35 offen
        """)

def unitB_proc(a, n, vb, lds):
    a(f"""
    v_lshlrev_b32 v10, 4, v0
    v_add_u32 v10, {lds}, v10
    """)
    for p in range(7):
        a(f"ds_write_b128 v10, v[{vb+4*p}:{vb+4*p+3}] offset:{p*4096}")
    a(f"""
    v_and_b32 v1, 63, v0
    v_lshrrev_b32 v11, 4, v1                ; kg
    v_bfe_u32 v12, v1, 2, 2                 ; r
    v_and_b32 v13, 3, v1                    ; c'
    v_lshl_add_u32 v12, v11, 3, v12
    v_mul_u32_u24 v12, 160, v12
    v_add_u32 v12, {lds}, v12
    v_lshl_add_u32 v14, v13, 4, v12
    v_lshl_add_u32 v15, v13, 3, v12
    v_lshlrev_b32 v10, 4, v1
    s_mov_b32 s50, s{S_W}
    s_waitcnt lgkmcnt(0)
    s_barrier
    """)
    a.label(f"{n}_ks")
    a(f"""
    s_add_u32 s33, s48, s50
    s_cmp_ge_u32 s33, s49
    s_cbranch_scc1 {n}_done
    s_mul_i32 s36, s50, {32*160}
    v_add_u32 v16, s36, v14
    v_add_u32 v17, s36, v15
    """)
    F = 70
    for ft in range(5):
        for u in range(2):
            if ft < 4: a(f"ds_read_b64_tr_b16 v[{F+4*ft+2*u}:{F+4*ft+2*u+1}], v16 offset:{u*640 + (0, 8, 64, 72)[ft]}")
            else: a(f"ds_read_b64_tr_b16 v[{F+4*ft+2*u}:{F+4*ft+2*u+1}], v17 offset:{u*640 + 128}")
    a(f"""
    s_mul_i32 s34, s40, s49
    s_add_u32 s34, s34, s33
    s_mul_i32 s34, s34, 5120
    """)
    for ft in range(5):
        a(f"s_waitcnt lgkmcnt({8-2*ft})")
        a(f"buffer_store_dwordx4 v[{F+4*ft}:{F+4*ft+3}], v10, s[24:27], s34 offen {SC}")
        if ft < 4: a("s_add_u32 s34, s34, 1024")
    a(f"""
    s_add_u32 s50, s50, 4
    s_mul_i32 s36, s50, 32
    s_cmp_lt_u32 s36, s42
    s_cbranch_scc1 {n}_ks
    """)
    a.label(f"{n}_done")

def unitC_load(a, vb):
    a(f"""
    s_sub_u32 s33, s2, 120
    s_lshl_b32 s33, s33, 4                  ; first token of the workgroup
    s_lshl_b32 s34, s{S_W}, 2
    s_add_u32 s34, s34, s33
    v_and_b32 v1, 63, v0
    v_lshrrev_b32 v3, 4, v1
    v_add_u32 v3, s34, v3                   ; row
    v_and_b32 v4, 15, v1
    v_mul_u32_u24 v5, 1280, v3
    v_lshl_add_u32 v5, v4, 4, v5
    """)
    srd(a, 20, 4, 0, M * D * 2)
    for i in range(5):
        a(f"buffer_load_dwordx4 v[{vb+4*i}:{vb+4*i+3}], v5, s[20:23], 0 offen offset:{256*i}")

def unitC_proc(a, vb, lds):
    a(f"""
    s_sub_u32 s33, s2, 120
    s_lshl_b32 s33, s33, 4
    v_and_b32 v1, 63, v0
    v_and_b32 v4, 15, v1                    ; sub
    v_lshrrev_b32 v3, 4, v0                 ; token in the workgroup (0..15)
    v_lshlrev_b32 v5, 8, v4
    v_lshl_add_u32 v5, v3, 4, v5
    v_add_u32 v5, {lds}, v5
    """)
    for i in range(5):
        a(f"ds_write_b128 v5, v[{vb+4*i}:{vb+4*i+3}] offset:{i*4096}")
    srd(a, 24, 6, ws.X0, ws.X0_SZ)
    srd(a, 28, 6, ws.ST0, ws.ST0_SZ)
    a("""
    v_mov_b32 v6, 0
    v_mov_b32 v7, 0
    """)
    for i in range(20):
        r = vb + i
        a(f"""
        v_lshlrev_b32 v8, 16, v{r}
        v_and_b32 v9, 0xffff0000, v{r}
        v_add_f32 v6, v6, v8
        v_fmac_f32 v7, v8, v8
        v_add_f32 v6, v6, v9
        v_fmac_f32 v7, v9, v9
        """)
    for rot in (8, 4, 2, 1):
        a(f"""
        s_nop 1
        v_add_f32_dpp v6, v6, v6 row_ror:{rot} row_mask:0xf bank_mask:0xf
        v_add_f32_dpp v7, v7, v7 row_ror:{rot} row_mask:0xf bank_mask:0xf
        """)
    a(f"""
    v_add_u32 v10, s33, v3
    v_lshlrev_b32 v10, 3, v10
    v_mov_b32 v11, 0x7ffffff0
    v_cmp_eq_u32 vcc, 0, v4
    v_lshlrev_b32 v12, 4, v0
    v_add_u32 v12, {lds}, v12
    v_cndmask_b32 v10, v11, v10, vcc
    buffer_store_dwordx2 v[6:7], v10, s[28:31], 0 offen {SC}
    s_waitcnt lgkmcnt(0)
    s_barrier
    """)
    F = 70
    for i in range(5):
        a(f"ds_read_b128 v[{F+4*i}:{F+4*i+3}], v12 offset:{i*4096}")
    a(f"""
    v_lshrrev_b32 v13, 4, v0
    v_lshlrev_b32 v13, 15, v13
    v_and_b32 v14, 15, v0
    v_add_u32 v14, s33, v14
    v_lshl_add_u32 v13, v14, 4, v13
    s_mov_b32 s34, 0
    """)
    for i in range(5):
        a(f"s_waitcnt lgkmcnt({4-i})")
        a(f"buffer_store_dwordx4 v[{F+4*i}:{F+4*i+3}], v13, s[24:27], s34 offen {SC}")
        if i < 4: a(f"s_add_u32 s34, s34, {16*32768}")

def p0_phase(a, n):
    V1 = 20; V2 = 40
    a(f"""
    s_cmp_lt_u32 s2, 120
    s_cbranch_scc1 {n}_l1a
    s_cmp_lt_u32 s2, 248
    s_cbranch_scc1 {n}_l1c
    s_cmp_lg_u32 s2, 255
    s_cbranch_scc1 {n}_l2
    """)
    srd(a, 20, 6, ws.CNT, ws.CNT_SZ)
    a("""
    v_mov_b32 v20, 0
    v_mov_b32 v21, 0
    v_mov_b32 v22, 0
    v_mov_b32 v23, 0
    v_lshlrev_b32 v5, 4, v0
    """)
    for i in range(ws.CNT_SZ // 4096):
        a(f"s_movk_i32 s36, {i*4096}")
        a(f"buffer_store_dwordx4 v[20:23], v5, s[20:23], s36 offen {SC}")
    a(f"""
    s_waitcnt vmcnt(0)
    s_barrier
    v_mov_b32 v5, 0
    v_mov_b32 v6, 1
    s_mov_b64 exec, 1
    global_store_dword v5, v6, s[10:11] sc1
    s_mov_b64 exec, -1
    s_branch {n}_l2
    """)
    a.label(f"{n}_l1a")
    a("s_mov_b32 s17, s2")
    unitA_load(a, f"{n}_a1", "qkv", V1)
    a(f"s_branch {n}_l2")
    a.label(f"{n}_l1c")
    unitC_load(a, V1)
    a.label(f"{n}_l2")
    a(f"""
    s_cmp_lt_u32 s2, 112
    s_cbranch_scc0 {n}_l2b
    s_mov_b32 s17, s2
    """)
    unitA_load(a, f"{n}_a2", "w1", V2)
    a(f"s_branch {n}_p1")
    a.label(f"{n}_l2b")
    a(f"""
    s_cmp_lt_u32 s2, 224
    s_cbranch_scc0 {n}_l2o
    s_sub_u32 s33, s2, 112
    s_mul_i32 s40, s33, 4682
    s_lshr_b32 s40, s40, 16                 ; j
    s_mul_i32 s34, s40, 14
    s_sub_u32 s34, s33, s34                 ; kr
    s_lshl_b32 s41, s34, 7
    s_movk_i32 s42, 128
    s_mov_b32 s43, 0
    s_lshl_b32 s48, s34, 2
    s_movk_i32 s49, 54
    """)
    srd(a, 44, P_W2, 0, 1728 * 640 * 2)
    a(f"s_branch {n}_l2g")
    a.label(f"{n}_l2o")
    a(f"""
    s_sub_u32 s33, s2, 224
    s_lshr_b32 s40, s33, 2                  ; j
    s_and_b32 s34, s33, 3
    s_mul_i32 s41, s34, 160
    s_movk_i32 s42, 160
    s_mov_b32 s43, 1
    s_mul_i32 s48, s34, 5
    s_movk_i32 s49, 20
    """)
    srd(a, 44, P_WO, 0, 640 * 640 * 2)
    a.label(f"{n}_l2g")
    unitB_load(a, f"{n}_b", V2)
    a.label(f"{n}_p1")
    stamp(a, 1)
    a(f"""
    s_waitcnt vmcnt(7)
    s_cmp_lt_u32 s2, 120
    s_cbranch_scc1 {n}_p1a
    s_cmp_lt_u32 s2, 248
    s_cbranch_scc0 {n}_arr
    """)
    unitC_proc(a, V1, LDS_R1)
    a(f"s_branch {n}_arr")
    a.label(f"{n}_p1a")
    unitA_proc(a, f"{n}_pa1", "qkv", V1, LDS_R1, "s2")
    a.label(f"{n}_arr")
    stamp(a, 2)
    dbgw(a, 2)
    a(f"""
    s_cmp_lg_u32 s{S_W}, 0
    s_cbranch_scc1 {n}_flag_ok
    v_mov_b32 v250, 0
    s_mov_b32 s101, 0
    """)
    a.label(f"{n}_flag")
    a(f"""
    global_load_dword v251, v250, s[10:11] sc1
    s_add_u32 s101, s101, 1
    s_waitcnt vmcnt(0)
    v_readfirstlane_b32 s100, v251
    s_cmp_ge_u32 s101, {SPIN_MAX}
    s_cbranch_scc1 {n}_flag_ok
    s_cmp_lg_u32 s100, 0
    s_cbranch_scc1 {n}_flag_ok
    s_sleep 1
    s_branch {n}_flag
    """)
    a.label(f"{n}_flag_ok")
    a("s_lshr_b32 s17, s2, 4")
    arrive_tree(a, "s17", C_P0, 16, T_P0)
    stamp(a, 3)
    a(f"""
    s_cmp_lt_u32 s2, 112
    s_cbranch_scc0 {n}_p2b
    """)
    unitA_proc(a, f"{n}_pa2", "w1", V2, LDS_R2, "s2")
    a(f"s_branch {n}_p2d")
    a.label(f"{n}_p2b")
    a(f"""
    s_add_u32 s24, s6, {ws.W2}
    s_addc_u32 s25, s7, 0
    s_add_u32 s100, s6, {ws.WO}
    s_addc_u32 s101, s7, 0
    s_cmp_eq_u32 s43, 0
    s_cselect_b32 s24, s24, s100
    s_cselect_b32 s25, s25, s101
    s_and_b32 s25, s25, 0xffff
    s_mov_b32 s26, {ws.WO_SZ}
    s_cselect_b32 s26, {ws.W2_SZ}, s26
    s_mov_b32 s27, 0x20000
    """)
    unitB_proc(a, f"{n}_pb", V2, LDS_R2)
    a.label(f"{n}_p2d")
    stamp(a, 4)
    wait_tree(a, T_P0, 16)
    stamp(a, 5)

LDS_MEGA = LDS_X + 1024 + 512

def gen_mega(a, name):
    kernel_header(a, name)
    n = name
    a(f"""
    s_cmp_ge_u32 s2, 256
    s_cbranch_scc1 {n}_end
    s_load_dwordx2 s[4:5], s[0:1], 0
    s_load_dwordx2 s[6:7], s[0:1], 64
    s_load_dwordx4 s[8:11], s[0:1], 48
    s_load_dwordx4 s[{P_WQKV}:{P_WQKV+3}], s[0:1], 8
    s_load_dwordx4 s[{P_W1}:{P_W1+3}], s[0:1], 32
    v_lshrrev_b32 v1, 6, v0
    s_and_b32 s{S_X}, s2, 7
    v_readfirstlane_b32 s{S_W}, v1
    s_lshr_b32 s{S_JX}, s2, 3
    s_mov_b32 s{S_L}, 0
    s_mov_b32 s{S_LOFF}, 0
    s_mov_b32 s{S_CL}, 0
    s_waitcnt lgkmcnt(0)
    s_add_u32 s{S_CB}, s6, {ws.CNT}
    s_addc_u32 s{S_CB+1}, s7, 0
    """)
    if not os.environ.get("NOCPF"):
        a(f"s_branch {n}_cpf")
        a.label(f"{n}_cpf_ret")
    PH[0] = 5; stamp(a, 0)
    dbgw(a, 1)
    p0_phase(a, f"{n}_p0")
    a.label(f"{n}_layer")
    def w_qkv():
        _uid[0] += 1; u = _uid[0]
        a(f"s_cmp_eq_u32 s{S_L}, 0")
        a(f"s_cbranch_scc1 skipw_{u}")
        wait(a, f"s{LN.S_MB}", C_DN, 1, 16, prev_layer=True)
        a.label(f"skipw_{u}")
    PH[0] = 0; stamp(a, 0)
    ln_phase(a, "qkv", f"{n}_qkv", w_qkv)
    stamp(a, 5)
    arrive_tree(a, f"s{LN.S_MB}", C_QKV, 16, T_QKV)
    PH[0] = 1; stamp(a, 0)
    k_attn2.attn_phase(a, f"{n}_att", 6, ('L', ws.Q), ('L', ws.K), ('L', ws.V), ('L', ws.O), sc=SC, scl=SCL,
                       srd_fn=lambda d, off, size: srd_s(a, d, 6, off, size),
                       wait_fn=lambda: wait_tree(a, T_QKV, 16), stamp_fn=stamp)
    stamp(a, 5)
    arrive_tree(a, f"s{k_attn2.S_QB}", C_ATT, 32, T_ATT)
    PH[0] = 2; stamp(a, 0)
    def w_wo():
        wait_tree(a, T_ATT, 8)
    rs_phase(a, "wo", f"{n}_wo", w_wo)
    stamp(a, 5)
    arrive(a, f"s{RS.S_MBK}", C_WO)
    PH[0] = 3; stamp(a, 0)
    ln_phase(a, "w1", f"{n}_up", lambda: wait(a, f"s{LN.S_MB}", C_WO, 1, 16))
    stamp(a, 5)
    arrive(a, f"s{LN.S_MB}", C_UP)
    PH[0] = 4; stamp(a, 0)
    rs_phase(a, "w2", f"{n}_dn", lambda: wait(a, f"s{RS.S_MBK}", C_UP, 1, 16))
    stamp(a, 5)
    arrive(a, f"s{RS.S_MBK}", C_DN)
    a(f"""
    s_mov_b32 s{S_L}, 1
    s_mov_b32 s{S_LOFF}, {LAYER_SZ if os.environ.get("SEPL") else 0}
    s_mov_b32 s{S_CL}, {NCNT*128}
    s_branch {n}_layer
    """)
    a.label(f"{n}_end")
    a("s_endpgm")
    if not os.environ.get("NOCPF"):
        a.label(f"{n}_cpf")
        a(f"s_getpc_b64 s[20:21]")
        a.label(f"{n}_cpf_pc")
        a(f"""
        s_sub_u32 s20, s20, {n}_cpf_pc-{n}
        s_subb_u32 s21, s21, 0
        s_and_b32 s21, s21, 0xffff
        s_mov_b32 s22, {n}_cpf_pc-{n}
        s_mov_b32 s23, 0x20000
        s_lshl_b32 s24, s{S_JX}, 12
        v_lshlrev_b32 v2, 4, v0
        buffer_load_dwordx4 v[244:247], v2, s[20:23], s24 offen
        s_branch {n}_cpf_ret
        """)
    return kernel_desc(name, 256, 256, 102)
```

```python
from asm import *
from layout import *
import asm as ASM

V_LANE = 1; V_TOK = 2; V_H = 3
V_KA = 4
V_K2A = 5
V_VA = 6
V_T = 8
V_S = 16
V_P = 48
V_R = 56
V_X = 128
A_Q = 0; A_O = 24; A_K = 88; A_V = 112
NB = 4
NA = 144
S_W = 16
S_HEAD = 17; S_QB = 18; S_P = 19; S_HH = 20; S_PASS = 21
NT = 4
S_G = 68; S_KH = 69
LDS_RED = 4 * 2 * 3 * 1024
LDS_MX = LDS_RED
LDS_FLAG = LDS_MX + 4096
LDS_ATT = LDS_FLAG + 64

def Qf(t): return A_Q + 6*t
def Kf(b): return A_K + 6*b
def Vf(b): return A_V + 8*b
def Sb(b): return V_S + 16*b
def Oa(t): return A_O + 16*t
M16 = "v_mfma_f32_32x32x16_bf16"
M8 = "v_mfma_f32_32x32x8_bf16"

def attn_phase(a, n, wsptr, qoff, koff, voff, ooff, sc="", scl=None, id_sgpr=2, srd_fn=None, wait_fn=None, stamp_fn=None, pf=None):
    a(f"""
    s_and_b32 s22, s{id_sgpr}, 7
    s_lshr_b32 s23, s{id_sgpr}, 3
    s_and_b32 s24, s23, 3
    s_lshl_b32 s24, s24, 3
    s_add_u32 s{S_HEAD}, s22, s24               ; head
    s_lshr_b32 s{S_QB}, s{id_sgpr}, 5
    s_lshr_b32 s{S_P}, s{S_HEAD}, 1
    s_and_b32 s{S_HH}, s{S_HEAD}, 1
    v_and_b32 v{V_LANE}, 63, v0
    v_and_b32 v{V_TOK}, 31, v0
    v_bfe_u32 v{V_H}, v0, 5, 1
    v_lshlrev_b32 v{V_KA}, 4, v{V_LANE}
    v_lshlrev_b32 v{V_K2A}, 4, v{V_TOK}
    s_lshl_b32 s23, s{S_HH}, 3
    v_add_u32 v{V_K2A}, s23, v{V_K2A}
    v_mul_u32_u24 v{V_VA}, 320, v{V_H}
    v_lshl_add_u32 v{V_VA}, v{V_TOK}, 4, v{V_VA}
    s_mov_b32 s24, 0xffffffff
    s_mov_b32 s25, 0
    s_mov_b32 s26, 0x000fffff
    s_mov_b32 s27, 0x000fffff
    """)
    if srd_fn is None: srd_fn = lambda d, off, size: srd2(a, d, wsptr, off, size)
    srd_fn(28, qoff, ws.Q_SZ)
    srd_fn(32, koff, ws.K_SZ)
    srd_fn(36, voff, ws.V_SZ)
    srd_fn(40, ooff, ws.O_SZ)
    a(f"""
    s_and_b32 s{S_G}, s{S_W}, 1
    s_lshr_b32 s{S_KH}, s{S_W}, 1
    s_lshl_b32 s44, s{S_HEAD}, 6                ; head*64
    s_lshl_b32 s45, s{S_QB}, 3
    s_lshl_b32 s46, s{S_G}, 2
    s_add_u32 s45, s45, s46
    s_add_u32 s46, s44, s45
    s_lshl_b32 s46, s46, 10                     ; Q1 offset
    s_lshl_b32 s47, s{S_P}, 6
    s_add_u32 s47, s47, s45
    s_lshl_b32 s47, s47, 9
    s_add_u32 s47, s47, {QK1_SZ}                ; Q2 offset
    s_lshl_b32 s48, s{S_KH}, 5
    s_add_u32 s49, s44, s48
    s_lshl_b32 s50, s49, 10                     ; K1 base
    s_mul_i32 s51, s49, 1280                    ; V base
    s_lshl_b32 s52, s{S_P}, 6
    s_add_u32 s52, s52, s48
    s_lshl_b32 s52, s52, 9
    s_add_u32 s52, s52, {QK1_SZ}                ; K2 base
    s_mov_b32 s{S_PASS}, 0
    v_mov_b32 v{V_T}, 0
    v_mov_b32 v{V_T+1}, 0x3f803f80
    v_mov_b32 v{V_T+2}, 0x00003f80
    """)
    for t in range(NT):
        a(f"v_accvgpr_write_b32 a{Qf(t)+4}, v{V_T}")
        a(f"v_accvgpr_write_b32 a{Qf(t)+5}, v{V_T}")
    for b in range(NB):
        a(f"v_accvgpr_write_b32 a{Kf(b)+4}, v{V_T+1}")
        a(f"v_accvgpr_write_b32 a{Kf(b)+5}, v{V_T+2}")
        for i in range(8):
            a(f"v_accvgpr_write_b32 a{Vf(b)+i}, v{V_T+1}")
    return _attn_rest(a, n, sc, sc if scl is None else scl, wait_fn, stamp_fn or stamp, pf)

def srd2(a, d, ptr, off, size):
    if isinstance(off, int):
        srd(a, d, ptr, off, size)
    else:
        a(f"s_add_u32 s{d}, s{ptr}, {off}")
        a(f"s_addc_u32 s{d+1}, s{ptr+1}, 0")
        a(f"s_and_b32 s{d+1}, s{d+1}, 0xffff")
        a(f"s_mov_b32 s{d+2}, {size}")
        a(f"s_mov_b32 s{d+3}, 0x20000")

def _attn_rest(a, n, sc, scl, wait_fn, stamp, pf):
    def kv_loads(b, with_v=True):
        L = [[f"buffer_load_dwordx4 a[{Kf(b)}:{Kf(b)+3}], v{V_KA}, s[32:35], s53 offen {scl}"],
             ["s_mov_b64 exec, s[24:25]",
              f"buffer_load_dwordx2 a[{Kf(b)+4}:{Kf(b)+5}], v{V_K2A}, s[32:35], s55 offen {scl}",
              "s_mov_b64 exec, -1"]]
        if with_v:
            L.append(["s_mov_b64 exec, s[26:27]",
                      f"buffer_load_dwordx4 a[{Vf(b)}:{Vf(b)+3}], v{V_VA}, s[36:39], s54 offen {scl}",
                      f"buffer_load_dwordx4 a[{Vf(b)+4}:{Vf(b)+7}], v{V_VA}, s[36:39], s54 offen offset:640 {scl}",
                      "s_mov_b64 exec, -1"])
        L.append(["s_add_u32 s53, s53, 1024"]); L.append(["s_add_u32 s54, s54, 1280"]); L.append(["s_add_u32 s55, s55, 512"])
        return L
    def load_kv(b, with_v=True):
        for bun in kv_loads(b, with_v):
            for l in bun: a(l)
    def qk(t, b, sb):
        S = f"v[{Sb(sb)}:{Sb(sb)+15}]"
        return [f"{M16} {S}, a[{Kf(b)}:{Kf(b)+3}], a[{Qf(t)}:{Qf(t)+3}], 0",
                f"{M8} {S}, a[{Kf(b)+4}:{Kf(b)+5}], a[{Qf(t)+4}:{Qf(t)+5}], {S}"]
    def pv(t, b, m):
        c = f"a[{Oa(t)}:{Oa(t)+15}]"
        return f"{M16} {c}, a[{Vf(b)+4*m}:{Vf(b)+4*m+3}], v[{V_P+4*m}:{V_P+4*m+3}], {c}"

    def zero_acc():
        a(f"v_mov_b32 v{V_T}, 0")
        for t in range(NT):
            for i in range(16):
                a(f"v_accvgpr_write_b32 a{Oa(t)+i}, v{V_T}")
        for i in range(4, 8):
            a(f"v_mov_b32 v{V_P+i}, 0")
    zero_acc()
    if pf: pf["setup"](a)
    stamp(a, 1)
    if wait_fn: wait_fn()
    stamp(a, 2)
    a("""
    s_mov_b32 s53, s50
    s_mov_b32 s54, s51
    s_mov_b32 s55, s52
    """)
    load_kv(0)
    for t in range(NT):
        a(f"buffer_load_dwordx4 a[{Qf(t)}:{Qf(t)+3}], v{V_KA}, s[28:31], s46 offen offset:{(t & 3)*1024} {scl}")
    a("s_mov_b64 exec, s[24:25]")
    for t in range(NT):
        a(f"buffer_load_dwordx2 a[{Qf(t)+4}:{Qf(t)+5}], v{V_K2A}, s[28:31], s47 offen offset:{t*512} {scl}")
    a("s_mov_b64 exec, -1")
    load_kv(1)
    a(f"s_branch {n}_start")
    a.label(f"{n}_main")
    a("""
    s_mov_b32 s53, s50
    s_mov_b32 s54, s51
    s_mov_b32 s55, s52
    """)
    load_kv(0)
    load_kv(1)
    zero_acc()
    a.label(f"{n}_start")
    a("s_waitcnt vmcnt(4)")
    for l in qk(0, 0, 0): a(l)
    stamp(a, 3)
    a("s_mov_b32 s56, 8")
    a("s_nop 7")
    a("s_nop 2")
    a.lines.append(".p2align 6")
    a.label(f"{n}_loop")
    for b in range(NB):
        for t in range(NT):
            sb = t & 1; nsb = sb ^ 1
            S = Sb(sb); P = V_P
            nb_ = (b + 1) % NB; pb_ = (b - 1) % NB; lb = (b + 2) % NB
            nq = qk(t+1, b, nsb) if t < NT-1 else qk(0, nb_, nsb)
            prev = pv(t-1, b, 1) if t > 0 else pv(NT-1, pb_, 1)
            E = [f"v_exp_f32 v{S+i}, v{S+i}" for i in range(16)]
            C = [f"v_cvt_pk_bf16_f32 v{P+i}, v{S+2*i}, v{S+2*i+1}" for i in range(8)]
            extra = [[], [], [], []]
            kv = kv_loads(lb)
            if t == 0:
                extra[0] = kv[0]; extra[1] = kv[1]; extra[2] = kv[2]; extra[3] = kv[3]
            if t == 1:
                extra[0] = kv[4]; extra[1] = kv[5]
            if t == NT-2:
                extra[3] = [f"s_waitcnt vmcnt({4 + len(pf['load']) if (pf and b < 2) else 4})"]
            if pf and b == 0 and t == 2:
                extra[0] = pf["load"]
            if pf and b == 2 and t == 1:
                extra[2] = pf["next"][0]; extra[3] = pf["next"][1]
            if pf and b == 2 and t == 2:
                extra[0] = pf["next"][2]; extra[1] = pf["next"][3]
            if b == NB-1 and t == NT-1:
                extra[0] = ["s_sub_u32 s56, s56, 1"]
                extra[3] = ["s_cmp_lg_u32 s56, 0"]
            a(nq[0])
            for l in extra[0]: a(l)
            a(E[0]); a(E[1]); a(E[2]); a(E[3]); a(C[0]); a(C[1])
            a(nq[1])
            for l in extra[1]: a(l)
            a(E[4]); a(E[5]); a(E[6]); a(E[7]); a(C[2]); a(C[3])
            a(prev)
            for l in extra[2]: a(l)
            a(E[8]); a(E[9]); a(E[10]); a(E[11]); a(C[4]); a(C[5])
            a(pv(t, b, 0))
            for l in extra[3]: a(l)
            a(E[12]); a(E[13]); a(E[14]); a(E[15]); a(C[6]); a(C[7])
    a(f"s_cbranch_scc1 {n}_loop")
    a("s_nop 1")
    a(pv(NT-1, NB-1, 1))
    a("s_waitcnt vmcnt(0)")
    stamp(a, 4)
    R = V_R
    X = V_X
    a(f"""
    s_mul_i32 s57, s{S_W}, 6144
    v_add_u32 v{V_T}, s57, v{V_KA}
    s_xor_b32 s58, s{S_W}, 2
    s_mul_i32 s58, s58, 6144
    v_add_u32 v{V_T+1}, s58, v{V_KA}
    s_cmp_eq_u32 s{S_KH}, 0
    s_nop 7
    s_cbranch_scc1 {n}_x0
    """)
    for kh in (1, 0):
        if kh == 0: a.label(f"{n}_x0")
        give = (0, 1) if kh == 1 else (2, 3)
        keep = (2, 3) if kh == 1 else (0, 1)
        for u, t in enumerate(give):
            for q in range(3):
                a(f"ds_write_b128 v{V_T}, a[{Oa(t)+4*q}:{Oa(t)+4*q+3}] offset:{(u*3+q)*1024}")
        for u, t in enumerate(keep):
            for i in range(12):
                a(f"v_accvgpr_read_b32 v{R+12*u+i}, a{Oa(t)+i}")
        if kh == 1: a(f"s_branch {n}_x1")
    a.label(f"{n}_x1")
    a("""
    s_waitcnt lgkmcnt(0)
    s_barrier
    """)
    for u in range(2):
        for q in range(3):
            a(f"ds_read_b128 v[{R+24+12*u+4*q}:{R+24+12*u+4*q+3}], v{V_T+1} offset:{(u*3+q)*1024}")
    a(f"""
    s_mul_i32 s57, s{S_P}, 5
    s_lshl_b32 s58, s{S_HH}, 1
    s_add_u32 s58, s58, s57
    v_add_u32 v{X+6}, s58, v{V_H}
    v_lshlrev_b32 v{X+6}, 15, v{X+6}
    v_lshl_add_u32 v{X+6}, v{V_TOK}, 4, v{X+6}
    s_add_u32 s57, s57, 4
    s_lshl_b32 s57, s57, 15
    s_lshl_b32 s58, s{S_KH}, 1
    s_add_u32 s58, s58, s45
    s_lshl_b32 s58, s58, 9
    s_add_u32 s57, s57, s58
    v_cmp_eq_u32 vcc, 0, v{V_H}
    s_waitcnt lgkmcnt(0)
    """)
    for u in range(2):
        Ru = R + 12*u
        for i in range(12):
            a(f"v_add_f32 v{Ru+i}, v{Ru+i}, v{R+24+12*u+i}")
        a(f"""
        v_mov_b32 v{X}, v{Ru+8}
        v_mov_b32 v{X+1}, v{Ru+8}
        v_add_f32 v{X+3}, abs(v{Ru}), abs(v{Ru+1})
        v_add_f32 v{X+4}, abs(v{Ru+8}), abs(v{Ru+9})
        v_permlane32_swap_b32 v{X}, v{X+1}
        v_rcp_f32 v{X+2}, v{X+1}
        """)
        for i in range(2, 8):
            a(f"v_add_f32 v{X+3}, v{X+3}, abs(v{Ru+i})")
        for i in range(10, 12):
            a(f"v_add_f32 v{X+4}, v{X+4}, abs(v{Ru+i})")
        a(f"""
        v_cndmask_b32 v{X+4}, 0, v{X+4}, vcc
        v_add_f32 v{X+3}, v{X+3}, v{X+4}
        s_mov_b32 s59, 0x7f000000
        v_cmp_ngt_f32 s[60:61], s59, v{X+3}
        s_mov_b32 s59, 0x21800000                   ; 2^-60
        v_cmp_nle_f32 s[62:63], s59, v{X+1}
        s_mov_b32 s59, 0x5d800000                   ; 2^60
        v_cmp_nge_f32 s[64:65], s59, v{X+1}
        """)
        for i in range(12):
            a(f"v_mul_f32 v{Ru+i}, v{Ru+i}, v{X+2}")
        a("""
        s_or_b64 s[60:61], s[60:61], s[62:63]
        s_or_b64 s[60:61], s[60:61], s[64:65]
        """)
        if u == 0: a("s_mov_b64 s[66:67], s[60:61]")
        else: a("s_or_b64 s[66:67], s[66:67], s[60:61]")
        Pk = R + 48 + 8*u
        for i in range(6):
            a(f"v_cvt_pk_bf16_f32 v{Pk+i}, v{Ru+2*i}, v{Ru+2*i+1}")
        a(f"""
        buffer_store_dwordx4 v[{Pk}:{Pk+3}], v{X+6}, s[40:43], s58 offen offset:{u*512} {sc}
        s_mov_b64 exec, s[24:25]
        buffer_store_dwordx2 v[{Pk+4}:{Pk+5}], v{V_K2A}, s[40:43], s57 offen offset:{u*512} {sc}
        s_mov_b64 exec, -1
        """)
    a(f"""
    s_cmp_lg_u64 s[66:67], 0
    s_cselect_b32 s59, 1, 0
    s_cmp_lg_u32 s{S_PASS}, 0
    s_cselect_b32 s59, 0, s59
    v_mov_b32 v{X+4}, s59
    s_lshl_b32 s57, s{S_W}, 2
    s_add_u32 s57, s57, {LDS_FLAG}
    v_mov_b32 v{X+5}, s57
    ds_write_b32 v{X+5}, v{X+4}
    s_waitcnt lgkmcnt(0)
    s_barrier
    v_mov_b32 v{X+5}, {LDS_FLAG}
    ds_read_b128 v[{X+6}:{X+9}], v{X+5}
    s_waitcnt lgkmcnt(0)
    v_or_b32 v{X+6}, v{X+6}, v{X+7}
    v_or_b32 v{X+8}, v{X+8}, v{X+9}
    v_or_b32 v{X+6}, v{X+6}, v{X+8}
    s_nop 0
    v_readfirstlane_b32 s59, v{X+6}
    s_nop 3
    s_cmp_eq_u32 s59, 0
    s_cbranch_scc1 {n}_fin
    """)
    a.c("fallback: exact row maxima over all keys")
    a("""
    s_barrier
    s_mov_b32 s53, s50
    s_mov_b32 s54, s51
    s_mov_b32 s55, s52
    """)
    MX = V_R
    for t in range(NT):
        a(f"v_mov_b32 v{MX+t}, 0xff800000")
    a("s_mov_b32 s56, 32")
    a.label(f"{n}_mxloop")
    load_kv(0, with_v=False)
    a("s_waitcnt vmcnt(0)")
    S = Sb(0)
    for t in range(NT):
        for l in qk(t, 0, 0): a(l)
        a("s_nop 7")
        a("s_nop 3")
        for i in range(0, 16, 2):
            a(f"v_max3_f32 v{MX+t}, v{MX+t}, v{S+i}, v{S+i+1}")
    a("""
    s_sub_u32 s56, s56, 1
    s_cmp_lg_u32 s56, 0
    """)
    a(f"s_cbranch_scc1 {n}_mxloop")
    for t in range(NT):
        a(f"""
        v_mov_b32 v{X}, v{MX+t}
        v_mov_b32 v{X+1}, v{MX+t}
        s_nop 1
        v_permlane32_swap_b32 v{X}, v{X+1}
        v_max_f32 v{MX+t}, v{X}, v{X+1}
        """)
    a(f"""
    s_lshl_b32 s57, s{S_W}, 9
    s_add_u32 s57, s57, {LDS_MX}
    v_lshl_add_u32 v{X}, v{V_TOK}, 2, s57
    """)
    for t in range(NT):
        a(f"ds_write_b32 v{X}, v{MX+t} offset:{t*128}")
    a(f"""
    s_waitcnt lgkmcnt(0)
    s_barrier
    s_xor_b32 s57, s{S_W}, 2
    s_lshl_b32 s57, s57, 9
    s_add_u32 s57, s57, {LDS_MX}
    v_lshl_add_u32 v{X}, v{V_TOK}, 2, s57
    """)
    for t in range(NT):
        a(f"ds_read_b32 v{V_S+t}, v{X} offset:{t*128}")
    a("s_waitcnt lgkmcnt(0)")
    a(f"v_cmp_ne_u32 vcc, 0, v{V_H}")
    for t in range(NT):
        m = X + 1
        a(f"""
        v_max_f32 v{m}, v{MX+t}, v{V_S+t}
        v_sub_f32 v{m}, 0, v{m}                     ; -max
        v_and_b32 v{m+1}, 0xffff0000, v{m}          ; hi
        v_sub_f32 v{m}, v{m}, v{m+1}
        v_and_b32 v{m+2}, 0xffff0000, v{m}          ; mid
        v_sub_f32 v{m}, v{m}, v{m+2}
        v_lshrrev_b32 v{m+1}, 16, v{m+1}
        v_or_b32 v{m+1}, v{m+1}, v{m+2}
        v_lshrrev_b32 v{m}, 16, v{m}                ; (lo, 0)
        v_accvgpr_read_b32 v{m+3}, a{Qf(t)+4}
        v_accvgpr_read_b32 v{m+4}, a{Qf(t)+5}
        v_cndmask_b32 v{m+3}, v{m+3}, v{m+1}, vcc
        v_cndmask_b32 v{m+4}, v{m+4}, v{m}, vcc
        v_accvgpr_write_b32 a{Qf(t)+4}, v{m+3}
        v_accvgpr_write_b32 a{Qf(t)+5}, v{m+4}
        """)
    a(f"""
    s_mov_b32 s{S_PASS}, 1
    s_barrier
    s_branch {n}_main
    """)
    a.label(f"{n}_fin")

def gen_attn2(a, name):
    kernel_header(a, name)
    n = name
    a(f"""
    s_cmp_ge_u32 s2, 256
    s_cbranch_scc1 {n}_end
    s_load_dwordx2 s[6:7], s[0:1], 64
    """)
    stamp(a, 0)
    a(f"""
    v_lshrrev_b32 v{V_T}, 6, v0
    s_nop 0
    v_readfirstlane_b32 s{S_W}, v{V_T}
    s_waitcnt lgkmcnt(0)
    """)
    attn_phase(a, n, 6, ws.Q, ws.K, ws.V, ws.O)
    stamp(a, 5)
    if ASM.STAMPS: a("s_mov_b32 s92, 2")
    stamp_dump(a, 5, "s92")
    a.label(f"{n}_end")
    a("s_endpgm")
    return kernel_desc(name, 144, NA, 102 if ASM.STAMPS else 72)
```

```python
import os, math, struct
from asm import *
import asm as ASM
from layout3 import *
import k_attn2

EXP = os.environ.get("EXP", "")
SC = "sc1"
SCL = os.environ.get("SCL", "sc1")
SCW = os.environ.get("SCW", "sc1")
def f32hex(x): return "0x%08x" % struct.unpack("<I", struct.pack("<f", x))[0]
QSCALE = (DH ** -0.5) * math.log2(math.e)
LOG2E = math.log2(math.e)

S_X = 12; S_JX = 13; S_L = 14; S_LOFF = 15; S_W = 16
S_CL = 97
S_CB = 98
SPIN_MAX = 1 << 18

def srd_s(a, d, ptr, off, size):
    if isinstance(off, tuple):
        a(f"s_add_u32 s{d}, s{S_LOFF}, {off[1]}")
        a(f"s_add_u32 s{d}, s{d}, s{ptr}")
        a(f"s_addc_u32 s{d+1}, s{ptr+1}, 0")
        a(f"s_and_b32 s{d+1}, s{d+1}, 0xffff")
        a(f"s_mov_b32 s{d+2}, {size}")
        a(f"s_mov_b32 s{d+3}, 0x20000")
    else:
        srd(a, d, ptr, off, size)

def srd_sel(a, d, size, first_ptr, first_off, ws_off):
    a(f"""
    s_add_u32 s{d}, s6, {ws_off}
    s_addc_u32 s{d+1}, s7, 0
    s_add_u32 s100, s{first_ptr}, {first_off}
    s_addc_u32 s101, s{first_ptr+1}, 0
    s_cmp_eq_u32 s{S_L}, 0
    s_cselect_b32 s{d}, s100, s{d}
    s_cselect_b32 s{d+1}, s101, s{d+1}
    s_and_b32 s{d+1}, s{d+1}, 0xffff
    s_mov_b32 s{d+2}, {size}
    s_mov_b32 s{d+3}, 0x20000
    """)

_uid = [0]
PH = [0]
STAMP_OFF = 60 << 20
DBGW = os.environ.get("DBGW")
def dbgw(a, slot):
    if DBGW is None: return
    _uid[0] += 1; u = _uid[0]
    a(f"""
    s_cmp_lg_u32 s{S_W}, 0
    s_cbranch_scc1 dw_skip_{u}
    s_cmp_lg_u32 s2, {int(DBGW)}
    s_cbranch_scc1 dw_skip_{u}
    s_memrealtime s[94:95]
    s_mul_i32 s93, s{S_L}, 5
    s_add_u32 s93, s93, {slot}
    s_lshl_b32 s93, s93, 2
    s_waitcnt lgkmcnt(0)
    v_mov_b32 v252, s94
    v_mov_b32 v254, s93
    global_store_dword v254, v252, s[10:11]
    """)
    a.label(f"dw_skip_{u}")

def stamp(a, i):
    if i == 0 and PH[0] < 5: dbgw(a, 3 + PH[0])
    if not ASM.STAMPS: return
    _uid[0] += 1; u = _uid[0]
    k = PH[0] * 8 + i
    a(f"""
    s_cmp_lg_u32 s{S_W}, 0
    s_cbranch_scc1 st_skip_{u}
    {"s_memtime" if os.environ.get("STAMPCLK") else "s_memrealtime"} s[94:95]
    s_lshl_b32 s93, s{S_L}, 6
    s_add_u32 s93, s93, {k}
    s_lshl_b32 s93, s93, 11
    s_lshl_b32 s92, s2, 3
    s_add_u32 s93, s93, s92
    s_add_u32 s93, s93, {STAMP_OFF}
    s_waitcnt lgkmcnt(0)
    v_mov_b32 v252, s94
    v_mov_b32 v253, s95
    v_mov_b32 v254, s93
    global_store_dwordx2 v254, v[252:253], s[6:7]
    """)
    a.label(f"st_skip_{u}")

def arrive(a, idx_sgpr, first, vt=250):
    _uid[0] += 1; u = _uid[0]
    a(f"""
    s_waitcnt vmcnt(0) lgkmcnt(0)
    s_barrier
    s_cmp_lg_u32 s{S_W}, 0
    s_cbranch_scc1 arr_done_{u}
    s_add_u32 s100, {idx_sgpr}, {first}
    s_lshl_b32 s100, s100, 7
    s_add_u32 s100, s100, s{S_CL}
    v_mov_b32 v{vt}, s100
    v_mov_b32 v{vt+1}, 1
    s_mov_b64 exec, 1
    global_atomic_add v{vt}, v{vt+1}, s[{S_CB}:{S_CB+1}] sc1
    s_mov_b64 exec, -1
    """)
    a.label(f"arr_done_{u}")

def arrive_tree(a, idx_sgpr, first, per, top, vt=250):
    _uid[0] += 1; u = _uid[0]
    a(f"""
    s_waitcnt vmcnt(0) lgkmcnt(0)
    s_barrier
    s_cmp_lg_u32 s{S_W}, 0
    s_cbranch_scc1 art_done_{u}
    s_add_u32 s100, {idx_sgpr}, {first}
    s_lshl_b32 s100, s100, 7
    s_add_u32 s100, s100, s{S_CL}
    v_mov_b32 v{vt}, s100
    v_mov_b32 v{vt+1}, 1
    s_mov_b64 exec, 1
    global_atomic_add v{vt+2}, v{vt}, v{vt+1}, s[{S_CB}:{S_CB+1}] sc0 sc1
    s_waitcnt vmcnt(0)
    v_readfirstlane_b32 s100, v{vt+2}
    s_mov_b64 exec, -1
    s_cmp_lg_u32 s100, {per-1}
    s_cbranch_scc1 art_done_{u}
    v_and_b32 v{vt}, 7, v0
    v_lshlrev_b32 v{vt}, 7, v{vt}
    s_add_u32 s100, s{S_CL}, {top*128}
    v_add_u32 v{vt}, s100, v{vt}
    s_mov_b64 exec, 0xff
    global_atomic_add v{vt}, v{vt+1}, s[{S_CB}:{S_CB+1}] sc1
    s_mov_b64 exec, -1
    """)
    a.label(f"art_done_{u}")

def wait_tree(a, top, ngroups):
    a("s_and_b32 s101, s2, 7")
    wait(a, "s101", top, 1, ngroups)

def wait(a, idx_sgpr, first, nlanes, expected, prev_layer=False, vt=250):
    _uid[0] += 1; u = _uid[0]
    a(f"""
    s_cmp_lg_u32 s{S_W}, 0
    s_cbranch_scc1 wt_done_{u}
    s_add_u32 s100, {idx_sgpr}, {first}
    s_lshl_b32 s100, s100, 7
    s_add_u32 s100, s100, s{S_CL}
    """)
    if prev_layer: a(f"s_sub_u32 s100, s100, {NCNT*128}")
    a(f"""
    v_and_b32 v{vt}, {nlanes-1}, v0
    v_lshlrev_b32 v{vt}, 7, v{vt}
    v_add_u32 v{vt}, s100, v{vt}
    s_mov_b32 s101, 0
    s_mov_b64 exec, {hex((1 << nlanes) - 1)}
    """)
    a.label(f"wt_poll_{u}")
    a(f"""
    global_load_dword v{vt+1}, v{vt}, s[{S_CB}:{S_CB+1}] sc1
    s_add_u32 s101, s101, 1
    s_waitcnt vmcnt(0)
    v_cmp_le_u32 vcc, {expected}, v{vt+1}
    s_cmp_ge_u32 s101, {SPIN_MAX}
    s_cbranch_scc1 wt_ok_{u}
    s_cmp_eq_u64 vcc, exec
    s_cbranch_scc1 wt_ok_{u}
    s_sleep 1
    s_branch wt_poll_{u}
    """)
    a.label(f"wt_ok_{u}")
    a("s_mov_b64 exec, -1")
    a.label(f"wt_done_{u}")
    a("s_barrier")

LDS_X = 9 * 16384
LDS_MISC = LDS_X
class LN:
    V_LANE = 1; V_TOK = 2; V_H = 3; V_ST = 4; V_WOFF = 6
    V_R = 8; V_T = 20; V_XF = 32; V_ACC = 80; V_E = 144
    S_MB = 17; S_NB = 18; S_SL = 19
PW = int(os.environ.get("PW", "5"))

def ln_ids(a, mode):
    L = LN
    a(f"""
    s_and_b32 s20, s{S_X}, 3
    s_lshl_b32 s20, s20, 2
    s_and_b32 s21, s{S_JX}, 3
    s_add_u32 s{L.S_MB}, s20, s21
    s_lshr_b32 s20, s{S_X}, 2
    s_lshl_b32 s20, s20, 3
    s_lshr_b32 s21, s{S_JX}, 2
    s_add_u32 s{L.S_NB}, s20, s21
    """)

def ln_phase(a, mode, base, wait_fn):
    L = LN
    V_LANE, V_TOK, V_H, V_ST, V_WOFF, V_R, V_T, V_XF, V_ACC, V_E = (L.V_LANE, L.V_TOK, L.V_H, L.V_ST, L.V_WOFF, L.V_R, L.V_T, L.V_XF, L.V_ACC, L.V_E)
    S_MB, S_NB, S_SL = L.S_MB, L.S_NB, L.S_SL
    NB = 15 if mode == "qkv" else 14
    ln_ids(a, mode)
    a(f"""
    s_cmp_ge_u32 s{S_NB}, {NB}
    s_cbranch_scc1 {base}_idle
    s_lshl_b32 s{S_SL}, s{S_NB}, 2
    s_add_u32 s{S_SL}, s{S_SL}, s{S_W}          ; slice
    v_and_b32 v{V_LANE}, 63, v0
    v_and_b32 v{V_TOK}, 31, v0
    v_lshlrev_b32 v{V_WOFF}, 4, v{V_LANE}
    """)
    if mode == "qkv": wt, wtsz, cs, cssz = ws.WQKV, ws.WQKV_SZ, ws.CSQ, ws.CSQ_SZ
    else: wt, wtsz, cs, cssz = ws.W1, ws.W1_SZ, ws.CS1, ws.CS1_SZ
    srd(a, 24, 6, wt, wtsz)
    a(f"s_mul_i32 s39, s{S_SL}, 40960")
    ops = []
    def w_bundle(n):
        g, i = divmod(n, 4)
        pre = [f"s_add_u32 s41, s39, {g*4096}"] if i == 0 else []
        return (pre + [f"buffer_load_dwordx4 a[{4*n}:{4*n+3}], v{V_WOFF}, s[24:27], s41 offen offset:{i*1024} {SCW}"], ("W", g))
    def d_bundle(g, j):
        slot = g % 9
        ld = f"buffer_load_dwordx4 v{V_WOFF}, s[20:23], s42 offen offset:{(j & 1)*1024} {SCL} lds"
        if j & 1: return ([ld], ("D", g))
        return ([f"s_add_u32 m0, s40, {slot*16384 + (j >> 1)*2048}", f"s_add_u32 s42, s38, {(8*g + (j >> 1))*32768}", ld], ("D", g))
    def emit(b):
        for l in b[0]: a(l)
        ops.append(b[1])
    NF = 1920 if mode == "qkv" else 1728
    for n in range(4*PW): emit(w_bundle(n))
    srd(a, 32, 6, cs, cssz)
    a(f"""
    v_bfe_u32 v{V_H}, v0, 5, 1
    s_lshl_b32 s37, s{S_SL}, 5
    v_add_u32 v{V_T+1}, s37, v{V_TOK}
    v_lshlrev_b32 v{V_T+1}, 2, v{V_T+1}
    v_mul_u32_u24 v{V_T+2}, {16*NF}, v{V_H}
    v_add_u32 v{V_T+1}, v{V_T+1}, v{V_T+2}
    s_movk_i32 s56, {4*NF}
    s_movk_i32 s57, {8*NF}
    s_movk_i32 s58, {12*NF}
    buffer_load_dword v{V_E+8}, v{V_T+1}, s[32:35], 0 offen {SCW}
    buffer_load_dword v{V_E+9}, v{V_T+1}, s[32:35], s56 offen {SCW}
    buffer_load_dword v{V_E+10}, v{V_T+1}, s[32:35], s57 offen {SCW}
    buffer_load_dword v{V_E+11}, v{V_T+1}, s[32:35], s58 offen {SCW}
    v_lshlrev_b32 v{V_T}, 11, v{V_H}
    v_lshl_add_u32 v{V_R}, v{V_TOK}, 4, v{V_T}
    v_add_u32 v{V_R+1}, 0x10000, v{V_R}
    v_add_u32 v{V_R+2}, 0x20000, v{V_R}
    """)
    ops.extend(["C"] * 4)
    if mode == "qkv":
        srd_sel(a, 20, M*D*2, 6, ws.X0, ws.XB)
        srd_sel(a, 28, ws.STB_SZ, 6, ws.ST0, ws.STB)
        a(f"""
        s_cmp_eq_u32 s{S_L}, 0
        s_cselect_b32 s30, {ws.ST0_SZ}, s30
        """)
    else:
        srd_s(a, 20, 6, ('L', ws.XA), M*D*2)
        srd_s(a, 28, 6, ('L', ws.STA), ws.STA_SZ)
    a(f"""
    s_lshl_b32 s36, s{S_MB}, 7
    s_lshl_b32 s37, s{S_W}, 5
    s_add_u32 s36, s36, s37
    v_add_u32 v{V_T}, s36, v{V_TOK}
    v_lshlrev_b32 v{V_T}, 3, v{V_T}
    v_lshlrev_b32 v{V_ST}, 16, v{V_H}
    v_add_u32 v{V_ST}, v{V_ST}, v{V_T}
    s_lshl_b32 s38, s{S_W}, 16
    s_lshl_b32 s37, s{S_MB}, 11
    s_add_u32 s38, s38, s37
    s_lshl_b32 s40, s{S_W}, 12
    s_movk_i32 s56, 16384
    s_mov_b32 s57, 32768
    s_mov_b32 s58, 49152
    """)
    stamp(a, 1)
    wait_fn()
    stamp(a, 2)
    for j in range(4): emit(d_bundle(0, j))
    a(f"""
    buffer_load_dwordx2 v[{V_E}:{V_E+1}], v{V_ST}, s[28:31], 0 offen {SCL}
    buffer_load_dwordx2 v[{V_E+2}:{V_E+3}], v{V_ST}, s[28:31], s56 offen {SCL}
    buffer_load_dwordx2 v[{V_E+4}:{V_E+5}], v{V_ST}, s[28:31], s57 offen {SCL}
    buffer_load_dwordx2 v[{V_E+6}:{V_E+7}], v{V_ST}, s[28:31], s58 offen {SCL}
    """)
    ops += ["S"] * 4
    for j in range(4): emit(d_bundle(1, j))
    a(f"s_waitcnt vmcnt(4)")
    e = V_E
    a(f"""
    v_add_f32 v{e}, v{e}, v{e+2}
    v_add_f32 v{e+1}, v{e+1}, v{e+3}
    v_add_f32 v{e+4}, v{e+4}, v{e+6}
    v_add_f32 v{e+5}, v{e+5}, v{e+7}
    v_add_f32 v{e}, v{e}, v{e+4}
    v_add_f32 v{e+1}, v{e+1}, v{e+5}
    v_add_f32 v{e+8}, v{e+8}, v{e+9}
    v_add_f32 v{e+10}, v{e+10}, v{e+11}
    v_mov_b32 v{e+2}, v{e}
    v_mov_b32 v{e+3}, v{e+1}
    v_add_f32 v{e+12}, v{e+8}, v{e+10}
    v_add_f32 v{e+13}, v{e+8}, v{e+10}
    v_permlane32_swap_b32 v{e}, v{e+2}
    v_permlane32_swap_b32 v{e+1}, v{e+3}
    v_permlane32_swap_b32 v{e+12}, v{e+13}
    v_add_f32 v{e}, v{e}, v{e+2}
    v_add_f32 v{e+1}, v{e+1}, v{e+3}
    v_add_f32 v{e+12}, v{e+12}, v{e+13}
    v_mul_f32 v{e}, {f32hex(1.0/D)}, v{e}       ; mean
    v_mul_f32 v{e+1}, {f32hex(1.0/D)}, v{e+1}
    v_fma_f32 v{e+1}, -v{e}, v{e}, v{e+1}       ; var
    v_max_f32 v{e+1}, 0, v{e+1}
    v_add_f32 v{e+1}, {f32hex(EPS)}, v{e+1}
    v_rsq_f32 v{e+1}, v{e+1}                    ; rstd
    s_lshl_b32 s43, s{S_W}, 7
    v_lshl_add_u32 v{e+4}, v{V_TOK}, 2, s43     ; (32w+tok)*4
    v_mul_f32 v{e+2}, v{e}, v{e+1}
    v_sub_f32 v{e+2}, 0, v{e+2}
    v_add_u32 v{e+4}, {LDS_MISC}, v{e+4}
    ds_write_b32 v{e+4}, v{e+1}
    ds_write_b32 v{e+4}, v{e+2} offset:512
    ds_write_b32 v{e+4}, v{e+12} offset:1024
    s_waitcnt lgkmcnt(0)
    s_barrier
    """)
    stamp(a, 3)
    forms = ["ct", "c"] if mode == "qkv" else ["ct"]
    if mode == "qkv":
        a(f"s_cmp_ge_u32 s{S_NB}, 10")
        a(f"s_cbranch_scc1 {base}_loop_c")
    saved = list(ops)
    for form in forms:
        ops[:] = list(saved)
        a.label(f"{base}_loop_{form}")
        def wait_group(g):
            last = max(i for i, o in enumerate(ops) if o == ("D", g) or o == ("W", g))
            a(f"s_waitcnt vmcnt({len(ops) - 1 - last})")
        def read(n, t):
            g = n >> 2; sp = n & 3; slot = g % 9
            q = slot >> 2; so = (slot & 3) * 16384
            buf = V_XF + 16 * (n % 3)
            a(f"ds_read_b128 v[{buf+4*t}:{buf+4*t+3}], v{V_R+q} offset:{so + sp*4096 + t*512}")
        for t in range(4): read(0, t)
        for t in range(4): read(1, t)
        pending = []
        for g in range(2, 10):
            if g >= PW: pending += [w_bundle(4*g + i) for i in range(4)]
            pending += [d_bundle(g, j) for j in range(4)]
        for n in range(40):
            if n + 2 < 40 and (n + 2) % 4 == 0:
                wait_group((n + 2) >> 2)
                a("s_barrier")
            a(f"s_waitcnt lgkmcnt({4 if n + 1 < 40 else 0})")
            buf = V_XF + 16 * (n % 3)
            for t in range(4):
                acc = f"v[{V_ACC+16*t}:{V_ACC+16*t+15}]"
                c = "0" if n == 0 else acc
                wf = f"a[{4*n}:{4*n+3}]"; xf = f"v[{buf+4*t}:{buf+4*t+3}]"
                if form == "ct": a(f"v_mfma_f32_32x32x16_bf16 {acc}, {wf}, {xf}, {c}")
                else: a(f"v_mfma_f32_32x32x16_bf16 {acc}, {xf}, {wf}, {c}")
                if n + 2 < 40: read(n + 2, t)
                if (t in (0, 2) or n < 4) and pending: emit(pending.pop(0))
        assert not pending
        stamp(a, 4)
        if form == "ct": ln_epilogue_ct(a, mode)
        else: ln_epilogue_v(a)
        if form != forms[-1]: a(f"s_branch {base}_idle")
    a.label(f"{base}_idle")

def ln_epilogue_ct(a, mode):
    L = LN
    V_TOK, V_H, V_T, V_ACC, e = L.V_TOK, L.V_H, L.V_T, L.V_ACC, L.V_E
    S_MB, S_SL = L.S_MB, L.S_SL
    a(f"""
    v_lshlrev_b32 v{V_T}, 2, v{V_TOK}
    v_add_u32 v{V_T}, {LDS_MISC}, v{V_T}
    s_lshl_b32 s43, s{S_W}, 7
    v_lshlrev_b32 v{V_T+1}, 4, v{V_H}
    v_add_u32 v{V_T+1}, s43, v{V_T+1}
    v_add_u32 v{V_T+1}, {LDS_MISC+1024}, v{V_T+1}
    """)
    for t in range(4):
        a(f"ds_read_b32 v{e+2*t}, v{V_T} offset:{t*128}")
        a(f"ds_read_b32 v{e+2*t+1}, v{V_T} offset:{512+t*128}")
    for jj in range(4):
        a(f"ds_read_b128 v[{e+8+4*jj}:{e+11+4*jj}], v{V_T+1} offset:{jj*32}")
    CS = e + 8
    if mode == "qkv":
        a(f"""
        s_cmp_ge_u32 s{S_SL}, 20
        s_mov_b32 s44, {ws.Q}
        s_cselect_b32 s44, {ws.K}, s44
        s_cselect_b32 s45, 20, 0
        s_cselect_b32 s46, 1.0, {f32hex(QSCALE)}
        s_add_u32 s44, s44, s{S_LOFF}
        s_add_u32 s48, s6, s44
        s_addc_u32 s49, s7, 0
        s_and_b32 s49, s49, 0xffff
        s_mov_b32 s50, {ws.Q_SZ}
        s_mov_b32 s51, 0x20000
        s_sub_u32 s45, s{S_SL}, s45
        s_lshl_b32 s45, s45, 2
        s_lshl_b32 s47, s{S_MB}, 2                  ; first T
        """)
        for u in range(2):
            t0 = V_T + 2
            a(f"""
            v_add_u32 v{t0}, s45, v{V_H}
            v_add_u32 v{t0}, {2*u}, v{t0}               ; chunk
            v_mul_u32_u24 v{t0+1}, 205, v{t0}
            v_lshrrev_b32 v{t0+1}, 10, v{t0+1}          ; p
            v_mul_u32_u24 v{t0+2}, 5, v{t0+1}
            v_sub_u32 v{t0+2}, v{t0}, v{t0+2}           ; r
            v_lshrrev_b32 v{t0+3}, 1, v{t0+2}
            v_lshl_add_u32 v{t0+3}, v{t0+1}, 1, v{t0+3} ; head
            v_lshlrev_b32 v{t0+3}, 6, v{t0+3}
            v_add_u32 v{t0+3}, s47, v{t0+3}             ; head*64+T0
            v_lshlrev_b32 v{t0+3}, 10, v{t0+3}
            v_and_b32 v{t0+4}, 1, v{t0+2}
            v_lshl_add_u32 v{t0+3}, v{t0+4}, 9, v{t0+3}
            v_lshl_add_u32 v{t0+3}, v{V_TOK}, 4, v{t0+3}
            v_lshlrev_b32 v{t0+4}, 6, v{t0+1}
            v_add_u32 v{t0+4}, s47, v{t0+4}
            v_lshlrev_b32 v{t0+4}, 9, v{t0+4}
            v_lshl_add_u32 v{t0+4}, v{V_TOK}, 4, v{t0+4}
            v_add_u32 v{t0+4}, {QK1_SZ}, v{t0+4}
            v_cmp_eq_u32 vcc, 4, v{t0+2}
            v_mov_b32 v{t0+5}, 1024
            v_mov_b32 v{t0+6}, 512
            v_cndmask_b32 v{e+24+2*u}, v{t0+3}, v{t0+4}, vcc
            v_cndmask_b32 v{e+25+2*u}, v{t0+5}, v{t0+6}, vcc
            """)
        a("s_waitcnt lgkmcnt(0)")
        for t in range(4):
            a(f"v_mul_f32 v{e+2*t}, s46, v{e+2*t}")
            a(f"v_mul_f32 v{e+2*t+1}, s46, v{e+2*t+1}")
    else:
        srd_s(a, 48, 6, ('L', ws.HH), ws.HH_SZ)
        a(f"""
        s_lshl_b32 s45, s{S_SL}, 2
        v_add_u32 v{V_T+2}, s45, v{V_H}             ; chunk (u=0)
        v_lshlrev_b32 v{V_T+2}, 15, v{V_T+2}
        s_lshl_b32 s47, s{S_MB}, 11
        v_lshl_add_u32 v{V_T+2}, v{V_TOK}, 4, v{V_T+2}
        v_add_u32 v{e+24}, s47, v{V_T+2}
        v_add_u32 v{e+26}, 0x10000, v{e+24}
        v_mov_b32 v{V_T+3}, {f32hex(-LOG2E)}
        s_waitcnt lgkmcnt(0)
        """)
    a("s_nop 4")
    T = e + 32
    for t in range(4):
        A = e + 2*t
        for u in range(2):
            accb = V_ACC + 16*t + 8*u
            csb = CS + 8*u
            for pr in range(4):
                a(f"v_pk_mul_f32 v[{T+2*pr}:{T+2*pr+1}], v[{csb+2*pr}:{csb+2*pr+1}], v[{A}:{A+1}] op_sel:[0,1] op_sel_hi:[1,1]")
            for pr in range(4):
                a(f"v_pk_fma_f32 v[{T+2*pr}:{T+2*pr+1}], v[{accb+2*pr}:{accb+2*pr+1}], v[{A}:{A+1}], v[{T+2*pr}:{T+2*pr+1}] op_sel_hi:[1,0,1]")
            if mode == "w1":
                NL = V_T + 3
                for i in range(8): a(f"v_mul_f32 v{T+8+i}, v{T+i}, v{NL}")
                for i in range(8): a(f"v_exp_f32 v{T+8+i}, v{T+8+i}")
                for i in range(8): a(f"v_add_f32 v{T+8+i}, 1.0, v{T+8+i}")
                for i in range(8): a(f"v_rcp_f32 v{T+8+i}, v{T+8+i}")
                for i in range(8): a(f"v_mul_f32 v{T+i}, v{T+i}, v{T+8+i}")
            P = T + 16 + 4 * ((2*t + u) & 1)
            for pr in range(4): a(f"v_cvt_pk_bf16_f32 v{P+pr}, v{T+2*pr}, v{T+2*pr+1}")
            if mode == "qkv":
                a(f"buffer_store_dwordx4 v[{P}:{P+3}], v{e+24+2*u}, s[48:51], 0 offen {SC}")
                if t < 3: a(f"v_add_u32 v{e+24+2*u}, v{e+24+2*u}, v{e+25+2*u}")
            else:
                a(f"buffer_store_dwordx4 v[{P}:{P+3}], v{e+24+2*u}, s[48:51], 0 offen offset:{t*512} {SC}")

def ln_epilogue_v(a):
    L = LN
    V_TOK, V_H, V_T, V_ACC, e = L.V_TOK, L.V_H, L.V_T, L.V_ACC, L.V_E
    S_MB, S_SL = L.S_MB, L.S_SL
    srd_s(a, 48, 6, ('L', ws.V), ws.V_SZ)
    a(f"""
    s_sub_u32 s45, s{S_SL}, 40
    s_lshl_b32 s45, s45, 5
    v_add_u32 v{V_T}, s45, v{V_TOK}             ; f
    v_mul_u32_u24 v{V_T+1}, 3277, v{V_T}
    v_lshrrev_b32 v{V_T+1}, 16, v{V_T+1}        ; head = f/20
    v_mul_u32_u24 v{V_T+2}, 20, v{V_T+1}
    v_sub_u32 v{V_T+2}, v{V_T}, v{V_T+2}        ; d
    v_bfe_u32 v{V_T+3}, v{V_T+2}, 2, 1
    v_lshlrev_b32 v{V_T+3}, 3, v{V_T+3}
    v_bfe_u32 v{V_T+4}, v{V_T+2}, 3, 1
    v_lshl_add_u32 v{V_T+3}, v{V_T+4}, 2, v{V_T+3}
    v_and_b32 v{V_T+4}, 3, v{V_T+2}
    v_add_u32 v{V_T+3}, v{V_T+3}, v{V_T+4}
    v_cmp_le_u32 vcc, 16, v{V_T+2}
    s_lshl_b32 s47, s{S_MB}, 2
    v_lshlrev_b32 v{V_T+1}, 6, v{V_T+1}
    v_cndmask_b32 v{V_T+3}, v{V_T+3}, v{V_T+2}, vcc
    v_add_u32 v{V_T+1}, s47, v{V_T+1}           ; head*64 + T0
    v_mul_u32_u24 v{V_T+1}, 1280, v{V_T+1}
    v_mul_u32_u24 v{V_T+4}, 320, v{V_H}
    v_add_u32 v{V_T+1}, v{V_T+1}, v{V_T+4}
    v_lshl_add_u32 v{e+24}, v{V_T+3}, 4, v{V_T+1}
    v_lshlrev_b32 v{V_T+5}, 4, v{V_H}
    v_add_u32 v{V_T+5}, {LDS_MISC}, v{V_T+5}
    v_lshlrev_b32 v{V_T+6}, 2, v{V_TOK}
    s_lshl_b32 s43, s{S_W}, 7
    v_add_u32 v{V_T+6}, s43, v{V_T+6}
    v_add_u32 v{V_T+6}, {LDS_MISC+1024}, v{V_T+6}
    ds_read_b32 v{e+26}, v{V_T+6}
    """)
    T = e + 32; AB = e + 56
    for t in range(4):
        for m in range(2):
            for q in range(2):
                jj = 2*m + q
                a(f"ds_read_b128 v[{AB+4*q}:{AB+4*q+3}], v{V_T+5} offset:{(32*t+8*jj)*4}")
                a(f"ds_read_b128 v[{AB+8+4*q}:{AB+8+4*q+3}], v{V_T+5} offset:{512+(32*t+8*jj)*4}")
            a("s_waitcnt lgkmcnt(0)")
            if t == 0 and m == 0: a("s_nop 4")
            accb = V_ACC + 16*t + 8*m
            for pr in range(4):
                a(f"v_pk_mul_f32 v[{T+2*pr}:{T+2*pr+1}], v[{AB+8+2*pr}:{AB+9+2*pr}], v[{e+26}:{e+27}] op_sel_hi:[1,0]")
            for pr in range(4):
                a(f"v_pk_fma_f32 v[{T+2*pr}:{T+2*pr+1}], v[{accb+2*pr}:{accb+2*pr+1}], v[{AB+2*pr}:{AB+2*pr+1}], v[{T+2*pr}:{T+2*pr+1}]")
            P = T + 16 + 4 * m
            for pr in range(4): a(f"v_cvt_pk_bf16_f32 v{P+pr}, v{T+2*pr}, v{T+2*pr+1}")
            if m == 0: a(f"s_movk_i32 s52, {t*1280}")
            a(f"buffer_store_dwordx4 v[{P}:{P+3}], v{e+24}, s[48:51], s52 offen offset:{m*640} {SC}")

class RS:
    V_LANE = 1; V_TOK = 2; V_G = 3; V_WOFF = 4; V_AOFF = 5; V_XOFF = 6; V_XC = 7
    V_R = 8; V_T = 12; V_XO = 20; V_WF = 32; V_ACC = 92; V_E = 112
    S_RB = 17; S_J = 18; S_MBK = 19
SLOT = 20480; NSLOT = 7

def rs_ids(a):
    R = RS
    a(f"""
    s_and_b32 s20, s{S_X}, 3
    s_lshl_b32 s20, s20, 3
    s_and_b32 s21, s{S_JX}, 7
    s_add_u32 s{R.S_RB}, s20, s21
    s_lshr_b32 s20, s{S_X}, 2
    s_lshl_b32 s20, s20, 2
    s_lshr_b32 s21, s{S_JX}, 3
    s_add_u32 s{R.S_J}, s20, s21
    s_lshr_b32 s{R.S_MBK}, s{R.S_RB}, 1
    """)

def rs_phase(a, mode, base, wait_fn):
    R = RS
    V_LANE, V_TOK, V_G, V_WOFF, V_AOFF, V_XOFF, V_R, V_T, V_XO, V_WF, V_ACC, e = (R.V_LANE, R.V_TOK, R.V_G, R.V_WOFF, R.V_AOFF, R.V_XOFF, R.V_R, R.V_T, R.V_XO, R.V_WF, R.V_ACC, R.V_E)
    S_RB, S_J = R.S_RB, R.S_J
    NKS = 20 if mode == "wo" else 54
    NG = (NKS + 3) // 4
    rs_ids(a)
    if mode == "wo": act, actsz, wt, wtsz = ws.O, ws.O_SZ, ws.WO, ws.WO_SZ
    else: act, actsz, wt, wtsz = ws.HH, ws.HH_SZ, ws.W2, ws.W2_SZ
    srd(a, 36, 6, wt, wtsz)
    a(f"""
    v_and_b32 v{V_LANE}, 63, v0
    v_lshlrev_b32 v{V_WOFF}, 4, v{V_LANE}
    s_mul_i32 s45, s{S_J}, {NKS*5120}
    s_mul_i32 s46, s{S_W}, 5120
    s_add_u32 s45, s45, s46
    """)
    ops = []
    def d_bundle(g, j):
        slot = g % NSLOT
        return ([f"s_add_u32 s49, s45, {g*SLOT + j*1024}", f"s_add_u32 m0, s46, {slot*SLOT + j*1024}", "s_nop 0",
                 f"buffer_load_dwordx4 v{V_WOFF}, s[36:39], s49 offen {SCW} lds"], ("D", g))
    def a_bundle(n):
        return ([f"s_add_u32 s49, s44, {n*4*32768}",
                 f"buffer_load_dwordx4 a[{4*n}:{4*n+3}], v{V_AOFF}, s[32:35], s49 offen {SCL}"], ("A", n >> 2))
    def emit(b):
        for l in b[0]: a(l)
        ops.append(b[1])
    NPRE = min(NG, NSLOT)
    for g in range(NPRE):
        for j in range(5): emit(d_bundle(g, j))
    a(f"""
    v_and_b32 v{V_TOK}, 15, v0
    v_bfe_u32 v{V_G}, v0, 4, 2
    v_mov_b32 v{V_R}, v{V_WOFF}
    v_add_u32 v{V_R+1}, 0x10000, v{V_WOFF}
    v_add_u32 v{V_R+2}, 0x20000, v{V_WOFF}
    v_lshlrev_b32 v{V_AOFF}, 15, v{V_G}
    v_lshl_add_u32 v{V_AOFF}, v{V_TOK}, 4, v{V_AOFF}
    s_lshl_b32 s19, s{S_RB}, 6
    s_lshl_b32 s20, s{S_W}, 4
    s_add_u32 s22, s19, s20
    v_add_u32 v{V_T}, s22, v{V_TOK}             ; token
    s_mul_i32 s20, s{S_J}, 10
    v_add_u32 v{V_T+1}, s20, v{V_G}
    v_lshlrev_b32 v{V_T+1}, 15, v{V_T+1}
    v_lshl_add_u32 v{V_XOFF}, v{V_T}, 4, v{V_T+1}
    v_lshrrev_b32 v{V_T+1}, 1, v{V_G}
    v_add_u32 v{V_T+1}, s20, v{V_T+1}
    v_add_u32 v{V_T+1}, 8, v{V_T+1}
    v_lshlrev_b32 v{V_T+1}, 15, v{V_T+1}
    v_lshl_add_u32 v{V_T+1}, v{V_T}, 4, v{V_T+1}
    v_and_b32 v{V_T+2}, 1, v{V_G}
    v_lshl_add_u32 v{RS.V_XC}, v{V_T+2}, 3, v{V_T+1}
    s_mov_b32 s23, {4*32768}
    s_lshl_b32 s44, s22, 4
    s_lshr_b32 s{R.S_MBK}, s{S_RB}, 1
    """)
    if mode == "wo":
        srd_sel(a, 24, M*D*2, 6, ws.X0, ws.XB)
        srd_s(a, 28, 6, ('L', ws.XA), M*D*2)
        srd_s(a, 40, 6, ('L', ws.STA), ws.STA_SZ)
    else:
        srd_s(a, 24, 6, ('L', ws.XA), M*D*2)
        a(f"""
        s_add_u32 s28, s6, {ws.XB}
        s_addc_u32 s29, s7, 0
        s_cmp_eq_u32 s{S_L}, 0
        s_cselect_b32 s28, s28, s8
        s_cselect_b32 s29, s29, s9
        s_and_b32 s29, s29, 0xffff
        s_mov_b32 s30, {M*D*2}
        s_mov_b32 s31, 0x20000
        """)
        srd(a, 40, 6, ws.STB, ws.STB_SZ)
    srd_s(a, 32, 6, ('L', act), actsz)
    a(f"""
    buffer_load_dwordx4 v[{V_XO}:{V_XO+3}], v{V_XOFF}, s[24:27], 0 offen {SCL}
    buffer_load_dwordx4 v[{V_XO+4}:{V_XO+7}], v{V_XOFF}, s[24:27], s23 offen {SCL}
    buffer_load_dwordx2 v[{V_XO+8}:{V_XO+9}], v{RS.V_XC}, s[24:27], 0 offen {SCL}
    """)
    ops += ["X", "X", "X"]
    stamp(a, 1)
    wait_fn()
    stamp(a, 2)
    NS = 4 * NG
    for n in range(8): emit(a_bundle(n))
    def wait_for(kind, g):
        last = max(i for i, o in enumerate(ops) if o == (kind, g))
        a(f"s_waitcnt vmcnt({len(ops) - 1 - last})")
    wait_for("A", 0)
    a("s_barrier")
    stamp(a, 3)
    def read(n, ft):
        g = n >> 2; slot = g % NSLOT
        o = slot*SLOT + (n & 3)*5120 + ft*1024
        buf = V_WF + 20*(n % 3)
        a(f"ds_read_b128 v[{buf+4*ft}:{buf+4*ft+3}], v{V_R+(o>>16)} offset:{o & 0xffff}")
    for ft in range(5): read(0, ft)
    for ft in range(5): read(1, ft)
    for n in range(NS):
        tau = n >> 2
        if n + 2 < NS and (n + 2) % 4 == 0:
            g = (n + 2) >> 2
            if g >= NPRE: wait_for("D", g)
            if NG > NPRE: a("s_barrier")
        if n % 4 == 0 and n > 0: wait_for("A", tau)
        a(f"s_waitcnt lgkmcnt({5 if n + 1 < NS else 0})")
        todo = []
        if tau + 2 < NG and (n & 3) < 2:
            todo = [a_bundle(4*(tau+2) + 2*(n & 3)), a_bundle(4*(tau+2) + 2*(n & 3) + 1)]
        if NPRE <= tau + NSLOT - 1 < NG and (n & 3) >= 2:
            gg = tau + NSLOT - 1
            todo = [d_bundle(gg, j) for j in ((0, 1, 2) if (n & 3) == 2 else (3, 4))]
        buf = V_WF + 20*(n % 3)
        for ft in range(5):
            acc = f"v[{V_ACC+4*ft}:{V_ACC+4*ft+3}]"
            c = "0" if n == 0 else acc
            a(f"v_mfma_f32_16x16x32_bf16 {acc}, v[{buf+4*ft}:{buf+4*ft+3}], a[{4*n}:{4*n+3}], {c}")
            if n + 2 < NS: read(n + 2, ft)
            if ft in (0, 2, 4) and todo: emit(todo.pop(0))
        assert not todo
    stamp(a, 4)
    a("s_nop 7")
    for q in range(10):
        a(f"v_lshlrev_b32 v{e+2*q}, 16, v{V_XO+q}")
        a(f"v_and_b32 v{e+2*q+1}, 0xffff0000, v{V_XO+q}")
    for i in range(20): a(f"v_add_f32 v{e+i}, v{e+i}, v{V_ACC+i}")
    for q in range(10): a(f"v_cvt_pk_bf16_f32 v{e+24+q}, v{e+2*q}, v{e+2*q+1}")
    if mode == "w2":
        a(f"""
        s_cmp_lg_u32 s{S_L}, 0
        s_cbranch_scc1 {base}_last
        """)
    a(f"""
    buffer_store_dwordx4 v[{e+24}:{e+27}], v{V_XOFF}, s[28:31], 0 offen {SC}
    buffer_store_dwordx4 v[{e+28}:{e+31}], v{V_XOFF}, s[28:31], s23 offen {SC}
    buffer_store_dwordx2 v[{e+32}:{e+33}], v{RS.V_XC}, s[28:31], 0 offen {SC}
    """)
    for q in range(10):
        a(f"v_lshlrev_b32 v{e+2*q}, 16, v{e+24+q}")
        a(f"v_and_b32 v{e+2*q+1}, 0xffff0000, v{e+24+q}")
    a(f"v_mov_b32 v{e+40}, 0")
    a(f"v_mov_b32 v{e+41}, 0")
    for i in range(20):
        a(f"v_add_f32 v{e+40}, v{e+40}, v{e+i}")
        a(f"v_fmac_f32 v{e+41}, v{e+i}, v{e+i}")
    a(f"""
    v_mov_b32 v{e+42}, v{e+40}
    v_mov_b32 v{e+43}, v{e+41}
    s_nop 1
    v_permlane32_swap_b32 v{e+40}, v{e+42}
    v_permlane32_swap_b32 v{e+41}, v{e+43}
    v_add_f32 v{e+40}, v{e+40}, v{e+42}
    v_add_f32 v{e+41}, v{e+41}, v{e+43}
    v_mov_b32 v{e+42}, v{e+40}
    v_mov_b32 v{e+43}, v{e+41}
    s_nop 1
    v_permlane16_swap_b32 v{e+40}, v{e+42}
    v_permlane16_swap_b32 v{e+41}, v{e+43}
    v_add_f32 v{e+40}, v{e+40}, v{e+42}
    v_add_f32 v{e+41}, v{e+41}, v{e+43}
    v_add_u32 v{V_T}, s22, v{V_TOK}
    v_lshlrev_b32 v{V_T}, 3, v{V_T}
    s_lshl_b32 s49, s{S_J}, 14
    v_mov_b32 v{V_T+1}, 0x7ffffff0
    v_cmp_eq_u32 vcc, 0, v{V_G}
    s_nop 1
    v_cndmask_b32 v{V_T}, v{V_T+1}, v{V_T}, vcc
    buffer_store_dwordx2 v[{e+40}:{e+41}], v{V_T}, s[40:43], s49 offen {SC}
    """)
    if mode == "w2":
        a(f"s_branch {base}_done")
        a.label(f"{base}_last")
        a(f"""
        v_add_u32 v{V_T}, s22, v{V_TOK}
        v_mul_u32_u24 v{V_T}, 1280, v{V_T}
        s_mul_i32 s49, s{S_J}, 160
        v_lshl_add_u32 v{V_T+1}, v{V_G}, 4, v{V_T}
        v_lshl_add_u32 v{V_T+2}, v{V_G}, 3, v{V_T}
        buffer_store_dwordx4 v[{e+24}:{e+27}], v{V_T+1}, s[28:31], s49 offen
        buffer_store_dwordx4 v[{e+28}:{e+31}], v{V_T+1}, s[28:31], s49 offen offset:64
        buffer_store_dwordx2 v[{e+32}:{e+33}], v{V_T+2}, s[28:31], s49 offen offset:128
        """)
        if ASM.STAMPS: a("s_waitcnt vmcnt(0)")
        stamp(a, 5)
        dbgw(a, 8)
        a("s_endpgm")
        a.label(f"{base}_done")

P_WQKV = 60; P_WO = 62; P_W1 = 64; P_W2 = 66
LDS_R1 = 0; LDS_R2 = 32768

def unitA_load(a, n, which, vb):
    N = 1920 if which == "qkv" else 1728
    ptr = P_WQKV if which == "qkv" else P_W1
    srd(a, 20, ptr, 0, 640 * N * 2)
    a(f"""
    s_lshr_b32 s18, s17, 3                  ; nt
    s_and_b32 s19, s17, 7                   ; k8
    v_and_b32 v3, 31, v0
    v_lshrrev_b32 v4, 5, v0
    v_lshrrev_b32 v5, 3, v3
    v_and_b32 v6, 7, v3                     ; Q
    s_lshl_b32 s33, s18, 2
    v_add_u32 v7, s33, v5                   ; slice
    """)
    if which == "qkv":
        a(f"""
        s_cmp_ge_u32 s18, 10
        s_cbranch_scc1 {n}_vcol
        v_lshrrev_b32 v8, 2, v6
        v_lshlrev_b32 v8, 1, v8
        v_and_b32 v9, 1, v6
        v_add_u32 v8, v8, v9                    ; cidx
        v_bfe_u32 v9, v6, 1, 1                  ; eh
        v_cmp_le_u32 vcc, 20, v7
        s_nop 1
        v_cndmask_b32 v10, 0, 1, vcc            ; sec
        v_mul_u32_u24 v11, 20, v10
        v_sub_u32 v11, v7, v11
        v_lshl_add_u32 v11, v11, 2, v8          ; chunk
        v_mul_u32_u24 v12, 205, v11
        v_lshrrev_b32 v12, 10, v12              ; p
        v_mul_u32_u24 v13, 5, v12
        v_sub_u32 v13, v11, v13                 ; r
        v_lshrrev_b32 v14, 1, v13
        v_and_b32 v15, 1, v13
        v_lshlrev_b32 v15, 3, v15
        v_lshl_add_u32 v15, v9, 2, v15
        v_cmp_eq_u32 vcc, 4, v13
        v_mov_b32 v16, 16
        s_nop 0
        v_cndmask_b32 v14, v14, v9, vcc
        v_cndmask_b32 v15, v15, v16, vcc
        v_lshl_add_u32 v14, v12, 1, v14         ; head
        v_mul_u32_u24 v14, 20, v14
        v_add_u32 v14, v14, v15
        v_mul_u32_u24 v10, 640, v10
        v_add_u32 v8, v14, v10                  ; col
        s_branch {n}_go
        """)
        a.label(f"{n}_vcol")
        a("""
        v_lshlrev_b32 v8, 5, v7
        v_lshl_add_u32 v8, v6, 2, v8
        """)
        a.label(f"{n}_go")
    else:
        a("""
        v_lshlrev_b32 v8, 5, v7
        v_lshrrev_b32 v9, 2, v6
        v_lshl_add_u32 v8, v9, 4, v8
        v_and_b32 v9, 1, v6
        v_lshl_add_u32 v8, v9, 3, v8
        v_bfe_u32 v9, v6, 1, 1
        v_lshl_add_u32 v8, v9, 2, v8
        """)
    a(f"""
    v_mul_u32_u24 v9, {N}, v4
    v_add_u32 v9, v9, v8
    v_lshlrev_b32 v9, 1, v9
    s_mul_i32 s34, s19, {80*N*2}
    """)
    for p in range(10):
        a(f"buffer_load_dwordx2 v[{vb+2*p}:{vb+2*p+1}], v9, s[20:23], s34 offen")
        if p < 9: a(f"s_add_u32 s34, s34, {8*N*2}")

def unitA_proc(a, n, which, vb, lds, unit_sgpr):
    NF = 1920 if which == "qkv" else 1728
    wt, wtsz, cs, cssz = (ws.WQKV, ws.WQKV_SZ, ws.CSQ, ws.CSQ_SZ) if which == "qkv" else (ws.W1, ws.W1_SZ, ws.CS1, ws.CS1_SZ)
    a(f"""
    s_lshr_b32 s18, {unit_sgpr}, 3
    s_and_b32 s19, {unit_sgpr}, 7
    v_lshlrev_b32 v10, 3, v0
    v_add_u32 v10, {lds}, v10
    """)
    for p in range(10):
        a(f"ds_write_b64 v10, v[{vb+2*p}:{vb+2*p+1}] offset:{p*2048}")
    srd(a, 24, 6, wt, wtsz)
    srd(a, 28, 6, cs, cssz)
    a(f"""
    v_and_b32 v1, 63, v0
    v_lshrrev_b32 v11, 4, v1                ; G
    v_bfe_u32 v12, v1, 2, 2                 ; r
    v_and_b32 v13, 3, v1                    ; c'
    v_lshrrev_b32 v14, 1, v11
    v_lshl_add_u32 v14, v14, 3, v12
    v_lshlrev_b32 v14, 8, v14
    v_and_b32 v15, 1, v11
    v_lshl_add_u32 v15, v15, 2, v13
    s_lshl_b32 s33, s{S_W}, 3
    v_add_u32 v15, s33, v15
    v_lshl_add_u32 v14, v15, 3, v14
    v_add_u32 v14, {lds}, v14
    v_mov_b32 v16, 0x3f803f80
    v_mov_b32 v17, 0x3f803f80
    v_mov_b32 v18, 0x3f803f80
    v_mov_b32 v19, 0x3f803f80
    s_waitcnt lgkmcnt(0)
    s_barrier
    """)
    F = 70
    for ks in range(5):
        for u in range(2):
            a(f"ds_read_b64_tr_b16 v[{F+4*ks+2*u}:{F+4*ks+2*u+1}], v14 offset:{ks*4096+u*1024}")
    a(f"""
    s_lshl_b32 s33, s18, 2
    s_add_u32 s33, s33, s{S_W}
    s_mul_i32 s34, s33, 40
    s_mul_i32 s35, s19, 5
    s_add_u32 s34, s34, s35
    s_lshl_b32 s34, s34, 10
    v_lshlrev_b32 v10, 4, v1
    """)
    for ks in range(5):
        a(f"s_waitcnt lgkmcnt({8-2*ks})")
        a(f"buffer_store_dwordx4 v[{F+4*ks}:{F+4*ks+3}], v10, s[24:27], s34 offen {SC}")
        c = "0" if ks == 0 else "v[96:111]"
        a(f"v_mfma_f32_32x32x16_bf16 v[96:111], v[16:19], v[{F+4*ks}:{F+4*ks+3}], {c}")
        if ks < 4: a("s_add_u32 s34, s34, 1024")
    a(f"""
    v_and_b32 v11, 31, v1
    s_lshl_b32 s33, s33, 5
    v_add_u32 v11, s33, v11
    v_lshlrev_b32 v11, 2, v11
    v_mov_b32 v12, 0x7ffffff0
    v_cmp_gt_u32 vcc, {NF}, v11             ; byte offset < NF*4 checked below
    s_mul_i32 s35, s19, {NF*4}
    v_lshrrev_b32 v13, 2, v11
    v_cmp_gt_u32 vcc, {NF}, v13
    s_nop 7
    v_cndmask_b32 v11, v12, v11, vcc
    s_nop 3
    buffer_store_dword v96, v11, s[28:31], s35 offen {SC}
    """.replace(f"v_cmp_gt_u32 vcc, {NF}, v11             ; byte offset < NF*4 checked below\n", "").replace(f"v_cmp_gt_u32 vcc, {NF}, v13", f"v_mov_b32 v15, {NF}\n    v_cmp_gt_u32 vcc, v15, v13"))

def unitB_load(a, n, vb):
    a("""
    s_mul_i32 s35, s40, 160
    v_mov_b32 v19, 0x7ffffff0
    """)
    for p in range(7):
        a(f"""
        v_add_u32 v3, {256*p}, v0               ; i
        v_mul_u32_u24 v4, 6554, v3
        v_lshrrev_b32 v4, 16, v4                ; row
        v_mul_u32_u24 v5, 10, v4
        v_sub_u32 v5, v3, v5                    ; piece
        v_add_u32 v6, s41, v4                   ; k
        s_cmp_eq_u32 s43, 0
        s_cbranch_scc1 {n}_row{p}
        v_lshrrev_b32 v7, 3, v6                 ; chunk
        v_and_b32 v8, 7, v6
        v_mul_u32_u24 v9, 205, v7
        v_lshrrev_b32 v9, 10, v9
        v_mul_u32_u24 v10, 5, v9
        v_sub_u32 v10, v7, v10
        v_lshrrev_b32 v11, 1, v10
        v_and_b32 v12, 1, v10
        v_lshl_add_u32 v12, v12, 3, v8
        v_lshrrev_b32 v13, 2, v8
        v_and_b32 v14, 3, v8
        v_add_u32 v14, 16, v14
        v_cmp_eq_u32 vcc, 4, v10
        s_nop 1
        v_cndmask_b32 v11, v11, v13, vcc
        v_cndmask_b32 v12, v12, v14, vcc
        v_lshl_add_u32 v11, v9, 1, v11
        v_mul_u32_u24 v11, 20, v11
        v_add_u32 v6, v11, v12
        """)
        a.label(f"{n}_row{p}")
        a(f"""
        v_mul_u32_u24 v6, 1280, v6
        v_lshl_add_u32 v6, v5, 4, v6
        v_cmp_gt_u32 vcc, s42, v4
        s_nop 1
        v_cndmask_b32 v6, v19, v6, vcc
        buffer_load_dwordx4 v[{vb+4*p}:{vb+4*p+3}], v6, s[44:47], s35 offen
        """)

def unitB_proc(a, n, vb, lds):
    a(f"""
    v_lshlrev_b32 v10, 4, v0
    v_add_u32 v10, {lds}, v10
    """)
    for p in range(7):
        a(f"ds_write_b128 v10, v[{vb+4*p}:{vb+4*p+3}] offset:{p*4096}")
    a(f"""
    v_and_b32 v1, 63, v0
    v_lshrrev_b32 v11, 4, v1                ; kg
    v_bfe_u32 v12, v1, 2, 2                 ; r
    v_and_b32 v13, 3, v1                    ; c'
    v_lshl_add_u32 v12, v11, 3, v12
    v_mul_u32_u24 v12, 160, v12
    v_add_u32 v12, {lds}, v12
    v_lshl_add_u32 v14, v13, 4, v12
    v_lshl_add_u32 v15, v13, 3, v12
    v_lshlrev_b32 v10, 4, v1
    s_mov_b32 s50, s{S_W}
    s_waitcnt lgkmcnt(0)
    s_barrier
    """)
    a.label(f"{n}_ks")
    a(f"""
    s_add_u32 s33, s48, s50
    s_cmp_ge_u32 s33, s49
    s_cbranch_scc1 {n}_done
    s_mul_i32 s36, s50, {32*160}
    v_add_u32 v16, s36, v14
    v_add_u32 v17, s36, v15
    """)
    F = 70
    for ft in range(5):
        for u in range(2):
            if ft < 4: a(f"ds_read_b64_tr_b16 v[{F+4*ft+2*u}:{F+4*ft+2*u+1}], v16 offset:{u*640 + (0, 8, 64, 72)[ft]}")
            else: a(f"ds_read_b64_tr_b16 v[{F+4*ft+2*u}:{F+4*ft+2*u+1}], v17 offset:{u*640 + 128}")
    a(f"""
    s_mul_i32 s34, s40, s49
    s_add_u32 s34, s34, s33
    s_mul_i32 s34, s34, 5120
    """)
    for ft in range(5):
        a(f"s_waitcnt lgkmcnt({8-2*ft})")
        a(f"buffer_store_dwordx4 v[{F+4*ft}:{F+4*ft+3}], v10, s[24:27], s34 offen {SC}")
        if ft < 4: a("s_add_u32 s34, s34, 1024")
    a(f"""
    s_add_u32 s50, s50, 4
    s_mul_i32 s36, s50, 32
    s_cmp_lt_u32 s36, s42
    s_cbranch_scc1 {n}_ks
    """)
    a.label(f"{n}_done")

def unitC_load(a, vb):
    a(f"""
    s_sub_u32 s33, s2, 120
    s_lshl_b32 s33, s33, 4                  ; first token of the workgroup
    s_lshl_b32 s34, s{S_W}, 2
    s_add_u32 s34, s34, s33
    v_and_b32 v1, 63, v0
    v_lshrrev_b32 v3, 4, v1
    v_add_u32 v3, s34, v3                   ; row
    v_and_b32 v4, 15, v1
    v_mul_u32_u24 v5, 1280, v3
    v_lshl_add_u32 v5, v4, 4, v5
    """)
    srd(a, 20, 4, 0, M * D * 2)
    for i in range(5):
        a(f"buffer_load_dwordx4 v[{vb+4*i}:{vb+4*i+3}], v5, s[20:23], 0 offen offset:{256*i}")

def unitC_proc(a, vb, lds):
    a(f"""
    s_sub_u32 s33, s2, 120
    s_lshl_b32 s33, s33, 4
    v_and_b32 v1, 63, v0
    v_and_b32 v4, 15, v1                    ; sub
    v_lshrrev_b32 v3, 4, v0                 ; token in the workgroup (0..15)
    v_lshlrev_b32 v5, 8, v4
    v_lshl_add_u32 v5, v3, 4, v5
    v_add_u32 v5, {lds}, v5
    """)
    for i in range(5):
        a(f"ds_write_b128 v5, v[{vb+4*i}:{vb+4*i+3}] offset:{i*4096}")
    srd(a, 24, 6, ws.X0, ws.X0_SZ)
    srd(a, 28, 6, ws.ST0, ws.ST0_SZ)
    a("""
    v_mov_b32 v6, 0
    v_mov_b32 v7, 0
    """)
    for i in range(20):
        r = vb + i
        a(f"""
        v_lshlrev_b32 v8, 16, v{r}
        v_and_b32 v9, 0xffff0000, v{r}
        v_add_f32 v6, v6, v8
        v_fmac_f32 v7, v8, v8
        v_add_f32 v6, v6, v9
        v_fmac_f32 v7, v9, v9
        """)
    for rot in (8, 4, 2, 1):
        a(f"""
        s_nop 1
        v_add_f32_dpp v6, v6, v6 row_ror:{rot} row_mask:0xf bank_mask:0xf
        v_add_f32_dpp v7, v7, v7 row_ror:{rot} row_mask:0xf bank_mask:0xf
        """)
    a(f"""
    v_add_u32 v10, s33, v3
    v_lshlrev_b32 v10, 3, v10
    v_mov_b32 v11, 0x7ffffff0
    v_cmp_eq_u32 vcc, 0, v4
    v_lshlrev_b32 v12, 4, v0
    v_add_u32 v12, {lds}, v12
    v_cndmask_b32 v10, v11, v10, vcc
    buffer_store_dwordx2 v[6:7], v10, s[28:31], 0 offen {SC}
    s_waitcnt lgkmcnt(0)
    s_barrier
    """)
    F = 70
    for i in range(5):
        a(f"ds_read_b128 v[{F+4*i}:{F+4*i+3}], v12 offset:{i*4096}")
    a(f"""
    v_lshrrev_b32 v13, 4, v0
    v_lshlrev_b32 v13, 15, v13
    v_and_b32 v14, 15, v0
    v_add_u32 v14, s33, v14
    v_lshl_add_u32 v13, v14, 4, v13
    s_mov_b32 s34, 0
    """)
    for i in range(5):
        a(f"s_waitcnt lgkmcnt({4-i})")
        a(f"buffer_store_dwordx4 v[{F+4*i}:{F+4*i+3}], v13, s[24:27], s34 offen {SC}")
        if i < 4: a(f"s_add_u32 s34, s34, {16*32768}")

def p0_phase(a, n):
    V1 = 20; V2 = 40
    a(f"""
    s_cmp_lt_u32 s2, 120
    s_cbranch_scc1 {n}_l1a
    s_cmp_lt_u32 s2, 248
    s_cbranch_scc1 {n}_l1c
    s_cmp_lg_u32 s2, 255
    s_cbranch_scc1 {n}_l2
    """)
    srd(a, 20, 6, ws.CNT, ws.CNT_SZ)
    a("""
    v_mov_b32 v20, 0
    v_mov_b32 v21, 0
    v_mov_b32 v22, 0
    v_mov_b32 v23, 0
    v_lshlrev_b32 v5, 4, v0
    """)
    for i in range(ws.CNT_SZ // 4096):
        a(f"s_movk_i32 s36, {i*4096}")
        a(f"buffer_store_dwordx4 v[20:23], v5, s[20:23], s36 offen {SC}")
    a(f"""
    s_waitcnt vmcnt(0)
    s_barrier
    v_mov_b32 v5, 0
    v_mov_b32 v6, 1
    s_mov_b64 exec, 1
    global_store_dword v5, v6, s[10:11] sc1
    s_mov_b64 exec, -1
    s_branch {n}_l2
    """)
    a.label(f"{n}_l1a")
    a("s_mov_b32 s17, s2")
    unitA_load(a, f"{n}_a1", "qkv", V1)
    a(f"s_branch {n}_l2")
    a.label(f"{n}_l1c")
    unitC_load(a, V1)
    a.label(f"{n}_l2")
    a(f"""
    s_cmp_lt_u32 s2, 112
    s_cbranch_scc0 {n}_l2b
    s_mov_b32 s17, s2
    """)
    unitA_load(a, f"{n}_a2", "w1", V2)
    a(f"s_branch {n}_p1")
    a.label(f"{n}_l2b")
    a(f"""
    s_cmp_lt_u32 s2, 224
    s_cbranch_scc0 {n}_l2o
    s_sub_u32 s33, s2, 112
    s_mul_i32 s40, s33, 4682
    s_lshr_b32 s40, s40, 16                 ; j
    s_mul_i32 s34, s40, 14
    s_sub_u32 s34, s33, s34                 ; kr
    s_lshl_b32 s41, s34, 7
    s_movk_i32 s42, 128
    s_mov_b32 s43, 0
    s_lshl_b32 s48, s34, 2
    s_movk_i32 s49, 54
    """)
    srd(a, 44, P_W2, 0, 1728 * 640 * 2)
    a(f"s_branch {n}_l2g")
    a.label(f"{n}_l2o")
    a(f"""
    s_sub_u32 s33, s2, 224
    s_lshr_b32 s40, s33, 2                  ; j
    s_and_b32 s34, s33, 3
    s_mul_i32 s41, s34, 160
    s_movk_i32 s42, 160
    s_mov_b32 s43, 1
    s_mul_i32 s48, s34, 5
    s_movk_i32 s49, 20
    """)
    srd(a, 44, P_WO, 0, 640 * 640 * 2)
    a.label(f"{n}_l2g")
    unitB_load(a, f"{n}_b", V2)
    a.label(f"{n}_p1")
    stamp(a, 1)
    a(f"""
    s_waitcnt vmcnt(7)
    s_cmp_lt_u32 s2, 120
    s_cbranch_scc1 {n}_p1a
    s_cmp_lt_u32 s2, 248
    s_cbranch_scc0 {n}_arr
    """)
    unitC_proc(a, V1, LDS_R1)
    a(f"s_branch {n}_arr")
    a.label(f"{n}_p1a")
    unitA_proc(a, f"{n}_pa1", "qkv", V1, LDS_R1, "s2")
    a.label(f"{n}_arr")
    stamp(a, 2)
    dbgw(a, 2)
    a(f"""
    s_cmp_lg_u32 s{S_W}, 0
    s_cbranch_scc1 {n}_flag_ok
    v_mov_b32 v250, 0
    s_mov_b32 s101, 0
    """)
    a.label(f"{n}_flag")
    a(f"""
    global_load_dword v251, v250, s[10:11] sc1
    s_add_u32 s101, s101, 1
    s_waitcnt vmcnt(0)
    v_readfirstlane_b32 s100, v251
    s_cmp_ge_u32 s101, {SPIN_MAX}
    s_cbranch_scc1 {n}_flag_ok
    s_cmp_lg_u32 s100, 0
    s_cbranch_scc1 {n}_flag_ok
    s_sleep 1
    s_branch {n}_flag
    """)
    a.label(f"{n}_flag_ok")
    a("s_lshr_b32 s17, s2, 4")
    arrive_tree(a, "s17", C_P0, 16, T_P0)
    stamp(a, 3)
    a(f"""
    s_cmp_lt_u32 s2, 112
    s_cbranch_scc0 {n}_p2b
    """)
    unitA_proc(a, f"{n}_pa2", "w1", V2, LDS_R2, "s2")
    a(f"s_branch {n}_p2d")
    a.label(f"{n}_p2b")
    a(f"""
    s_add_u32 s24, s6, {ws.W2}
    s_addc_u32 s25, s7, 0
    s_add_u32 s100, s6, {ws.WO}
    s_addc_u32 s101, s7, 0
    s_cmp_eq_u32 s43, 0
    s_cselect_b32 s24, s24, s100
    s_cselect_b32 s25, s25, s101
    s_and_b32 s25, s25, 0xffff
    s_mov_b32 s26, {ws.WO_SZ}
    s_cselect_b32 s26, {ws.W2_SZ}, s26
    s_mov_b32 s27, 0x20000
    """)
    unitB_proc(a, f"{n}_pb", V2, LDS_R2)
    a.label(f"{n}_p2d")
    stamp(a, 4)
    wait_tree(a, T_P0, 16)
    stamp(a, 5)

LDS_MEGA = LDS_X + 1024 + 512

def gen_mega(a, name):
    kernel_header(a, name)
    n = name
    a(f"""
    s_cmp_ge_u32 s2, 256
    s_cbranch_scc1 {n}_end
    s_load_dwordx2 s[4:5], s[0:1], 0
    s_load_dwordx2 s[6:7], s[0:1], 64
    s_load_dwordx4 s[8:11], s[0:1], 48
    s_load_dwordx4 s[{P_WQKV}:{P_WQKV+3}], s[0:1], 8
    s_load_dwordx4 s[{P_W1}:{P_W1+3}], s[0:1], 32
    v_lshrrev_b32 v1, 6, v0
    s_and_b32 s{S_X}, s2, 7
    v_readfirstlane_b32 s{S_W}, v1
    s_lshr_b32 s{S_JX}, s2, 3
    s_mov_b32 s{S_L}, 0
    s_mov_b32 s{S_LOFF}, 0
    s_mov_b32 s{S_CL}, 0
    s_waitcnt lgkmcnt(0)
    s_add_u32 s{S_CB}, s6, {ws.CNT}
    s_addc_u32 s{S_CB+1}, s7, 0
    """)
    if not os.environ.get("NOCPF"):
        a(f"s_branch {n}_cpf")
        a.label(f"{n}_cpf_ret")
    PH[0] = 5; stamp(a, 0)
    dbgw(a, 1)
    p0_phase(a, f"{n}_p0")
    a.label(f"{n}_layer")
    def w_qkv():
        _uid[0] += 1; u = _uid[0]
        a(f"s_cmp_eq_u32 s{S_L}, 0")
        a(f"s_cbranch_scc1 skipw_{u}")
        wait(a, f"s{LN.S_MB}", C_DN, 1, 16, prev_layer=True)
        a.label(f"skipw_{u}")
    PH[0] = 0; stamp(a, 0)
    ln_phase(a, "qkv", f"{n}_qkv", w_qkv)
    stamp(a, 5)
    arrive_tree(a, f"s{LN.S_MB}", C_QKV, 16, T_QKV)
    PH[0] = 1; stamp(a, 0)
    def pf_setup(a):
        srd(a, 72, 6, 0, ws.W2 + ws.W2_SZ)
        a(f"""
        s_lshl_b32 s79, s{S_JX}, 2
        s_add_u32 s79, s79, s{S_W}
        s_lshr_b32 s80, s{S_X}, 2
        s_mul_i32 s76, s80, {4*102400}
        s_mul_i32 s81, s79, 3200
        s_add_u32 s76, s76, s81
        s_add_u32 s76, s76, {ws.WO}
        s_mul_i32 s77, s80, {32*40960}
        s_mul_i32 s81, s79, 10240
        s_add_u32 s77, s77, s81
        s_add_u32 s77, s77, {ws.W1}
        s_mul_i32 s78, s80, {4*54*5120}
        s_mul_i32 s81, s79, 8640
        s_add_u32 s78, s78, s81
        s_add_u32 s78, s78, {ws.W2}
        v_and_b32 v57, 63, v0
        v_lshlrev_b32 v57, 6, v57
        """)
    pf = None if os.environ.get("NOPF") else {
        "setup": pf_setup,
        "load": [f"buffer_load_dword v56, v57, s[72:75], s76 offen {SCW}"],
        "next": [["s_add_u32 s76, s76, 4096", "s_cmp_eq_u32 s56, 8"], ["s_cselect_b32 s76, s77, s76"],
                 ["s_cmp_eq_u32 s56, 5"], ["s_cselect_b32 s76, s78, s76"]]}
    k_attn2.attn_phase(a, f"{n}_att", 6, ('L', ws.Q), ('L', ws.K), ('L', ws.V), ('L', ws.O), sc=SC, scl=SCL,
                       srd_fn=lambda d, off, size: srd_s(a, d, 6, off, size),
                       wait_fn=lambda: wait_tree(a, T_QKV, 16), stamp_fn=stamp, pf=pf)
    stamp(a, 5)
    arrive_tree(a, f"s{k_attn2.S_QB}", C_ATT, 32, T_ATT)
    PH[0] = 2; stamp(a, 0)
    def w_wo():
        wait_tree(a, T_ATT, 8)
    rs_phase(a, "wo", f"{n}_wo", w_wo)
    stamp(a, 5)
    arrive(a, f"s{RS.S_MBK}", C_WO)
    PH[0] = 3; stamp(a, 0)
    ln_phase(a, "w1", f"{n}_up", lambda: wait(a, f"s{LN.S_MB}", C_WO, 1, 16))
    stamp(a, 5)
    arrive(a, f"s{LN.S_MB}", C_UP)
    PH[0] = 4; stamp(a, 0)
    rs_phase(a, "w2", f"{n}_dn", lambda: wait(a, f"s{RS.S_MBK}", C_UP, 1, 16))
    stamp(a, 5)
    arrive(a, f"s{RS.S_MBK}", C_DN)
    a(f"""
    s_mov_b32 s{S_L}, 1
    s_mov_b32 s{S_LOFF}, {LAYER_SZ if os.environ.get("SEPL") else 0}
    s_mov_b32 s{S_CL}, {NCNT*128}
    s_branch {n}_layer
    """)
    a.label(f"{n}_end")
    a("s_endpgm")
    if not os.environ.get("NOCPF"):
        a.label(f"{n}_cpf")
        a(f"s_getpc_b64 s[20:21]")
        a.label(f"{n}_cpf_pc")
        a(f"""
        s_sub_u32 s20, s20, {n}_cpf_pc-{n}
        s_subb_u32 s21, s21, 0
        s_and_b32 s21, s21, 0xffff
        s_mov_b32 s22, {n}_cpf_pc-{n}
        s_mov_b32 s23, 0x20000
        s_lshl_b32 s24, s{S_JX}, 12
        v_lshlrev_b32 v2, 4, v0
        buffer_load_dwordx4 v[244:247], v2, s[20:23], s24 offen
        s_branch {n}_cpf_ret
        """)
    return kernel_desc(name, 256, 256, 102)
```

```python
from asm import *
from layout import *
from layout3 import CSTR, ws as ws3
import asm as ASM

V_LANE = 1; V_TOK = 2; V_H = 3
V_KA = 4
V_K2A = 5
V_VA = 6
V_T = 8
V_S = 16
V_P = 48
V_R = 56
V_X = 128
A_Q = 0; A_O = 24; A_K = 88; A_V = 112
NB = 4
NA = 144
S_W = 16
S_HEAD = 17; S_QB = 18; S_P = 19; S_HH = 20; S_PASS = 21
NT = 4
S_G = 68; S_KH = 69
LDS_B = 102400
LDS_RED = 4 * 2 * 3 * 1024
LDS_MX = LDS_B + LDS_RED
LDS_FLAG = LDS_MX + 4096
LDS_ATT = LDS_FLAG + 64

def Qf(t): return A_Q + 6*t
def Kf(b): return A_K + 6*b
def Vf(b): return A_V + 8*b
def Sb(b): return V_S + 16*b
def Oa(t): return A_O + 16*t
M16 = "v_mfma_f32_32x32x16_bf16"
M8 = "v_mfma_f32_32x32x8_bf16"

def attn_phase(a, n, wsptr, qoff, koff, voff, ooff, sc="", scl=None, id_sgpr=2, srd_fn=None, wait_fn=None, stamp_fn=None, pf=None):
    a(f"""
    s_and_b32 s22, s{id_sgpr}, 7
    s_lshr_b32 s23, s{id_sgpr}, 3
    s_and_b32 s24, s23, 3
    s_lshl_b32 s24, s24, 3
    s_add_u32 s{S_HEAD}, s22, s24               ; head
    s_lshr_b32 s{S_QB}, s{id_sgpr}, 5
    s_lshr_b32 s{S_P}, s{S_HEAD}, 1
    s_and_b32 s{S_HH}, s{S_HEAD}, 1
    v_and_b32 v{V_LANE}, 63, v0
    v_and_b32 v{V_TOK}, 31, v0
    v_bfe_u32 v{V_H}, v0, 5, 1
    v_lshlrev_b32 v{V_KA}, 4, v{V_LANE}
    v_lshlrev_b32 v{V_K2A}, 4, v{V_TOK}
    s_lshl_b32 s23, s{S_HH}, 3
    v_add_u32 v{V_K2A}, s23, v{V_K2A}
    v_mul_u32_u24 v{V_VA}, 320, v{V_H}
    v_lshl_add_u32 v{V_VA}, v{V_TOK}, 4, v{V_VA}
    s_mov_b32 s24, 0xffffffff
    s_mov_b32 s25, 0
    s_mov_b32 s26, 0x000fffff
    s_mov_b32 s27, 0x000fffff
    """)
    if srd_fn is None: srd_fn = lambda d, off, size: srd2(a, d, wsptr, off, size)
    srd_fn(28, qoff, ws.Q_SZ)
    srd_fn(32, koff, ws.K_SZ)
    srd_fn(36, voff, ws.V_SZ)
    srd_fn(40, ooff, ws3.O_SZ)
    a(f"""
    s_and_b32 s{S_G}, s{S_W}, 1
    s_lshr_b32 s{S_KH}, s{S_W}, 1
    s_lshl_b32 s44, s{S_HEAD}, 6                ; head*64
    s_lshl_b32 s45, s{S_QB}, 3
    s_lshl_b32 s46, s{S_G}, 2
    s_add_u32 s45, s45, s46
    s_add_u32 s46, s44, s45
    s_lshl_b32 s46, s46, 10                     ; Q1 offset
    s_lshl_b32 s47, s{S_P}, 6
    s_add_u32 s47, s47, s45
    s_lshl_b32 s47, s47, 9
    s_add_u32 s47, s47, {QK1_SZ}                ; Q2 offset
    s_lshl_b32 s48, s{S_KH}, 5
    s_add_u32 s49, s44, s48
    s_lshl_b32 s50, s49, 10                     ; K1 base
    s_mul_i32 s51, s49, 1280                    ; V base
    s_lshl_b32 s52, s{S_P}, 6
    s_add_u32 s52, s52, s48
    s_lshl_b32 s52, s52, 9
    s_add_u32 s52, s52, {QK1_SZ}                ; K2 base
    s_mov_b32 s{S_PASS}, 0
    v_mov_b32 v{V_T}, 0
    v_mov_b32 v{V_T+1}, 0x3f803f80
    v_mov_b32 v{V_T+2}, 0x00003f80
    """)
    for t in range(NT):
        a(f"v_accvgpr_write_b32 a{Qf(t)+4}, v{V_T}")
        a(f"v_accvgpr_write_b32 a{Qf(t)+5}, v{V_T}")
    for b in range(NB):
        a(f"v_accvgpr_write_b32 a{Kf(b)+4}, v{V_T+1}")
        a(f"v_accvgpr_write_b32 a{Kf(b)+5}, v{V_T+2}")
        for i in range(8):
            a(f"v_accvgpr_write_b32 a{Vf(b)+i}, v{V_T+1}")
    return _attn_rest(a, n, sc, sc if scl is None else scl, wait_fn, stamp_fn or stamp, pf)

def srd2(a, d, ptr, off, size):
    if isinstance(off, int):
        srd(a, d, ptr, off, size)
    else:
        a(f"s_add_u32 s{d}, s{ptr}, {off}")
        a(f"s_addc_u32 s{d+1}, s{ptr+1}, 0")
        a(f"s_and_b32 s{d+1}, s{d+1}, 0xffff")
        a(f"s_mov_b32 s{d+2}, {size}")
        a(f"s_mov_b32 s{d+3}, 0x20000")

def _attn_rest(a, n, sc, scl, wait_fn, stamp, pf):
    def kv_loads(b, with_v=True):
        L = [[f"buffer_load_dwordx4 a[{Kf(b)}:{Kf(b)+3}], v{V_KA}, s[32:35], s53 offen {scl}"],
             ["s_mov_b64 exec, s[24:25]",
              f"buffer_load_dwordx2 a[{Kf(b)+4}:{Kf(b)+5}], v{V_K2A}, s[32:35], s55 offen {scl}",
              "s_mov_b64 exec, -1"]]
        if with_v:
            L.append(["s_mov_b64 exec, s[26:27]",
                      f"buffer_load_dwordx4 a[{Vf(b)}:{Vf(b)+3}], v{V_VA}, s[36:39], s54 offen {scl}",
                      f"buffer_load_dwordx4 a[{Vf(b)+4}:{Vf(b)+7}], v{V_VA}, s[36:39], s54 offen offset:640 {scl}",
                      "s_mov_b64 exec, -1"])
        L.append(["s_add_u32 s53, s53, 1024"]); L.append(["s_add_u32 s54, s54, 1280"]); L.append(["s_add_u32 s55, s55, 512"])
        return L
    def load_kv(b, with_v=True):
        for bun in kv_loads(b, with_v):
            for l in bun: a(l)
    def qk(t, b, sb):
        S = f"v[{Sb(sb)}:{Sb(sb)+15}]"
        return [f"{M16} {S}, a[{Kf(b)}:{Kf(b)+3}], a[{Qf(t)}:{Qf(t)+3}], 0",
                f"{M8} {S}, a[{Kf(b)+4}:{Kf(b)+5}], a[{Qf(t)+4}:{Qf(t)+5}], {S}"]
    def pv(t, b, m):
        c = f"a[{Oa(t)}:{Oa(t)+15}]"
        return f"{M16} {c}, a[{Vf(b)+4*m}:{Vf(b)+4*m+3}], v[{V_P+4*m}:{V_P+4*m+3}], {c}"

    def zero_acc():
        a(f"v_mov_b32 v{V_T}, 0")
        for t in range(NT):
            for i in range(16):
                a(f"v_accvgpr_write_b32 a{Oa(t)+i}, v{V_T}")
        for i in range(4, 8):
            a(f"v_mov_b32 v{V_P+i}, 0")
    zero_acc()
    if pf:
        for l in pf["setup"] + pf["reset"]: a(l)
    stamp(a, 1)
    if wait_fn: wait_fn()
    stamp(a, 2)
    a("""
    s_mov_b32 s53, s50
    s_mov_b32 s54, s51
    s_mov_b32 s55, s52
    """)
    load_kv(0)
    for t in range(NT):
        a(f"buffer_load_dwordx4 a[{Qf(t)}:{Qf(t)+3}], v{V_KA}, s[28:31], s46 offen offset:{(t & 3)*1024} {scl}")
    a("s_mov_b64 exec, s[24:25]")
    for t in range(NT):
        a(f"buffer_load_dwordx2 a[{Qf(t)+4}:{Qf(t)+5}], v{V_K2A}, s[28:31], s47 offen offset:{t*512} {scl}")
    a("s_mov_b64 exec, -1")
    load_kv(1)
    a(f"s_branch {n}_start")
    a.label(f"{n}_main")
    a("""
    s_mov_b32 s53, s50
    s_mov_b32 s54, s51
    s_mov_b32 s55, s52
    """)
    load_kv(0)
    load_kv(1)
    zero_acc()
    if pf:
        for l in pf["reset"]: a(l)
    a.label(f"{n}_start")
    a("s_waitcnt vmcnt(4)")
    for l in qk(0, 0, 0): a(l)
    stamp(a, 3)
    a("s_mov_b32 s56, 8")
    a("s_nop 7")
    a("s_nop 2")
    a.lines.append(".p2align 6")
    a.label(f"{n}_loop")
    for b in range(NB):
        for t in range(NT):
            sb = t & 1; nsb = sb ^ 1
            S = Sb(sb); P = V_P
            nb_ = (b + 1) % NB; pb_ = (b - 1) % NB; lb = (b + 2) % NB
            nq = qk(t+1, b, nsb) if t < NT-1 else qk(0, nb_, nsb)
            prev = pv(t-1, b, 1) if t > 0 else pv(NT-1, pb_, 1)
            E = [f"v_exp_f32 v{S+i}, v{S+i}" for i in range(16)]
            C = [f"v_cvt_pk_bf16_f32 v{P+i}, v{S+2*i}, v{S+2*i+1}" for i in range(8)]
            extra = [[], [], [], []]
            kv = kv_loads(lb)
            if t == 0:
                extra[0] = kv[0]; extra[1] = kv[1]; extra[2] = kv[2]; extra[3] = kv[3]
            if t == 1:
                extra[0] = kv[4]; extra[1] = kv[5]
            if t == NT-2:
                extra[3] = [f"s_waitcnt vmcnt({4 + (pf['nops'] if (pf and b in (1, 2)) else 0)})"]
            if pf:
                for (bb, tt, sl), lines in pf["inloop"].items():
                    if (bb, tt) == (b, t):
                        assert not extra[sl], (b, t, sl)
                        extra[sl] = lines
            if b == NB-1 and t == NT-1:
                extra[0] = ["s_sub_u32 s56, s56, 1"]
                extra[3] = ["s_cmp_lg_u32 s56, 0"]
            a(nq[0])
            for l in extra[0]: a(l)
            a(E[0]); a(E[1]); a(E[2]); a(E[3]); a(C[0]); a(C[1])
            a(nq[1])
            for l in extra[1]: a(l)
            a(E[4]); a(E[5]); a(E[6]); a(E[7]); a(C[2]); a(C[3])
            a(prev)
            for l in extra[2]: a(l)
            a(E[8]); a(E[9]); a(E[10]); a(E[11]); a(C[4]); a(C[5])
            a(pv(t, b, 0))
            for l in extra[3]: a(l)
            a(E[12]); a(E[13]); a(E[14]); a(E[15]); a(C[6]); a(C[7])
    a(f"s_cbranch_scc1 {n}_loop")
    a("s_nop 1")
    a(pv(NT-1, NB-1, 1))
    a("s_waitcnt vmcnt(0)")
    stamp(a, 4)
    R = V_R
    X = V_X
    a(f"""
    s_mul_i32 s57, s{S_W}, 6144
    s_add_u32 s57, s57, {LDS_B}
    v_add_u32 v{V_T}, s57, v{V_KA}
    s_xor_b32 s58, s{S_W}, 2
    s_mul_i32 s58, s58, 6144
    s_add_u32 s58, s58, {LDS_B}
    v_add_u32 v{V_T+1}, s58, v{V_KA}
    s_cmp_eq_u32 s{S_KH}, 0
    s_nop 7
    s_cbranch_scc1 {n}_x0
    """)
    for kh in (1, 0):
        if kh == 0: a.label(f"{n}_x0")
        give = (0, 1) if kh == 1 else (2, 3)
        keep = (2, 3) if kh == 1 else (0, 1)
        for u, t in enumerate(give):
            for q in range(3):
                a(f"ds_write_b128 v{V_T}, a[{Oa(t)+4*q}:{Oa(t)+4*q+3}] offset:{(u*3+q)*1024}")
        for u, t in enumerate(keep):
            for i in range(12):
                a(f"v_accvgpr_read_b32 v{R+12*u+i}, a{Oa(t)+i}")
        if kh == 1: a(f"s_branch {n}_x1")
    a.label(f"{n}_x1")
    a("""
    s_waitcnt lgkmcnt(0)
    s_barrier
    """)
    for u in range(2):
        for q in range(3):
            a(f"ds_read_b128 v[{R+24+12*u+4*q}:{R+24+12*u+4*q+3}], v{V_T+1} offset:{(u*3+q)*1024}")
    a(f"""
    s_mul_i32 s57, s{S_P}, 5
    s_lshl_b32 s58, s{S_HH}, 1
    s_add_u32 s58, s58, s57
    v_add_u32 v{X+6}, s58, v{V_H}
    v_mul_u32_u24 v{X+6}, {CSTR}, v{X+6}
    v_lshl_add_u32 v{X+6}, v{V_TOK}, 4, v{X+6}
    s_add_u32 s57, s57, 4
    s_mul_i32 s57, s57, {CSTR}
    s_lshl_b32 s58, s{S_KH}, 1
    s_add_u32 s58, s58, s45
    s_lshl_b32 s58, s58, 9
    s_add_u32 s57, s57, s58
    v_cmp_eq_u32 vcc, 0, v{V_H}
    s_waitcnt lgkmcnt(0)
    """)
    for u in range(2):
        Ru = R + 12*u
        for i in range(12):
            a(f"v_add_f32 v{Ru+i}, v{Ru+i}, v{R+24+12*u+i}")
        a(f"""
        v_mov_b32 v{X}, v{Ru+8}
        v_mov_b32 v{X+1}, v{Ru+8}
        v_add_f32 v{X+3}, abs(v{Ru}), abs(v{Ru+1})
        v_add_f32 v{X+4}, abs(v{Ru+8}), abs(v{Ru+9})
        v_permlane32_swap_b32 v{X}, v{X+1}
        v_rcp_f32 v{X+2}, v{X+1}
        """)
        for i in range(2, 8):
            a(f"v_add_f32 v{X+3}, v{X+3}, abs(v{Ru+i})")
        for i in range(10, 12):
            a(f"v_add_f32 v{X+4}, v{X+4}, abs(v{Ru+i})")
        a(f"""
        v_cndmask_b32 v{X+4}, 0, v{X+4}, vcc
        v_add_f32 v{X+3}, v{X+3}, v{X+4}
        s_mov_b32 s59, 0x7f000000
        v_cmp_ngt_f32 s[60:61], s59, v{X+3}
        s_mov_b32 s59, 0x21800000                   ; 2^-60
        v_cmp_nle_f32 s[62:63], s59, v{X+1}
        s_mov_b32 s59, 0x5d800000                   ; 2^60
        v_cmp_nge_f32 s[64:65], s59, v{X+1}
        """)
        for i in range(12):
            a(f"v_mul_f32 v{Ru+i}, v{Ru+i}, v{X+2}")
        a("""
        s_or_b64 s[60:61], s[60:61], s[62:63]
        s_or_b64 s[60:61], s[60:61], s[64:65]
        """)
        if u == 0: a("s_mov_b64 s[66:67], s[60:61]")
        else: a("s_or_b64 s[66:67], s[66:67], s[60:61]")
        Pk = R + 48 + 8*u
        for i in range(6):
            a(f"v_cvt_pk_bf16_f32 v{Pk+i}, v{Ru+2*i}, v{Ru+2*i+1}")
        a(f"""
        buffer_store_dwordx4 v[{Pk}:{Pk+3}], v{X+6}, s[40:43], s58 offen offset:{u*512} {sc}
        s_mov_b64 exec, s[24:25]
        buffer_store_dwordx2 v[{Pk+4}:{Pk+5}], v{V_K2A}, s[40:43], s57 offen offset:{u*512} {sc}
        s_mov_b64 exec, -1
        """)
    a(f"""
    s_cmp_lg_u64 s[66:67], 0
    s_cselect_b32 s59, 1, 0
    s_cmp_lg_u32 s{S_PASS}, 0
    s_cselect_b32 s59, 0, s59
    v_mov_b32 v{X+4}, s59
    s_lshl_b32 s57, s{S_W}, 2
    s_add_u32 s57, s57, {LDS_FLAG}
    v_mov_b32 v{X+5}, s57
    ds_write_b32 v{X+5}, v{X+4}
    s_waitcnt lgkmcnt(0)
    s_barrier
    v_mov_b32 v{X+5}, {LDS_FLAG}
    ds_read_b128 v[{X+6}:{X+9}], v{X+5}
    s_waitcnt lgkmcnt(0)
    v_or_b32 v{X+6}, v{X+6}, v{X+7}
    v_or_b32 v{X+8}, v{X+8}, v{X+9}
    v_or_b32 v{X+6}, v{X+6}, v{X+8}
    s_nop 0
    v_readfirstlane_b32 s59, v{X+6}
    s_nop 3
    s_cmp_eq_u32 s59, 0
    s_cbranch_scc1 {n}_fin
    """)
    a.c("fallback: exact row maxima over all keys")
    a("""
    s_barrier
    s_mov_b32 s53, s50
    s_mov_b32 s54, s51
    s_mov_b32 s55, s52
    """)
    MX = V_R
    for t in range(NT):
        a(f"v_mov_b32 v{MX+t}, 0xff800000")
    a("s_mov_b32 s56, 32")
    a.label(f"{n}_mxloop")
    load_kv(0, with_v=False)
    a("s_waitcnt vmcnt(0)")
    S = Sb(0)
    for t in range(NT):
        for l in qk(t, 0, 0): a(l)
        a("s_nop 7")
        a("s_nop 3")
        for i in range(0, 16, 2):
            a(f"v_max3_f32 v{MX+t}, v{MX+t}, v{S+i}, v{S+i+1}")
    a("""
    s_sub_u32 s56, s56, 1
    s_cmp_lg_u32 s56, 0
    """)
    a(f"s_cbranch_scc1 {n}_mxloop")
    for t in range(NT):
        a(f"""
        v_mov_b32 v{X}, v{MX+t}
        v_mov_b32 v{X+1}, v{MX+t}
        s_nop 1
        v_permlane32_swap_b32 v{X}, v{X+1}
        v_max_f32 v{MX+t}, v{X}, v{X+1}
        """)
    a(f"""
    s_lshl_b32 s57, s{S_W}, 9
    s_add_u32 s57, s57, {LDS_MX}
    v_lshl_add_u32 v{X}, v{V_TOK}, 2, s57
    """)
    for t in range(NT):
        a(f"ds_write_b32 v{X}, v{MX+t} offset:{t*128}")
    a(f"""
    s_waitcnt lgkmcnt(0)
    s_barrier
    s_xor_b32 s57, s{S_W}, 2
    s_lshl_b32 s57, s57, 9
    s_add_u32 s57, s57, {LDS_MX}
    v_lshl_add_u32 v{X}, v{V_TOK}, 2, s57
    """)
    for t in range(NT):
        a(f"ds_read_b32 v{V_S+t}, v{X} offset:{t*128}")
    a("s_waitcnt lgkmcnt(0)")
    a(f"v_cmp_ne_u32 vcc, 0, v{V_H}")
    for t in range(NT):
        m = X + 1
        a(f"""
        v_max_f32 v{m}, v{MX+t}, v{V_S+t}
        v_sub_f32 v{m}, 0, v{m}                     ; -max
        v_and_b32 v{m+1}, 0xffff0000, v{m}          ; hi
        v_sub_f32 v{m}, v{m}, v{m+1}
        v_and_b32 v{m+2}, 0xffff0000, v{m}          ; mid
        v_sub_f32 v{m}, v{m}, v{m+2}
        v_lshrrev_b32 v{m+1}, 16, v{m+1}
        v_or_b32 v{m+1}, v{m+1}, v{m+2}
        v_lshrrev_b32 v{m}, 16, v{m}                ; (lo, 0)
        v_accvgpr_read_b32 v{m+3}, a{Qf(t)+4}
        v_accvgpr_read_b32 v{m+4}, a{Qf(t)+5}
        v_cndmask_b32 v{m+3}, v{m+3}, v{m+1}, vcc
        v_cndmask_b32 v{m+4}, v{m+4}, v{m}, vcc
        v_accvgpr_write_b32 a{Qf(t)+4}, v{m+3}
        v_accvgpr_write_b32 a{Qf(t)+5}, v{m+4}
        """)
    a(f"""
    s_mov_b32 s{S_PASS}, 1
    s_barrier
    s_branch {n}_main
    """)
    a.label(f"{n}_fin")

def gen_attn2(a, name):
    kernel_header(a, name)
    n = name
    a(f"""
    s_cmp_ge_u32 s2, 256
    s_cbranch_scc1 {n}_end
    s_load_dwordx2 s[6:7], s[0:1], 64
    """)
    stamp(a, 0)
    a(f"""
    v_lshrrev_b32 v{V_T}, 6, v0
    s_nop 0
    v_readfirstlane_b32 s{S_W}, v{V_T}
    s_waitcnt lgkmcnt(0)
    """)
    attn_phase(a, n, 6, ws.Q, ws.K, ws.V, ws.O)
    stamp(a, 5)
    if ASM.STAMPS: a("s_mov_b32 s92, 2")
    stamp_dump(a, 5, "s92")
    a.label(f"{n}_end")
    a("s_endpgm")
    return kernel_desc(name, 144, NA, 102 if ASM.STAMPS else 72)
```

```python
from layout import M, D, H, DH, F, EPS, al, QK1_SZ, QK2_SZ, chunk_to_hd, rho_to_ce, qkv_col, w1_col, wo_row, v_rho
import os
CSTR = int(os.environ.get('CSTR', '32768'))
class WS: pass
ws = WS()
_off = 0
def _alloc(name, size):
    global _off
    setattr(ws, name, _off); setattr(ws, name + "_SZ", size)
    _off = al(_off + size)
_alloc("WQKV", 60 * 40 * 1024)
_alloc("W1",   54 * 40 * 1024)
_alloc("WO",   8 * 20 * 5120)
_alloc("W2",   8 * 54 * 5120)
_alloc("CSQ",  8 * 1920 * 4)
_alloc("CS1",  8 * 1728 * 4)
_alloc("ST0",  M * 8)
_alloc("X0",   80 * CSTR)
NCNT = 96
C_P0 = 2 * NCNT
_alloc("CNT",  (2 * NCNT + 32) * 128)
L0 = _off
_alloc("Q", QK1_SZ + QK2_SZ)
_alloc("K", QK1_SZ + QK2_SZ)
_alloc("V", 32 * 64 * 1280)
_alloc("O", 80 * CSTR)
_alloc("HH", 216 * CSTR)
_alloc("XA", 80 * CSTR)
_alloc("XB", 80 * CSTR)
_alloc("STA", 8 * M * 8)
_alloc("STB", 8 * M * 8)
LAYER_SZ = _off - L0
WS_USED = _off + LAYER_SZ
C_QKV, C_ATT, C_WO, C_UP, C_DN, T_QKV, T_ATT = 0, 16, 24, 40, 56, 72, 80
T_P0 = C_P0 + 16

def res_feat(j, ft, rho16):
    g, i = rho16 >> 2, rho16 & 3
    if ft < 2: return 80*j + 8*g + 4*ft + i
    if ft < 4: return 80*j + 32 + 8*g + 4*(ft-2) + i
    return 80*j + 64 + 4*g + i
if __name__ == "__main__":
    for k, v in vars(ws).items(): print(k, v)
    print(LAYER_SZ, WS_USED)
```

```python
import os, math, struct
from asm import *
import asm as ASM
from layout3 import *
import k_attn2

EXP = os.environ.get("EXP", "")
SC = "sc1"
SCL = os.environ.get("SCL", "sc1")
SCW = os.environ.get("SCW", "sc1")
def f32hex(x): return "0x%08x" % struct.unpack("<I", struct.pack("<f", x))[0]
QSCALE = (DH ** -0.5) * math.log2(math.e)
LOG2E = math.log2(math.e)

S_X = 12; S_JX = 13; S_L = 14; S_LOFF = 15; S_W = 16
S_CL = 97
S_CB = 98
SPIN_MAX = 1 << 18

def srd_s(a, d, ptr, off, size):
    if isinstance(off, tuple):
        a(f"s_add_u32 s{d}, s{S_LOFF}, {off[1]}")
        a(f"s_add_u32 s{d}, s{d}, s{ptr}")
        a(f"s_addc_u32 s{d+1}, s{ptr+1}, 0")
        a(f"s_and_b32 s{d+1}, s{d+1}, 0xffff")
        a(f"s_mov_b32 s{d+2}, {size}")
        a(f"s_mov_b32 s{d+3}, 0x20000")
    else:
        srd(a, d, ptr, off, size)

def srd_sel(a, d, size, first_ptr, first_off, ws_off):
    a(f"""
    s_add_u32 s{d}, s6, {ws_off}
    s_addc_u32 s{d+1}, s7, 0
    s_add_u32 s100, s{first_ptr}, {first_off}
    s_addc_u32 s101, s{first_ptr+1}, 0
    s_cmp_eq_u32 s{S_L}, 0
    s_cselect_b32 s{d}, s100, s{d}
    s_cselect_b32 s{d+1}, s101, s{d+1}
    s_and_b32 s{d+1}, s{d+1}, 0xffff
    s_mov_b32 s{d+2}, {size}
    s_mov_b32 s{d+3}, 0x20000
    """)

_uid = [0]
PH = [0]
STAMP_OFF = 60 << 20
DBGW = os.environ.get("DBGW")
def dbgw(a, slot):
    if DBGW is None: return
    _uid[0] += 1; u = _uid[0]
    a(f"""
    s_cmp_lg_u32 s{S_W}, 0
    s_cbranch_scc1 dw_skip_{u}
    s_cmp_lg_u32 s2, {int(DBGW)}
    s_cbranch_scc1 dw_skip_{u}
    s_memrealtime s[94:95]
    s_mul_i32 s93, s{S_L}, 5
    s_add_u32 s93, s93, {slot}
    s_lshl_b32 s93, s93, 2
    s_waitcnt lgkmcnt(0)
    v_mov_b32 v252, s94
    v_mov_b32 v254, s93
    global_store_dword v254, v252, s[10:11]
    """)
    a.label(f"dw_skip_{u}")

def stamp(a, i):
    if i == 0 and PH[0] < 5: dbgw(a, 3 + PH[0])
    if not ASM.STAMPS: return
    _uid[0] += 1; u = _uid[0]
    k = PH[0] * 8 + i
    a(f"""
    s_cmp_lg_u32 s{S_W}, 0
    s_cbranch_scc1 st_skip_{u}
    {"s_memtime" if os.environ.get("STAMPCLK") else "s_memrealtime"} s[94:95]
    s_lshl_b32 s93, s{S_L}, 6
    s_add_u32 s93, s93, {k}
    s_lshl_b32 s93, s93, 11
    s_lshl_b32 s92, s2, 3
    s_add_u32 s93, s93, s92
    s_add_u32 s93, s93, {STAMP_OFF}
    s_waitcnt lgkmcnt(0)
    v_mov_b32 v252, s94
    v_mov_b32 v253, s95
    v_mov_b32 v254, s93
    global_store_dwordx2 v254, v[252:253], s[6:7]
    """)
    a.label(f"st_skip_{u}")

def arrive(a, idx_sgpr, first, vt=250):
    _uid[0] += 1; u = _uid[0]
    a(f"""
    s_waitcnt vmcnt(0) lgkmcnt(0)
    s_barrier
    s_cmp_lg_u32 s{S_W}, 0
    s_cbranch_scc1 arr_done_{u}
    s_add_u32 s100, {idx_sgpr}, {first}
    s_lshl_b32 s100, s100, 7
    s_add_u32 s100, s100, s{S_CL}
    v_mov_b32 v{vt}, s100
    v_mov_b32 v{vt+1}, 1
    s_mov_b64 exec, 1
    global_atomic_add v{vt}, v{vt+1}, s[{S_CB}:{S_CB+1}] sc1
    s_mov_b64 exec, -1
    """)
    a.label(f"arr_done_{u}")

def arrive_tree(a, idx_sgpr, first, per, top, vt=250):
    _uid[0] += 1; u = _uid[0]
    a(f"""
    s_waitcnt vmcnt(0) lgkmcnt(0)
    s_barrier
    s_cmp_lg_u32 s{S_W}, 0
    s_cbranch_scc1 art_done_{u}
    s_add_u32 s100, {idx_sgpr}, {first}
    s_lshl_b32 s100, s100, 7
    s_add_u32 s100, s100, s{S_CL}
    v_mov_b32 v{vt}, s100
    v_mov_b32 v{vt+1}, 1
    s_mov_b64 exec, 1
    global_atomic_add v{vt+2}, v{vt}, v{vt+1}, s[{S_CB}:{S_CB+1}] sc0 sc1
    s_waitcnt vmcnt(0)
    v_readfirstlane_b32 s100, v{vt+2}
    s_mov_b64 exec, -1
    s_cmp_lg_u32 s100, {per-1}
    s_cbranch_scc1 art_done_{u}
    v_and_b32 v{vt}, 7, v0
    v_lshlrev_b32 v{vt}, 7, v{vt}
    s_add_u32 s100, s{S_CL}, {top*128}
    v_add_u32 v{vt}, s100, v{vt}
    s_mov_b64 exec, 0xff
    global_atomic_add v{vt}, v{vt+1}, s[{S_CB}:{S_CB+1}] sc1
    s_mov_b64 exec, -1
    """)
    a.label(f"art_done_{u}")

def wait_tree(a, top, ngroups):
    a("s_and_b32 s101, s2, 7")
    wait(a, "s101", top, 1, ngroups)

def wait(a, idx_sgpr, first, nlanes, expected, prev_layer=False, vt=250):
    _uid[0] += 1; u = _uid[0]
    a(f"""
    s_cmp_lg_u32 s{S_W}, 0
    s_cbranch_scc1 wt_done_{u}
    s_add_u32 s100, {idx_sgpr}, {first}
    s_lshl_b32 s100, s100, 7
    s_add_u32 s100, s100, s{S_CL}
    """)
    if prev_layer: a(f"s_sub_u32 s100, s100, {NCNT*128}")
    a(f"""
    v_and_b32 v{vt}, {nlanes-1}, v0
    v_lshlrev_b32 v{vt}, 7, v{vt}
    v_add_u32 v{vt}, s100, v{vt}
    s_mov_b32 s101, 0
    s_mov_b64 exec, {hex((1 << nlanes) - 1)}
    """)
    a.label(f"wt_poll_{u}")
    a(f"""
    global_load_dword v{vt+1}, v{vt}, s[{S_CB}:{S_CB+1}] sc1
    s_add_u32 s101, s101, 1
    s_waitcnt vmcnt(0)
    v_cmp_le_u32 vcc, {expected}, v{vt+1}
    s_cmp_ge_u32 s101, {SPIN_MAX}
    s_cbranch_scc1 wt_ok_{u}
    s_cmp_eq_u64 vcc, exec
    s_cbranch_scc1 wt_ok_{u}
    s_sleep 1
    s_branch wt_poll_{u}
    """)
    a.label(f"wt_ok_{u}")
    a("s_mov_b64 exec, -1")
    a.label(f"wt_done_{u}")
    a("s_barrier")

LDS_X = 9 * 16384
LDS_MISC = LDS_X
class LN:
    V_LANE = 1; V_TOK = 2; V_H = 3; V_ST = 4; V_WOFF = 6
    V_R = 8; V_T = 20; V_XF = 32; V_ACC = 80; V_E = 144
    S_MB = 17; S_NB = 18; S_SL = 19
PW = int(os.environ.get("PW", "5"))

def ln_ids(a, mode):
    L = LN
    a(f"""
    s_and_b32 s20, s{S_X}, 3
    s_lshl_b32 s20, s20, 2
    s_and_b32 s21, s{S_JX}, 3
    s_add_u32 s{L.S_MB}, s20, s21
    s_lshr_b32 s20, s{S_X}, 2
    s_lshl_b32 s20, s20, 3
    s_lshr_b32 s21, s{S_JX}, 2
    s_add_u32 s{L.S_NB}, s20, s21
    """)

def ln_phase(a, mode, base, wait_fn):
    L = LN
    V_LANE, V_TOK, V_H, V_ST, V_WOFF, V_R, V_T, V_XF, V_ACC, V_E = (L.V_LANE, L.V_TOK, L.V_H, L.V_ST, L.V_WOFF, L.V_R, L.V_T, L.V_XF, L.V_ACC, L.V_E)
    S_MB, S_NB, S_SL = L.S_MB, L.S_NB, L.S_SL
    NB = 15 if mode == "qkv" else 14
    ln_ids(a, mode)
    a(f"""
    s_cmp_ge_u32 s{S_NB}, {NB}
    s_cbranch_scc1 {base}_idle
    s_lshl_b32 s{S_SL}, s{S_NB}, 2
    s_add_u32 s{S_SL}, s{S_SL}, s{S_W}          ; slice
    v_and_b32 v{V_LANE}, 63, v0
    v_and_b32 v{V_TOK}, 31, v0
    v_lshlrev_b32 v{V_WOFF}, 4, v{V_LANE}
    """)
    if mode == "qkv": wt, wtsz, cs, cssz = ws.WQKV, ws.WQKV_SZ, ws.CSQ, ws.CSQ_SZ
    else: wt, wtsz, cs, cssz = ws.W1, ws.W1_SZ, ws.CS1, ws.CS1_SZ
    srd(a, 24, 6, wt, wtsz)
    a(f"s_mul_i32 s39, s{S_SL}, 40960")
    ops = []
    def w_bundle(n):
        g, i = divmod(n, 4)
        pre = [f"s_add_u32 s41, s39, {g*4096}"] if i == 0 else []
        return (pre + [f"buffer_load_dwordx4 a[{4*n}:{4*n+3}], v{V_WOFF}, s[24:27], s41 offen offset:{i*1024} {SCW}"], ("W", g))
    def d_bundle(g, j):
        slot = g % 9
        ld = f"buffer_load_dwordx4 v{V_WOFF}, s[20:23], s42 offen offset:{(j & 1)*1024} {SCL} lds"
        if j & 1: return ([ld], ("D", g))
        return ([f"s_add_u32 m0, s40, {slot*16384 + (j >> 1)*2048}", f"s_add_u32 s42, s38, {(8*g + (j >> 1))*32768}", ld], ("D", g))
    def emit(b):
        for l in b[0]: a(l)
        ops.append(b[1])
    NF = 1920 if mode == "qkv" else 1728
    for n in range(4*PW): emit(w_bundle(n))
    srd(a, 32, 6, cs, cssz)
    a(f"""
    v_bfe_u32 v{V_H}, v0, 5, 1
    s_lshl_b32 s37, s{S_SL}, 5
    v_add_u32 v{V_T+1}, s37, v{V_TOK}
    v_lshlrev_b32 v{V_T+1}, 2, v{V_T+1}
    v_mul_u32_u24 v{V_T+2}, {16*NF}, v{V_H}
    v_add_u32 v{V_T+1}, v{V_T+1}, v{V_T+2}
    s_movk_i32 s56, {4*NF}
    s_movk_i32 s57, {8*NF}
    s_movk_i32 s58, {12*NF}
    buffer_load_dword v{V_E+8}, v{V_T+1}, s[32:35], 0 offen {SCW}
    buffer_load_dword v{V_E+9}, v{V_T+1}, s[32:35], s56 offen {SCW}
    buffer_load_dword v{V_E+10}, v{V_T+1}, s[32:35], s57 offen {SCW}
    buffer_load_dword v{V_E+11}, v{V_T+1}, s[32:35], s58 offen {SCW}
    v_lshlrev_b32 v{V_T}, 11, v{V_H}
    v_lshl_add_u32 v{V_R}, v{V_TOK}, 4, v{V_T}
    v_add_u32 v{V_R+1}, 0x10000, v{V_R}
    v_add_u32 v{V_R+2}, 0x20000, v{V_R}
    """)
    ops.extend(["C"] * 4)
    if mode == "qkv":
        srd_sel(a, 20, M*D*2, 6, ws.X0, ws.XB)
        srd_sel(a, 28, ws.STB_SZ, 6, ws.ST0, ws.STB)
        a(f"""
        s_cmp_eq_u32 s{S_L}, 0
        s_cselect_b32 s30, {ws.ST0_SZ}, s30
        """)
    else:
        srd_s(a, 20, 6, ('L', ws.XA), M*D*2)
        srd_s(a, 28, 6, ('L', ws.STA), ws.STA_SZ)
    a(f"""
    s_lshl_b32 s36, s{S_MB}, 7
    s_lshl_b32 s37, s{S_W}, 5
    s_add_u32 s36, s36, s37
    v_add_u32 v{V_T}, s36, v{V_TOK}
    v_lshlrev_b32 v{V_T}, 3, v{V_T}
    v_lshlrev_b32 v{V_ST}, 16, v{V_H}
    v_add_u32 v{V_ST}, v{V_ST}, v{V_T}
    s_lshl_b32 s38, s{S_W}, 16
    s_lshl_b32 s37, s{S_MB}, 11
    s_add_u32 s38, s38, s37
    s_lshl_b32 s40, s{S_W}, 12
    s_movk_i32 s56, 16384
    s_mov_b32 s57, 32768
    s_mov_b32 s58, 49152
    """)
    stamp(a, 1)
    wait_fn()
    stamp(a, 2)
    for j in range(4): emit(d_bundle(0, j))
    a(f"""
    buffer_load_dwordx2 v[{V_E}:{V_E+1}], v{V_ST}, s[28:31], 0 offen {SCL}
    buffer_load_dwordx2 v[{V_E+2}:{V_E+3}], v{V_ST}, s[28:31], s56 offen {SCL}
    buffer_load_dwordx2 v[{V_E+4}:{V_E+5}], v{V_ST}, s[28:31], s57 offen {SCL}
    buffer_load_dwordx2 v[{V_E+6}:{V_E+7}], v{V_ST}, s[28:31], s58 offen {SCL}
    """)
    ops += ["S"] * 4
    for j in range(4): emit(d_bundle(1, j))
    a(f"s_waitcnt vmcnt(4)")
    e = V_E
    a(f"""
    v_add_f32 v{e}, v{e}, v{e+2}
    v_add_f32 v{e+1}, v{e+1}, v{e+3}
    v_add_f32 v{e+4}, v{e+4}, v{e+6}
    v_add_f32 v{e+5}, v{e+5}, v{e+7}
    v_add_f32 v{e}, v{e}, v{e+4}
    v_add_f32 v{e+1}, v{e+1}, v{e+5}
    v_add_f32 v{e+8}, v{e+8}, v{e+9}
    v_add_f32 v{e+10}, v{e+10}, v{e+11}
    v_mov_b32 v{e+2}, v{e}
    v_mov_b32 v{e+3}, v{e+1}
    v_add_f32 v{e+12}, v{e+8}, v{e+10}
    v_add_f32 v{e+13}, v{e+8}, v{e+10}
    v_permlane32_swap_b32 v{e}, v{e+2}
    v_permlane32_swap_b32 v{e+1}, v{e+3}
    v_permlane32_swap_b32 v{e+12}, v{e+13}
    v_add_f32 v{e}, v{e}, v{e+2}
    v_add_f32 v{e+1}, v{e+1}, v{e+3}
    v_add_f32 v{e+12}, v{e+12}, v{e+13}
    v_mul_f32 v{e}, {f32hex(1.0/D)}, v{e}       ; mean
    v_mul_f32 v{e+1}, {f32hex(1.0/D)}, v{e+1}
    v_fma_f32 v{e+1}, -v{e}, v{e}, v{e+1}       ; var
    v_max_f32 v{e+1}, 0, v{e+1}
    v_add_f32 v{e+1}, {f32hex(EPS)}, v{e+1}
    v_rsq_f32 v{e+1}, v{e+1}                    ; rstd
    s_lshl_b32 s43, s{S_W}, 7
    v_lshl_add_u32 v{e+4}, v{V_TOK}, 2, s43     ; (32w+tok)*4
    v_mul_f32 v{e+2}, v{e}, v{e+1}
    v_sub_f32 v{e+2}, 0, v{e+2}
    v_add_u32 v{e+4}, {LDS_MISC}, v{e+4}
    ds_write_b32 v{e+4}, v{e+1}
    ds_write_b32 v{e+4}, v{e+2} offset:512
    ds_write_b32 v{e+4}, v{e+12} offset:1024
    s_waitcnt lgkmcnt(0)
    s_barrier
    """)
    stamp(a, 3)
    forms = ["ct", "c"] if mode == "qkv" else ["ct"]
    if mode == "qkv":
        a(f"s_cmp_ge_u32 s{S_NB}, 10")
        a(f"s_cbranch_scc1 {base}_loop_c")
    saved = list(ops)
    for form in forms:
        ops[:] = list(saved)
        a.label(f"{base}_loop_{form}")
        def wait_group(g):
            last = max(i for i, o in enumerate(ops) if o == ("D", g) or o == ("W", g))
            a(f"s_waitcnt vmcnt({len(ops) - 1 - last})")
        def read(n, t):
            g = n >> 2; sp = n & 3; slot = g % 9
            q = slot >> 2; so = (slot & 3) * 16384
            buf = V_XF + 16 * (n % 3)
            a(f"ds_read_b128 v[{buf+4*t}:{buf+4*t+3}], v{V_R+q} offset:{so + sp*4096 + t*512}")
        for t in range(4): read(0, t)
        for t in range(4): read(1, t)
        pending = []
        for g in range(2, 10):
            if g >= PW: pending += [w_bundle(4*g + i) for i in range(4)]
            pending += [d_bundle(g, j) for j in range(4)]
        for n in range(40):
            if n + 2 < 40 and (n + 2) % 4 == 0:
                wait_group((n + 2) >> 2)
                a("s_barrier")
            a(f"s_waitcnt lgkmcnt({4 if n + 1 < 40 else 0})")
            buf = V_XF + 16 * (n % 3)
            for t in range(4):
                acc = f"v[{V_ACC+16*t}:{V_ACC+16*t+15}]"
                c = "0" if n == 0 else acc
                wf = f"a[{4*n}:{4*n+3}]"; xf = f"v[{buf+4*t}:{buf+4*t+3}]"
                if form == "ct": a(f"v_mfma_f32_32x32x16_bf16 {acc}, {wf}, {xf}, {c}")
                else: a(f"v_mfma_f32_32x32x16_bf16 {acc}, {xf}, {wf}, {c}")
                if n + 2 < 40: read(n + 2, t)
                if (t in (0, 2) or n < 4) and pending: emit(pending.pop(0))
        assert not pending
        stamp(a, 4)
        if form == "ct": ln_epilogue_ct(a, mode)
        else: ln_epilogue_v(a)
        if form != forms[-1]: a(f"s_branch {base}_idle")
    a.label(f"{base}_idle")

def ln_epilogue_ct(a, mode):
    L = LN
    V_TOK, V_H, V_T, V_ACC, e = L.V_TOK, L.V_H, L.V_T, L.V_ACC, L.V_E
    S_MB, S_SL = L.S_MB, L.S_SL
    a(f"""
    v_lshlrev_b32 v{V_T}, 2, v{V_TOK}
    v_add_u32 v{V_T}, {LDS_MISC}, v{V_T}
    s_lshl_b32 s43, s{S_W}, 7
    v_lshlrev_b32 v{V_T+1}, 4, v{V_H}
    v_add_u32 v{V_T+1}, s43, v{V_T+1}
    v_add_u32 v{V_T+1}, {LDS_MISC+1024}, v{V_T+1}
    """)
    for t in range(4):
        a(f"ds_read_b32 v{e+2*t}, v{V_T} offset:{t*128}")
        a(f"ds_read_b32 v{e+2*t+1}, v{V_T} offset:{512+t*128}")
    for jj in range(4):
        a(f"ds_read_b128 v[{e+8+4*jj}:{e+11+4*jj}], v{V_T+1} offset:{jj*32}")
    CS = e + 8
    if mode == "qkv":
        a(f"""
        s_cmp_ge_u32 s{S_SL}, 20
        s_mov_b32 s44, {ws.Q}
        s_cselect_b32 s44, {ws.K}, s44
        s_cselect_b32 s45, 20, 0
        s_cselect_b32 s46, 1.0, {f32hex(QSCALE)}
        s_add_u32 s44, s44, s{S_LOFF}
        s_add_u32 s48, s6, s44
        s_addc_u32 s49, s7, 0
        s_and_b32 s49, s49, 0xffff
        s_mov_b32 s50, {ws.Q_SZ}
        s_mov_b32 s51, 0x20000
        s_sub_u32 s45, s{S_SL}, s45
        s_lshl_b32 s45, s45, 2
        s_lshl_b32 s47, s{S_MB}, 2                  ; first T
        """)
        for u in range(2):
            t0 = V_T + 2
            a(f"""
            v_add_u32 v{t0}, s45, v{V_H}
            v_add_u32 v{t0}, {2*u}, v{t0}               ; chunk
            v_mul_u32_u24 v{t0+1}, 205, v{t0}
            v_lshrrev_b32 v{t0+1}, 10, v{t0+1}          ; p
            v_mul_u32_u24 v{t0+2}, 5, v{t0+1}
            v_sub_u32 v{t0+2}, v{t0}, v{t0+2}           ; r
            v_lshrrev_b32 v{t0+3}, 1, v{t0+2}
            v_lshl_add_u32 v{t0+3}, v{t0+1}, 1, v{t0+3} ; head
            v_lshlrev_b32 v{t0+3}, 6, v{t0+3}
            v_add_u32 v{t0+3}, s47, v{t0+3}             ; head*64+T0
            v_lshlrev_b32 v{t0+3}, 10, v{t0+3}
            v_and_b32 v{t0+4}, 1, v{t0+2}
            v_lshl_add_u32 v{t0+3}, v{t0+4}, 9, v{t0+3}
            v_lshl_add_u32 v{t0+3}, v{V_TOK}, 4, v{t0+3}
            v_lshlrev_b32 v{t0+4}, 6, v{t0+1}
            v_add_u32 v{t0+4}, s47, v{t0+4}
            v_lshlrev_b32 v{t0+4}, 9, v{t0+4}
            v_lshl_add_u32 v{t0+4}, v{V_TOK}, 4, v{t0+4}
            v_add_u32 v{t0+4}, {QK1_SZ}, v{t0+4}
            v_cmp_eq_u32 vcc, 4, v{t0+2}
            v_mov_b32 v{t0+5}, 1024
            v_mov_b32 v{t0+6}, 512
            v_cndmask_b32 v{e+24+2*u}, v{t0+3}, v{t0+4}, vcc
            v_cndmask_b32 v{e+25+2*u}, v{t0+5}, v{t0+6}, vcc
            """)
        a("s_waitcnt lgkmcnt(0)")
        for t in range(4):
            a(f"v_mul_f32 v{e+2*t}, s46, v{e+2*t}")
            a(f"v_mul_f32 v{e+2*t+1}, s46, v{e+2*t+1}")
    else:
        srd_s(a, 48, 6, ('L', ws.HH), ws.HH_SZ)
        a(f"""
        s_lshl_b32 s45, s{S_SL}, 2
        v_add_u32 v{V_T+2}, s45, v{V_H}             ; chunk (u=0)
        v_lshlrev_b32 v{V_T+2}, 15, v{V_T+2}
        s_lshl_b32 s47, s{S_MB}, 11
        v_lshl_add_u32 v{V_T+2}, v{V_TOK}, 4, v{V_T+2}
        v_add_u32 v{e+24}, s47, v{V_T+2}
        v_add_u32 v{e+26}, 0x10000, v{e+24}
        v_mov_b32 v{V_T+3}, {f32hex(-LOG2E)}
        s_waitcnt lgkmcnt(0)
        """)
    a("s_nop 4")
    T = e + 32
    for t in range(4):
        A = e + 2*t
        for u in range(2):
            accb = V_ACC + 16*t + 8*u
            csb = CS + 8*u
            for pr in range(4):
                a(f"v_pk_mul_f32 v[{T+2*pr}:{T+2*pr+1}], v[{csb+2*pr}:{csb+2*pr+1}], v[{A}:{A+1}] op_sel:[0,1] op_sel_hi:[1,1]")
            for pr in range(4):
                a(f"v_pk_fma_f32 v[{T+2*pr}:{T+2*pr+1}], v[{accb+2*pr}:{accb+2*pr+1}], v[{A}:{A+1}], v[{T+2*pr}:{T+2*pr+1}] op_sel_hi:[1,0,1]")
            if mode == "w1":
                NL = V_T + 3
                for i in range(8): a(f"v_mul_f32 v{T+8+i}, v{T+i}, v{NL}")
                for i in range(8): a(f"v_exp_f32 v{T+8+i}, v{T+8+i}")
                for i in range(8): a(f"v_add_f32 v{T+8+i}, 1.0, v{T+8+i}")
                for i in range(8): a(f"v_rcp_f32 v{T+8+i}, v{T+8+i}")
                for i in range(8): a(f"v_mul_f32 v{T+i}, v{T+i}, v{T+8+i}")
            P = T + 16 + 4 * ((2*t + u) & 1)
            for pr in range(4): a(f"v_cvt_pk_bf16_f32 v{P+pr}, v{T+2*pr}, v{T+2*pr+1}")
            if mode == "qkv":
                a(f"buffer_store_dwordx4 v[{P}:{P+3}], v{e+24+2*u}, s[48:51], 0 offen {SC}")
                if t < 3: a(f"v_add_u32 v{e+24+2*u}, v{e+24+2*u}, v{e+25+2*u}")
            else:
                a(f"buffer_store_dwordx4 v[{P}:{P+3}], v{e+24+2*u}, s[48:51], 0 offen offset:{t*512} {SC}")

def ln_epilogue_v(a):
    L = LN
    V_TOK, V_H, V_T, V_ACC, e = L.V_TOK, L.V_H, L.V_T, L.V_ACC, L.V_E
    S_MB, S_SL = L.S_MB, L.S_SL
    srd_s(a, 48, 6, ('L', ws.V), ws.V_SZ)
    a(f"""
    s_sub_u32 s45, s{S_SL}, 40
    s_lshl_b32 s45, s45, 5
    v_add_u32 v{V_T}, s45, v{V_TOK}             ; f
    v_mul_u32_u24 v{V_T+1}, 3277, v{V_T}
    v_lshrrev_b32 v{V_T+1}, 16, v{V_T+1}        ; head = f/20
    v_mul_u32_u24 v{V_T+2}, 20, v{V_T+1}
    v_sub_u32 v{V_T+2}, v{V_T}, v{V_T+2}        ; d
    v_bfe_u32 v{V_T+3}, v{V_T+2}, 2, 1
    v_lshlrev_b32 v{V_T+3}, 3, v{V_T+3}
    v_bfe_u32 v{V_T+4}, v{V_T+2}, 3, 1
    v_lshl_add_u32 v{V_T+3}, v{V_T+4}, 2, v{V_T+3}
    v_and_b32 v{V_T+4}, 3, v{V_T+2}
    v_add_u32 v{V_T+3}, v{V_T+3}, v{V_T+4}
    v_cmp_le_u32 vcc, 16, v{V_T+2}
    s_lshl_b32 s47, s{S_MB}, 2
    v_lshlrev_b32 v{V_T+1}, 6, v{V_T+1}
    v_cndmask_b32 v{V_T+3}, v{V_T+3}, v{V_T+2}, vcc
    v_add_u32 v{V_T+1}, s47, v{V_T+1}           ; head*64 + T0
    v_mul_u32_u24 v{V_T+1}, 1280, v{V_T+1}
    v_mul_u32_u24 v{V_T+4}, 320, v{V_H}
    v_add_u32 v{V_T+1}, v{V_T+1}, v{V_T+4}
    v_lshl_add_u32 v{e+24}, v{V_T+3}, 4, v{V_T+1}
    v_lshlrev_b32 v{V_T+5}, 4, v{V_H}
    v_add_u32 v{V_T+5}, {LDS_MISC}, v{V_T+5}
    v_lshlrev_b32 v{V_T+6}, 2, v{V_TOK}
    s_lshl_b32 s43, s{S_W}, 7
    v_add_u32 v{V_T+6}, s43, v{V_T+6}
    v_add_u32 v{V_T+6}, {LDS_MISC+1024}, v{V_T+6}
    ds_read_b32 v{e+26}, v{V_T+6}
    """)
    T = e + 32; AB = e + 56
    for t in range(4):
        for m in range(2):
            for q in range(2):
                jj = 2*m + q
                a(f"ds_read_b128 v[{AB+4*q}:{AB+4*q+3}], v{V_T+5} offset:{(32*t+8*jj)*4}")
                a(f"ds_read_b128 v[{AB+8+4*q}:{AB+8+4*q+3}], v{V_T+5} offset:{512+(32*t+8*jj)*4}")
            a("s_waitcnt lgkmcnt(0)")
            if t == 0 and m == 0: a("s_nop 4")
            accb = V_ACC + 16*t + 8*m
            for pr in range(4):
                a(f"v_pk_mul_f32 v[{T+2*pr}:{T+2*pr+1}], v[{AB+8+2*pr}:{AB+9+2*pr}], v[{e+26}:{e+27}] op_sel_hi:[1,0]")
            for pr in range(4):
                a(f"v_pk_fma_f32 v[{T+2*pr}:{T+2*pr+1}], v[{accb+2*pr}:{accb+2*pr+1}], v[{AB+2*pr}:{AB+2*pr+1}], v[{T+2*pr}:{T+2*pr+1}]")
            P = T + 16 + 4 * m
            for pr in range(4): a(f"v_cvt_pk_bf16_f32 v{P+pr}, v{T+2*pr}, v{T+2*pr+1}")
            if m == 0: a(f"s_movk_i32 s52, {t*1280}")
            a(f"buffer_store_dwordx4 v[{P}:{P+3}], v{e+24}, s[48:51], s52 offen offset:{m*640} {SC}")

class RS:
    V_LANE = 1; V_TOK = 2; V_G = 3; V_WOFF = 4; V_AOFF = 5; V_XOFF = 6; V_XC = 7
    V_R = 8; V_T = 12; V_XO = 20; V_WF = 32; V_ACC = 92; V_E = 112
    S_RB = 17; S_J = 18; S_MBK = 19
SLOT = 20480; NSLOT = 7

def rs_ids(a):
    R = RS
    a(f"""
    s_and_b32 s20, s{S_X}, 3
    s_lshl_b32 s20, s20, 3
    s_and_b32 s21, s{S_JX}, 7
    s_add_u32 s{R.S_RB}, s20, s21
    s_lshr_b32 s20, s{S_X}, 2
    s_lshl_b32 s20, s20, 2
    s_lshr_b32 s21, s{S_JX}, 3
    s_add_u32 s{R.S_J}, s20, s21
    s_lshr_b32 s{R.S_MBK}, s{R.S_RB}, 1
    """)

def rs_phase(a, mode, base, wait_fn):
    R = RS
    V_LANE, V_TOK, V_G, V_WOFF, V_AOFF, V_XOFF, V_R, V_T, V_XO, V_WF, V_ACC, e = (R.V_LANE, R.V_TOK, R.V_G, R.V_WOFF, R.V_AOFF, R.V_XOFF, R.V_R, R.V_T, R.V_XO, R.V_WF, R.V_ACC, R.V_E)
    S_RB, S_J = R.S_RB, R.S_J
    NKS = 20 if mode == "wo" else 54
    NG = (NKS + 3) // 4
    rs_ids(a)
    if mode == "wo": act, actsz, wt, wtsz = ws.O, ws.O_SZ, ws.WO, ws.WO_SZ
    else: act, actsz, wt, wtsz = ws.HH, ws.HH_SZ, ws.W2, ws.W2_SZ
    srd(a, 36, 6, wt, wtsz)
    a(f"""
    v_and_b32 v{V_LANE}, 63, v0
    v_lshlrev_b32 v{V_WOFF}, 4, v{V_LANE}
    s_mul_i32 s45, s{S_J}, {NKS*5120}
    s_mul_i32 s46, s{S_W}, 5120
    s_add_u32 s45, s45, s46
    """)
    ops = []
    def d_bundle(g, j):
        slot = g % NSLOT
        return ([f"s_add_u32 s49, s45, {g*SLOT + j*1024}", f"s_add_u32 m0, s46, {slot*SLOT + j*1024}", "s_nop 0",
                 f"buffer_load_dwordx4 v{V_WOFF}, s[36:39], s49 offen {SCW} lds"], ("D", g))
    def a_bundle(n):
        return ([f"s_add_u32 s49, s44, {n*4*32768}",
                 f"buffer_load_dwordx4 a[{4*n}:{4*n+3}], v{V_AOFF}, s[32:35], s49 offen {SCL}"], ("A", n >> 2))
    def emit(b):
        skip = inloop[0] and ((b[1][0] == "A" and "rs_noA" in EXP) or (b[1][0] == "D" and "rs_noD" in EXP))
        for l in b[0]:
            if skip and (l.startswith("buffer_load") or "rs_nosalu" in EXP): continue
            a(l)
        if not skip: ops.append(b[1])
    inloop = [False]
    NPRE = min(NG, NSLOT)
    for g in range(NPRE):
        for j in range(5): emit(d_bundle(g, j))
    a(f"""
    v_and_b32 v{V_TOK}, 15, v0
    v_bfe_u32 v{V_G}, v0, 4, 2
    v_mov_b32 v{V_R}, v{V_WOFF}
    v_add_u32 v{V_R+1}, 0x10000, v{V_WOFF}
    v_add_u32 v{V_R+2}, 0x20000, v{V_WOFF}
    v_lshlrev_b32 v{V_AOFF}, 15, v{V_G}
    v_lshl_add_u32 v{V_AOFF}, v{V_TOK}, 4, v{V_AOFF}
    s_lshl_b32 s19, s{S_RB}, 6
    s_lshl_b32 s20, s{S_W}, 4
    s_add_u32 s22, s19, s20
    v_add_u32 v{V_T}, s22, v{V_TOK}             ; token
    s_mul_i32 s20, s{S_J}, 10
    v_add_u32 v{V_T+1}, s20, v{V_G}
    v_lshlrev_b32 v{V_T+1}, 15, v{V_T+1}
    v_lshl_add_u32 v{V_XOFF}, v{V_T}, 4, v{V_T+1}
    v_lshrrev_b32 v{V_T+1}, 1, v{V_G}
    v_add_u32 v{V_T+1}, s20, v{V_T+1}
    v_add_u32 v{V_T+1}, 8, v{V_T+1}
    v_lshlrev_b32 v{V_T+1}, 15, v{V_T+1}
    v_lshl_add_u32 v{V_T+1}, v{V_T}, 4, v{V_T+1}
    v_and_b32 v{V_T+2}, 1, v{V_G}
    v_lshl_add_u32 v{RS.V_XC}, v{V_T+2}, 3, v{V_T+1}
    s_mov_b32 s23, {4*32768}
    s_lshl_b32 s44, s22, 4
    s_lshr_b32 s{R.S_MBK}, s{S_RB}, 1
    """)
    if mode == "wo":
        srd_sel(a, 24, M*D*2, 6, ws.X0, ws.XB)
        srd_s(a, 28, 6, ('L', ws.XA), M*D*2)
        srd_s(a, 40, 6, ('L', ws.STA), ws.STA_SZ)
    else:
        srd_s(a, 24, 6, ('L', ws.XA), M*D*2)
        a(f"""
        s_add_u32 s28, s6, {ws.XB}
        s_addc_u32 s29, s7, 0
        s_cmp_eq_u32 s{S_L}, 0
        s_cselect_b32 s28, s28, s8
        s_cselect_b32 s29, s29, s9
        s_and_b32 s29, s29, 0xffff
        s_mov_b32 s30, {M*D*2}
        s_mov_b32 s31, 0x20000
        """)
        srd(a, 40, 6, ws.STB, ws.STB_SZ)
    srd_s(a, 32, 6, ('L', act), actsz)
    a(f"""
    buffer_load_dwordx4 v[{V_XO}:{V_XO+3}], v{V_XOFF}, s[24:27], 0 offen {SCL}
    buffer_load_dwordx4 v[{V_XO+4}:{V_XO+7}], v{V_XOFF}, s[24:27], s23 offen {SCL}
    buffer_load_dwordx2 v[{V_XO+8}:{V_XO+9}], v{RS.V_XC}, s[24:27], 0 offen {SCL}
    """)
    ops += ["X", "X", "X"]
    stamp(a, 1)
    wait_fn()
    stamp(a, 2)
    NS = 4 * NG
    for n in range(8): emit(a_bundle(n))
    def wait_for(kind, g):
        cand = [i for i, o in enumerate(ops) if o == (kind, g)]
        if not cand: return
        last = max(cand)
        a(f"s_waitcnt vmcnt({len(ops) - 1 - last})")
    wait_for("A", 0)
    a("s_barrier")
    stamp(a, 3)
    def read(n, ft):
        g = n >> 2; slot = g % NSLOT
        o = slot*SLOT + (n & 3)*5120 + ft*1024
        buf = V_WF + 20*(n % 3)
        a(f"ds_read_b128 v[{buf+4*ft}:{buf+4*ft+3}], v{V_R+(o>>16)} offset:{o & 0xffff}")
    for ft in range(5): read(0, ft)
    for ft in range(5): read(1, ft)
    inloop[0] = True
    for n in range(NS):
        tau = n >> 2
        if n + 2 < NS and (n + 2) % 4 == 0:
            g = (n + 2) >> 2
            if g >= NPRE: wait_for("D", g)
            if NG > NPRE: a("s_barrier")
        if n % 4 == 0 and n > 0: wait_for("A", tau)
        a(f"s_waitcnt lgkmcnt({5 if n + 1 < NS else 0})")
        todo = []
        if tau + 2 < NG and (n & 3) < 2:
            todo = [a_bundle(4*(tau+2) + 2*(n & 3)), a_bundle(4*(tau+2) + 2*(n & 3) + 1)]
        if NPRE <= tau + NSLOT - 1 < NG and (n & 3) >= 2:
            gg = tau + NSLOT - 1
            todo = [d_bundle(gg, j) for j in ((0, 1, 2) if (n & 3) == 2 else (3, 4))]
        buf = V_WF + 20*(n % 3)
        for ft in range(5):
            acc = f"v[{V_ACC+4*ft}:{V_ACC+4*ft+3}]"
            c = "0" if n == 0 else acc
            a(f"v_mfma_f32_16x16x32_bf16 {acc}, v[{buf+4*ft}:{buf+4*ft+3}], a[{4*n}:{4*n+3}], {c}")
            if n + 2 < NS: read(n + 2, ft)
            if ft in (0, 2, 4) and todo: emit(todo.pop(0))
        assert not todo
    stamp(a, 4)
    a("s_nop 7")
    for q in range(10):
        a(f"v_lshlrev_b32 v{e+2*q}, 16, v{V_XO+q}")
        a(f"v_and_b32 v{e+2*q+1}, 0xffff0000, v{V_XO+q}")
    for i in range(20): a(f"v_add_f32 v{e+i}, v{e+i}, v{V_ACC+i}")
    for q in range(10): a(f"v_cvt_pk_bf16_f32 v{e+24+q}, v{e+2*q}, v{e+2*q+1}")
    if mode == "w2":
        a(f"""
        s_cmp_lg_u32 s{S_L}, 0
        s_cbranch_scc1 {base}_last
        """)
    a(f"""
    buffer_store_dwordx4 v[{e+24}:{e+27}], v{V_XOFF}, s[28:31], 0 offen {SC}
    buffer_store_dwordx4 v[{e+28}:{e+31}], v{V_XOFF}, s[28:31], s23 offen {SC}
    buffer_store_dwordx2 v[{e+32}:{e+33}], v{RS.V_XC}, s[28:31], 0 offen {SC}
    """)
    for q in range(10):
        a(f"v_lshlrev_b32 v{e+2*q}, 16, v{e+24+q}")
        a(f"v_and_b32 v{e+2*q+1}, 0xffff0000, v{e+24+q}")
    a(f"v_mov_b32 v{e+40}, 0")
    a(f"v_mov_b32 v{e+41}, 0")
    for i in range(20):
        a(f"v_add_f32 v{e+40}, v{e+40}, v{e+i}")
        a(f"v_fmac_f32 v{e+41}, v{e+i}, v{e+i}")
    a(f"""
    v_mov_b32 v{e+42}, v{e+40}
    v_mov_b32 v{e+43}, v{e+41}
    s_nop 1
    v_permlane32_swap_b32 v{e+40}, v{e+42}
    v_permlane32_swap_b32 v{e+41}, v{e+43}
    v_add_f32 v{e+40}, v{e+40}, v{e+42}
    v_add_f32 v{e+41}, v{e+41}, v{e+43}
    v_mov_b32 v{e+42}, v{e+40}
    v_mov_b32 v{e+43}, v{e+41}
    s_nop 1
    v_permlane16_swap_b32 v{e+40}, v{e+42}
    v_permlane16_swap_b32 v{e+41}, v{e+43}
    v_add_f32 v{e+40}, v{e+40}, v{e+42}
    v_add_f32 v{e+41}, v{e+41}, v{e+43}
    v_add_u32 v{V_T}, s22, v{V_TOK}
    v_lshlrev_b32 v{V_T}, 3, v{V_T}
    s_lshl_b32 s49, s{S_J}, 14
    v_mov_b32 v{V_T+1}, 0x7ffffff0
    v_cmp_eq_u32 vcc, 0, v{V_G}
    s_nop 1
    v_cndmask_b32 v{V_T}, v{V_T+1}, v{V_T}, vcc
    buffer_store_dwordx2 v[{e+40}:{e+41}], v{V_T}, s[40:43], s49 offen {SC}
    """)
    if mode == "w2":
        a(f"s_branch {base}_done")
        a.label(f"{base}_last")
        a(f"""
        v_add_u32 v{V_T}, s22, v{V_TOK}
        v_mul_u32_u24 v{V_T}, 1280, v{V_T}
        s_mul_i32 s49, s{S_J}, 160
        v_lshl_add_u32 v{V_T+1}, v{V_G}, 4, v{V_T}
        v_lshl_add_u32 v{V_T+2}, v{V_G}, 3, v{V_T}
        buffer_store_dwordx4 v[{e+24}:{e+27}], v{V_T+1}, s[28:31], s49 offen
        buffer_store_dwordx4 v[{e+28}:{e+31}], v{V_T+1}, s[28:31], s49 offen offset:64
        buffer_store_dwordx2 v[{e+32}:{e+33}], v{V_T+2}, s[28:31], s49 offen offset:128
        """)
        if ASM.STAMPS: a("s_waitcnt vmcnt(0)")
        stamp(a, 5)
        dbgw(a, 8)
        a("s_endpgm")
        a.label(f"{base}_done")

P_WQKV = 60; P_WO = 62; P_W1 = 64; P_W2 = 66
LDS_R1 = 0; LDS_R2 = 32768

def unitA_load(a, n, which, vb):
    N = 1920 if which == "qkv" else 1728
    ptr = P_WQKV if which == "qkv" else P_W1
    srd(a, 20, ptr, 0, 640 * N * 2)
    a(f"""
    s_lshr_b32 s18, s17, 3                  ; nt
    s_and_b32 s19, s17, 7                   ; k8
    v_and_b32 v3, 31, v0
    v_lshrrev_b32 v4, 5, v0
    v_lshrrev_b32 v5, 3, v3
    v_and_b32 v6, 7, v3                     ; Q
    s_lshl_b32 s33, s18, 2
    v_add_u32 v7, s33, v5                   ; slice
    """)
    if which == "qkv":
        a(f"""
        s_cmp_ge_u32 s18, 10
        s_cbranch_scc1 {n}_vcol
        v_lshrrev_b32 v8, 2, v6
        v_lshlrev_b32 v8, 1, v8
        v_and_b32 v9, 1, v6
        v_add_u32 v8, v8, v9                    ; cidx
        v_bfe_u32 v9, v6, 1, 1                  ; eh
        v_cmp_le_u32 vcc, 20, v7
        s_nop 1
        v_cndmask_b32 v10, 0, 1, vcc            ; sec
        v_mul_u32_u24 v11, 20, v10
        v_sub_u32 v11, v7, v11
        v_lshl_add_u32 v11, v11, 2, v8          ; chunk
        v_mul_u32_u24 v12, 205, v11
        v_lshrrev_b32 v12, 10, v12              ; p
        v_mul_u32_u24 v13, 5, v12
        v_sub_u32 v13, v11, v13                 ; r
        v_lshrrev_b32 v14, 1, v13
        v_and_b32 v15, 1, v13
        v_lshlrev_b32 v15, 3, v15
        v_lshl_add_u32 v15, v9, 2, v15
        v_cmp_eq_u32 vcc, 4, v13
        v_mov_b32 v16, 16
        s_nop 0
        v_cndmask_b32 v14, v14, v9, vcc
        v_cndmask_b32 v15, v15, v16, vcc
        v_lshl_add_u32 v14, v12, 1, v14         ; head
        v_mul_u32_u24 v14, 20, v14
        v_add_u32 v14, v14, v15
        v_mul_u32_u24 v10, 640, v10
        v_add_u32 v8, v14, v10                  ; col
        s_branch {n}_go
        """)
        a.label(f"{n}_vcol")
        a("""
        v_lshlrev_b32 v8, 5, v7
        v_lshl_add_u32 v8, v6, 2, v8
        """)
        a.label(f"{n}_go")
    else:
        a("""
        v_lshlrev_b32 v8, 5, v7
        v_lshrrev_b32 v9, 2, v6
        v_lshl_add_u32 v8, v9, 4, v8
        v_and_b32 v9, 1, v6
        v_lshl_add_u32 v8, v9, 3, v8
        v_bfe_u32 v9, v6, 1, 1
        v_lshl_add_u32 v8, v9, 2, v8
        """)
    a(f"""
    v_mul_u32_u24 v9, {N}, v4
    v_add_u32 v9, v9, v8
    v_lshlrev_b32 v9, 1, v9
    s_mul_i32 s34, s19, {80*N*2}
    """)
    for p in range(10):
        a(f"buffer_load_dwordx2 v[{vb+2*p}:{vb+2*p+1}], v9, s[20:23], s34 offen")
        if p < 9: a(f"s_add_u32 s34, s34, {8*N*2}")

def unitA_proc(a, n, which, vb, lds, unit_sgpr):
    NF = 1920 if which == "qkv" else 1728
    wt, wtsz, cs, cssz = (ws.WQKV, ws.WQKV_SZ, ws.CSQ, ws.CSQ_SZ) if which == "qkv" else (ws.W1, ws.W1_SZ, ws.CS1, ws.CS1_SZ)
    a(f"""
    s_lshr_b32 s18, {unit_sgpr}, 3
    s_and_b32 s19, {unit_sgpr}, 7
    v_lshlrev_b32 v10, 3, v0
    v_add_u32 v10, {lds}, v10
    """)
    for p in range(10):
        a(f"ds_write_b64 v10, v[{vb+2*p}:{vb+2*p+1}] offset:{p*2048}")
    srd(a, 24, 6, wt, wtsz)
    srd(a, 28, 6, cs, cssz)
    a(f"""
    v_and_b32 v1, 63, v0
    v_lshrrev_b32 v11, 4, v1                ; G
    v_bfe_u32 v12, v1, 2, 2                 ; r
    v_and_b32 v13, 3, v1                    ; c'
    v_lshrrev_b32 v14, 1, v11
    v_lshl_add_u32 v14, v14, 3, v12
    v_lshlrev_b32 v14, 8, v14
    v_and_b32 v15, 1, v11
    v_lshl_add_u32 v15, v15, 2, v13
    s_lshl_b32 s33, s{S_W}, 3
    v_add_u32 v15, s33, v15
    v_lshl_add_u32 v14, v15, 3, v14
    v_add_u32 v14, {lds}, v14
    v_mov_b32 v16, 0x3f803f80
    v_mov_b32 v17, 0x3f803f80
    v_mov_b32 v18, 0x3f803f80
    v_mov_b32 v19, 0x3f803f80
    s_waitcnt lgkmcnt(0)
    s_barrier
    """)
    F = 70
    for ks in range(5):
        for u in range(2):
            a(f"ds_read_b64_tr_b16 v[{F+4*ks+2*u}:{F+4*ks+2*u+1}], v14 offset:{ks*4096+u*1024}")
    a(f"""
    s_lshl_b32 s33, s18, 2
    s_add_u32 s33, s33, s{S_W}
    s_mul_i32 s34, s33, 40
    s_mul_i32 s35, s19, 5
    s_add_u32 s34, s34, s35
    s_lshl_b32 s34, s34, 10
    v_lshlrev_b32 v10, 4, v1
    """)
    for ks in range(5):
        a(f"s_waitcnt lgkmcnt({8-2*ks})")
        a(f"buffer_store_dwordx4 v[{F+4*ks}:{F+4*ks+3}], v10, s[24:27], s34 offen {SC}")
        c = "0" if ks == 0 else "v[96:111]"
        a(f"v_mfma_f32_32x32x16_bf16 v[96:111], v[16:19], v[{F+4*ks}:{F+4*ks+3}], {c}")
        if ks < 4: a("s_add_u32 s34, s34, 1024")
    a(f"""
    v_and_b32 v11, 31, v1
    s_lshl_b32 s33, s33, 5
    v_add_u32 v11, s33, v11
    v_lshlrev_b32 v11, 2, v11
    v_mov_b32 v12, 0x7ffffff0
    v_cmp_gt_u32 vcc, {NF}, v11             ; byte offset < NF*4 checked below
    s_mul_i32 s35, s19, {NF*4}
    v_lshrrev_b32 v13, 2, v11
    v_cmp_gt_u32 vcc, {NF}, v13
    s_nop 7
    v_cndmask_b32 v11, v12, v11, vcc
    s_nop 3
    buffer_store_dword v96, v11, s[28:31], s35 offen {SC}
    """.replace(f"v_cmp_gt_u32 vcc, {NF}, v11             ; byte offset < NF*4 checked below\n", "").replace(f"v_cmp_gt_u32 vcc, {NF}, v13", f"v_mov_b32 v15, {NF}\n    v_cmp_gt_u32 vcc, v15, v13"))

def unitB_load(a, n, vb):
    a("""
    s_mul_i32 s35, s40, 160
    v_mov_b32 v19, 0x7ffffff0
    """)
    for p in range(7):
        a(f"""
        v_add_u32 v3, {256*p}, v0               ; i
        v_mul_u32_u24 v4, 6554, v3
        v_lshrrev_b32 v4, 16, v4                ; row
        v_mul_u32_u24 v5, 10, v4
        v_sub_u32 v5, v3, v5                    ; piece
        v_add_u32 v6, s41, v4                   ; k
        s_cmp_eq_u32 s43, 0
        s_cbranch_scc1 {n}_row{p}
        v_lshrrev_b32 v7, 3, v6                 ; chunk
        v_and_b32 v8, 7, v6
        v_mul_u32_u24 v9, 205, v7
        v_lshrrev_b32 v9, 10, v9
        v_mul_u32_u24 v10, 5, v9
        v_sub_u32 v10, v7, v10
        v_lshrrev_b32 v11, 1, v10
        v_and_b32 v12, 1, v10
        v_lshl_add_u32 v12, v12, 3, v8
        v_lshrrev_b32 v13, 2, v8
        v_and_b32 v14, 3, v8
        v_add_u32 v14, 16, v14
        v_cmp_eq_u32 vcc, 4, v10
        s_nop 1
        v_cndmask_b32 v11, v11, v13, vcc
        v_cndmask_b32 v12, v12, v14, vcc
        v_lshl_add_u32 v11, v9, 1, v11
        v_mul_u32_u24 v11, 20, v11
        v_add_u32 v6, v11, v12
        """)
        a.label(f"{n}_row{p}")
        a(f"""
        v_mul_u32_u24 v6, 1280, v6
        v_lshl_add_u32 v6, v5, 4, v6
        v_cmp_gt_u32 vcc, s42, v4
        s_nop 1
        v_cndmask_b32 v6, v19, v6, vcc
        buffer_load_dwordx4 v[{vb+4*p}:{vb+4*p+3}], v6, s[44:47], s35 offen
        """)

def unitB_proc(a, n, vb, lds):
    a(f"""
    v_lshlrev_b32 v10, 4, v0
    v_add_u32 v10, {lds}, v10
    """)
    for p in range(7):
        a(f"ds_write_b128 v10, v[{vb+4*p}:{vb+4*p+3}] offset:{p*4096}")
    a(f"""
    v_and_b32 v1, 63, v0
    v_lshrrev_b32 v11, 4, v1                ; kg
    v_bfe_u32 v12, v1, 2, 2                 ; r
    v_and_b32 v13, 3, v1                    ; c'
    v_lshl_add_u32 v12, v11, 3, v12
    v_mul_u32_u24 v12, 160, v12
    v_add_u32 v12, {lds}, v12
    v_lshl_add_u32 v14, v13, 4, v12
    v_lshl_add_u32 v15, v13, 3, v12
    v_lshlrev_b32 v10, 4, v1
    s_mov_b32 s50, s{S_W}
    s_waitcnt lgkmcnt(0)
    s_barrier
    """)
    a.label(f"{n}_ks")
    a(f"""
    s_add_u32 s33, s48, s50
    s_cmp_ge_u32 s33, s49
    s_cbranch_scc1 {n}_done
    s_mul_i32 s36, s50, {32*160}
    v_add_u32 v16, s36, v14
    v_add_u32 v17, s36, v15
    """)
    F = 70
    for ft in range(5):
        for u in range(2):
            if ft < 4: a(f"ds_read_b64_tr_b16 v[{F+4*ft+2*u}:{F+4*ft+2*u+1}], v16 offset:{u*640 + (0, 8, 64, 72)[ft]}")
            else: a(f"ds_read_b64_tr_b16 v[{F+4*ft+2*u}:{F+4*ft+2*u+1}], v17 offset:{u*640 + 128}")
    a(f"""
    s_mul_i32 s34, s40, s49
    s_add_u32 s34, s34, s33
    s_mul_i32 s34, s34, 5120
    """)
    for ft in range(5):
        a(f"s_waitcnt lgkmcnt({8-2*ft})")
        a(f"buffer_store_dwordx4 v[{F+4*ft}:{F+4*ft+3}], v10, s[24:27], s34 offen {SC}")
        if ft < 4: a("s_add_u32 s34, s34, 1024")
    a(f"""
    s_add_u32 s50, s50, 4
    s_mul_i32 s36, s50, 32
    s_cmp_lt_u32 s36, s42
    s_cbranch_scc1 {n}_ks
    """)
    a.label(f"{n}_done")

def unitC_load(a, vb):
    a(f"""
    s_sub_u32 s33, s2, 120
    s_lshl_b32 s33, s33, 4                  ; first token of the workgroup
    s_lshl_b32 s34, s{S_W}, 2
    s_add_u32 s34, s34, s33
    v_and_b32 v1, 63, v0
    v_lshrrev_b32 v3, 4, v1
    v_add_u32 v3, s34, v3                   ; row
    v_and_b32 v4, 15, v1
    v_mul_u32_u24 v5, 1280, v3
    v_lshl_add_u32 v5, v4, 4, v5
    """)
    srd(a, 20, 4, 0, M * D * 2)
    for i in range(5):
        a(f"buffer_load_dwordx4 v[{vb+4*i}:{vb+4*i+3}], v5, s[20:23], 0 offen offset:{256*i}")

def unitC_proc(a, vb, lds):
    a(f"""
    s_sub_u32 s33, s2, 120
    s_lshl_b32 s33, s33, 4
    v_and_b32 v1, 63, v0
    v_and_b32 v4, 15, v1                    ; sub
    v_lshrrev_b32 v3, 4, v0                 ; token in the workgroup (0..15)
    v_lshlrev_b32 v5, 8, v4
    v_lshl_add_u32 v5, v3, 4, v5
    v_add_u32 v5, {lds}, v5
    """)
    for i in range(5):
        a(f"ds_write_b128 v5, v[{vb+4*i}:{vb+4*i+3}] offset:{i*4096}")
    srd(a, 24, 6, ws.X0, ws.X0_SZ)
    srd(a, 28, 6, ws.ST0, ws.ST0_SZ)
    a("""
    v_mov_b32 v6, 0
    v_mov_b32 v7, 0
    """)
    for i in range(20):
        r = vb + i
        a(f"""
        v_lshlrev_b32 v8, 16, v{r}
        v_and_b32 v9, 0xffff0000, v{r}
        v_add_f32 v6, v6, v8
        v_fmac_f32 v7, v8, v8
        v_add_f32 v6, v6, v9
        v_fmac_f32 v7, v9, v9
        """)
    for rot in (8, 4, 2, 1):
        a(f"""
        s_nop 1
        v_add_f32_dpp v6, v6, v6 row_ror:{rot} row_mask:0xf bank_mask:0xf
        v_add_f32_dpp v7, v7, v7 row_ror:{rot} row_mask:0xf bank_mask:0xf
        """)
    a(f"""
    v_add_u32 v10, s33, v3
    v_lshlrev_b32 v10, 3, v10
    v_mov_b32 v11, 0x7ffffff0
    v_cmp_eq_u32 vcc, 0, v4
    v_lshlrev_b32 v12, 4, v0
    v_add_u32 v12, {lds}, v12
    v_cndmask_b32 v10, v11, v10, vcc
    buffer_store_dwordx2 v[6:7], v10, s[28:31], 0 offen {SC}
    s_waitcnt lgkmcnt(0)
    s_barrier
    """)
    F = 70
    for i in range(5):
        a(f"ds_read_b128 v[{F+4*i}:{F+4*i+3}], v12 offset:{i*4096}")
    a(f"""
    v_lshrrev_b32 v13, 4, v0
    v_lshlrev_b32 v13, 15, v13
    v_and_b32 v14, 15, v0
    v_add_u32 v14, s33, v14
    v_lshl_add_u32 v13, v14, 4, v13
    s_mov_b32 s34, 0
    """)
    for i in range(5):
        a(f"s_waitcnt lgkmcnt({4-i})")
        a(f"buffer_store_dwordx4 v[{F+4*i}:{F+4*i+3}], v13, s[24:27], s34 offen {SC}")
        if i < 4: a(f"s_add_u32 s34, s34, {16*32768}")

def p0_phase(a, n):
    V1 = 20; V2 = 40
    a(f"""
    s_cmp_lt_u32 s2, 120
    s_cbranch_scc1 {n}_l1a
    s_cmp_lt_u32 s2, 248
    s_cbranch_scc1 {n}_l1c
    s_cmp_lg_u32 s2, 255
    s_cbranch_scc1 {n}_l2
    """)
    srd(a, 20, 6, ws.CNT, ws.CNT_SZ)
    a("""
    v_mov_b32 v20, 0
    v_mov_b32 v21, 0
    v_mov_b32 v22, 0
    v_mov_b32 v23, 0
    v_lshlrev_b32 v5, 4, v0
    """)
    for i in range(ws.CNT_SZ // 4096):
        a(f"s_movk_i32 s36, {i*4096}")
        a(f"buffer_store_dwordx4 v[20:23], v5, s[20:23], s36 offen {SC}")
    a(f"""
    s_waitcnt vmcnt(0)
    s_barrier
    v_mov_b32 v5, 0
    v_mov_b32 v6, 1
    s_mov_b64 exec, 1
    global_store_dword v5, v6, s[10:11] sc1
    s_mov_b64 exec, -1
    s_branch {n}_l2
    """)
    a.label(f"{n}_l1a")
    a("s_mov_b32 s17, s2")
    unitA_load(a, f"{n}_a1", "qkv", V1)
    a(f"s_branch {n}_l2")
    a.label(f"{n}_l1c")
    unitC_load(a, V1)
    a.label(f"{n}_l2")
    a(f"""
    s_cmp_lt_u32 s2, 112
    s_cbranch_scc0 {n}_l2b
    s_mov_b32 s17, s2
    """)
    unitA_load(a, f"{n}_a2", "w1", V2)
    a(f"s_branch {n}_p1")
    a.label(f"{n}_l2b")
    a(f"""
    s_cmp_lt_u32 s2, 224
    s_cbranch_scc0 {n}_l2o
    s_sub_u32 s33, s2, 112
    s_mul_i32 s40, s33, 4682
    s_lshr_b32 s40, s40, 16                 ; j
    s_mul_i32 s34, s40, 14
    s_sub_u32 s34, s33, s34                 ; kr
    s_lshl_b32 s41, s34, 7
    s_movk_i32 s42, 128
    s_mov_b32 s43, 0
    s_lshl_b32 s48, s34, 2
    s_movk_i32 s49, 54
    """)
    srd(a, 44, P_W2, 0, 1728 * 640 * 2)
    a(f"s_branch {n}_l2g")
    a.label(f"{n}_l2o")
    a(f"""
    s_sub_u32 s33, s2, 224
    s_lshr_b32 s40, s33, 2                  ; j
    s_and_b32 s34, s33, 3
    s_mul_i32 s41, s34, 160
    s_movk_i32 s42, 160
    s_mov_b32 s43, 1
    s_mul_i32 s48, s34, 5
    s_movk_i32 s49, 20
    """)
    srd(a, 44, P_WO, 0, 640 * 640 * 2)
    a.label(f"{n}_l2g")
    unitB_load(a, f"{n}_b", V2)
    a.label(f"{n}_p1")
    stamp(a, 1)
    a(f"""
    s_waitcnt vmcnt(7)
    s_cmp_lt_u32 s2, 120
    s_cbranch_scc1 {n}_p1a
    s_cmp_lt_u32 s2, 248
    s_cbranch_scc0 {n}_arr
    """)
    unitC_proc(a, V1, LDS_R1)
    a(f"s_branch {n}_arr")
    a.label(f"{n}_p1a")
    unitA_proc(a, f"{n}_pa1", "qkv", V1, LDS_R1, "s2")
    a.label(f"{n}_arr")
    stamp(a, 2)
    dbgw(a, 2)
    a(f"""
    s_cmp_lg_u32 s{S_W}, 0
    s_cbranch_scc1 {n}_flag_ok
    v_mov_b32 v250, 0
    s_mov_b32 s101, 0
    """)
    a.label(f"{n}_flag")
    a(f"""
    global_load_dword v251, v250, s[10:11] sc1
    s_add_u32 s101, s101, 1
    s_waitcnt vmcnt(0)
    v_readfirstlane_b32 s100, v251
    s_cmp_ge_u32 s101, {SPIN_MAX}
    s_cbranch_scc1 {n}_flag_ok
    s_cmp_lg_u32 s100, 0
    s_cbranch_scc1 {n}_flag_ok
    s_sleep 1
    s_branch {n}_flag
    """)
    a.label(f"{n}_flag_ok")
    a("s_lshr_b32 s17, s2, 4")
    arrive_tree(a, "s17", C_P0, 16, T_P0)
    stamp(a, 3)
    a(f"""
    s_cmp_lt_u32 s2, 112
    s_cbranch_scc0 {n}_p2b
    """)
    unitA_proc(a, f"{n}_pa2", "w1", V2, LDS_R2, "s2")
    a(f"s_branch {n}_p2d")
    a.label(f"{n}_p2b")
    a(f"""
    s_add_u32 s24, s6, {ws.W2}
    s_addc_u32 s25, s7, 0
    s_add_u32 s100, s6, {ws.WO}
    s_addc_u32 s101, s7, 0
    s_cmp_eq_u32 s43, 0
    s_cselect_b32 s24, s24, s100
    s_cselect_b32 s25, s25, s101
    s_and_b32 s25, s25, 0xffff
    s_mov_b32 s26, {ws.WO_SZ}
    s_cselect_b32 s26, {ws.W2_SZ}, s26
    s_mov_b32 s27, 0x20000
    """)
    unitB_proc(a, f"{n}_pb", V2, LDS_R2)
    a.label(f"{n}_p2d")
    stamp(a, 4)
    wait_tree(a, T_P0, 16)
    stamp(a, 5)

LDS_MEGA = LDS_X + 1024 + 512

def gen_mega(a, name):
    kernel_header(a, name)
    n = name
    a(f"""
    s_cmp_ge_u32 s2, 256
    s_cbranch_scc1 {n}_end
    s_load_dwordx2 s[4:5], s[0:1], 0
    s_load_dwordx2 s[6:7], s[0:1], 64
    s_load_dwordx4 s[8:11], s[0:1], 48
    s_load_dwordx4 s[{P_WQKV}:{P_WQKV+3}], s[0:1], 8
    s_load_dwordx4 s[{P_W1}:{P_W1+3}], s[0:1], 32
    v_lshrrev_b32 v1, 6, v0
    s_and_b32 s{S_X}, s2, 7
    v_readfirstlane_b32 s{S_W}, v1
    s_lshr_b32 s{S_JX}, s2, 3
    s_mov_b32 s{S_L}, 0
    s_mov_b32 s{S_LOFF}, 0
    s_mov_b32 s{S_CL}, 0
    s_waitcnt lgkmcnt(0)
    s_add_u32 s{S_CB}, s6, {ws.CNT}
    s_addc_u32 s{S_CB+1}, s7, 0
    """)
    if not os.environ.get("NOCPF"):
        a(f"s_branch {n}_cpf")
        a.label(f"{n}_cpf_ret")
    PH[0] = 5; stamp(a, 0)
    dbgw(a, 1)
    p0_phase(a, f"{n}_p0")
    a.label(f"{n}_layer")
    def w_qkv():
        _uid[0] += 1; u = _uid[0]
        a(f"s_cmp_eq_u32 s{S_L}, 0")
        a(f"s_cbranch_scc1 skipw_{u}")
        wait(a, f"s{LN.S_MB}", C_DN, 1, 16, prev_layer=True)
        a.label(f"skipw_{u}")
    PH[0] = 0; stamp(a, 0)
    ln_phase(a, "qkv", f"{n}_qkv", w_qkv)
    stamp(a, 5)
    arrive_tree(a, f"s{LN.S_MB}", C_QKV, 16, T_QKV)
    PH[0] = 1; stamp(a, 0)
    def pf_setup(a):
        srd(a, 72, 6, 0, ws.W2 + ws.W2_SZ)
        a(f"""
        s_lshl_b32 s79, s{S_JX}, 2
        s_add_u32 s79, s79, s{S_W}
        s_lshr_b32 s80, s{S_X}, 2
        s_mul_i32 s76, s80, {4*102400}
        s_mul_i32 s81, s79, 3200
        s_add_u32 s76, s76, s81
        s_add_u32 s76, s76, {ws.WO}
        s_mul_i32 s77, s80, {32*40960}
        s_mul_i32 s81, s79, 10240
        s_add_u32 s77, s77, s81
        s_add_u32 s77, s77, {ws.W1}
        s_mul_i32 s78, s80, {4*54*5120}
        s_mul_i32 s81, s79, 8640
        s_add_u32 s78, s78, s81
        s_add_u32 s78, s78, {ws.W2}
        v_and_b32 v57, 63, v0
        v_lshlrev_b32 v57, {5 if os.environ.get("PF32") else 6}, v57
        """)
    pf = None if not os.environ.get("PF") else {
        "setup": pf_setup,
        "load": [f"buffer_load_dword v56, v57, s[72:75], s76 offen {os.environ.get('PFSC', SCW)}"] + ([f"buffer_load_dword v58, v57, s[72:75], s76 offen offset:2048 {os.environ.get('PFSC', SCW)}"] if os.environ.get("PF32") else []),
        "next": [["s_add_u32 s76, s76, 4096", "s_cmp_eq_u32 s56, 8"], ["s_cselect_b32 s76, s77, s76"],
                 ["s_cmp_eq_u32 s56, 5"], ["s_cselect_b32 s76, s78, s76"]]}
    k_attn2.attn_phase(a, f"{n}_att", 6, ('L', ws.Q), ('L', ws.K), ('L', ws.V), ('L', ws.O), sc=SC, scl=SCL,
                       srd_fn=lambda d, off, size: srd_s(a, d, 6, off, size),
                       wait_fn=lambda: wait_tree(a, T_QKV, 16), stamp_fn=stamp, pf=pf)
    stamp(a, 5)
    arrive_tree(a, f"s{k_attn2.S_QB}", C_ATT, 32, T_ATT)
    PH[0] = 2; stamp(a, 0)
    def w_wo():
        wait_tree(a, T_ATT, 8)
    rs_phase(a, "wo", f"{n}_wo", w_wo)
    stamp(a, 5)
    arrive(a, f"s{RS.S_MBK}", C_WO)
    PH[0] = 3; stamp(a, 0)
    ln_phase(a, "w1", f"{n}_up", lambda: wait(a, f"s{LN.S_MB}", C_WO, 1, 16))
    stamp(a, 5)
    arrive(a, f"s{LN.S_MB}", C_UP)
    PH[0] = 4; stamp(a, 0)
    rs_phase(a, "w2", f"{n}_dn", lambda: wait(a, f"s{RS.S_MBK}", C_UP, 1, 16))
    stamp(a, 5)
    arrive(a, f"s{RS.S_MBK}", C_DN)
    a(f"""
    s_mov_b32 s{S_L}, 1
    s_mov_b32 s{S_LOFF}, {LAYER_SZ if os.environ.get("SEPL") else 0}
    s_mov_b32 s{S_CL}, {NCNT*128}
    s_branch {n}_layer
    """)
    a.label(f"{n}_end")
    a("s_endpgm")
    if not os.environ.get("NOCPF"):
        a.label(f"{n}_cpf")
        a(f"s_getpc_b64 s[20:21]")
        a.label(f"{n}_cpf_pc")
        a(f"""
        s_sub_u32 s20, s20, {n}_cpf_pc-{n}
        s_subb_u32 s21, s21, 0
        s_and_b32 s21, s21, 0xffff
        s_mov_b32 s22, {n}_cpf_pc-{n}
        s_mov_b32 s23, 0x20000
        s_lshl_b32 s24, s{S_JX}, 12
        v_lshlrev_b32 v2, 4, v0
        buffer_load_dwordx4 v[244:247], v2, s[20:23], s24 offen
        s_branch {n}_cpf_ret
        """)
    return kernel_desc(name, 256, 256, 102)
```

```python
import os, math, struct
from asm import *
import asm as ASM
from layout3 import *
import k_attn3 as k_attn2

EXP = os.environ.get("EXP", "")
SC = "sc1"
SCL = os.environ.get("SCL", "sc1")
SCW = os.environ.get("SCW", "sc1")
def f32hex(x): return "0x%08x" % struct.unpack("<I", struct.pack("<f", x))[0]
QSCALE = (DH ** -0.5) * math.log2(math.e)
LOG2E = math.log2(math.e)

S_X = 12; S_JX = 13; S_L = 14; S_LOFF = 15; S_W = 16
S_CL = 97
S_CB = 98
SPIN_MAX = 1 << 18
S_WT = 72
S_WLN = 76
S_WWO = 77
S_WW2 = 78
S_WSH = 79
S_T0 = 80; S_T1 = 81; S_T2 = 82; S_T3 = 83
V_L16 = 249
A_W = 96
PWQ = int(os.environ.get("PWQ", "5"))
PWU1 = int(os.environ.get("PWU1", "5"))
PWU = int(os.environ.get("PWU", "8"))
W2E = int(os.environ.get("W2E", "5"))
NSTG = int(os.environ.get("NSTG", "0"))

def wln_bundle(which, n):
    g, i = divmod(n, 4)
    off = (ws.WQKV if which == "qkv" else ws.W1) + g*4096
    pre = [f"s_add_u32 s{S_T0}, s{S_WLN}, {off}"] if i == 0 else []
    return (pre + [f"buffer_load_dwordx4 a[{A_W+4*n}:{A_W+4*n+3}], v{V_L16}, s[{S_WT}:{S_WT+3}], s{S_T0} offen offset:{i*1024} {SCW}"], ("W", g))

def w2dma_bundle(g, j):
    slot = g % 7
    ld = lambda o: f"buffer_load_dwordx4 v{V_L16}, s[{S_WT}:{S_WT+3}], s{S_T1} offen offset:{o} {SCW} lds"
    if j in (1, 2, 3): return ([ld(j*1024)], ("D", g))
    ex = 4096 if j == 4 else 0
    return ([f"s_add_u32 m0, s{S_WSH}, {slot*20480 + ex}", f"s_add_u32 s{S_T1}, s{S_WW2}, {g*20480 + ex}", ld(0)], ("D", g))

def w2stage_bundle(g, j):
    r = A_W + 4*(5*(g - 7) + j)
    ld = lambda o: f"buffer_load_dwordx4 a[{r}:{r+3}], v{V_L16}, s[{S_WT}:{S_WT+3}], s{S_T1} offen offset:{o} {SCW}"
    if j in (1, 2, 3): return ([ld(j*1024)], ("G", g))
    ex = 4096 if j == 4 else 0
    return ([f"s_add_u32 s{S_T1}, s{S_WW2}, {g*20480 + ex}", ld(0)], ("G", g))

def stream_setup(a):
    srd(a, S_WT, 6, 0, ws.W2 + ws.W2_SZ)
    a(f"""
    v_and_b32 v{V_L16}, 63, v0
    v_lshlrev_b32 v{V_L16}, 4, v{V_L16}
    s_lshr_b32 s20, s{S_X}, 2
    s_lshl_b32 s21, s20, 3
    s_lshr_b32 s22, s{S_JX}, 2
    s_add_u32 s21, s21, s22                     ; nb
    s_lshl_b32 s21, s21, 2
    s_add_u32 s21, s21, s{S_W}
    s_mul_i32 s{S_WLN}, s21, 40960
    s_lshl_b32 s21, s20, 2
    s_lshr_b32 s22, s{S_JX}, 3
    s_add_u32 s21, s21, s22                     ; j
    {"s_lshr_b32 s21, s%d, 2" % S_JX if os.environ.get("RSMAP", "4x8") == "4x8" else ""}
    s_mul_i32 s{S_WSH}, s{S_W}, 5120
    s_mul_i32 s{S_WW2}, s21, {54*5120}
    s_add_u32 s{S_WW2}, s{S_WW2}, s{S_WSH}
    s_add_u32 s{S_WW2}, s{S_WW2}, {ws.W2}
    s_mul_i32 s{S_WWO}, s21, 102400
    s_mul_i32 s22, s{S_W}, 25600
    s_add_u32 s{S_WWO}, s{S_WWO}, s22
    s_add_u32 s{S_WWO}, s{S_WWO}, {ws.WO}
    """)


def srd_s(a, d, ptr, off, size):
    if isinstance(off, tuple):
        a(f"s_add_u32 s{d}, s{S_LOFF}, {off[1]}")
        a(f"s_add_u32 s{d}, s{d}, s{ptr}")
        a(f"s_addc_u32 s{d+1}, s{ptr+1}, 0")
        a(f"s_and_b32 s{d+1}, s{d+1}, 0xffff")
        a(f"s_mov_b32 s{d+2}, {size}")
        a(f"s_mov_b32 s{d+3}, 0x20000")
    else:
        srd(a, d, ptr, off, size)

def srd_sel(a, d, size, first_ptr, first_off, ws_off):
    a(f"""
    s_add_u32 s{d}, s6, {ws_off}
    s_addc_u32 s{d+1}, s7, 0
    s_add_u32 s100, s{first_ptr}, {first_off}
    s_addc_u32 s101, s{first_ptr+1}, 0
    s_cmp_eq_u32 s{S_L}, 0
    s_cselect_b32 s{d}, s100, s{d}
    s_cselect_b32 s{d+1}, s101, s{d+1}
    s_and_b32 s{d+1}, s{d+1}, 0xffff
    s_mov_b32 s{d+2}, {size}
    s_mov_b32 s{d+3}, 0x20000
    """)

_uid = [0]
PH = [0]
STAMP_OFF = 60 << 20
DBGW = os.environ.get("DBGW")
def dbgw(a, slot):
    if DBGW is None: return
    _uid[0] += 1; u = _uid[0]
    a(f"""
    s_cmp_lg_u32 s{S_W}, 0
    s_cbranch_scc1 dw_skip_{u}
    s_cmp_lg_u32 s2, {int(DBGW)}
    s_cbranch_scc1 dw_skip_{u}
    s_memrealtime s[94:95]
    s_mul_i32 s93, s{S_L}, 5
    s_add_u32 s93, s93, {slot}
    s_lshl_b32 s93, s93, 2
    s_waitcnt lgkmcnt(0)
    v_mov_b32 v252, s94
    v_mov_b32 v254, s93
    global_store_dword v254, v252, s[10:11]
    """)
    a.label(f"dw_skip_{u}")

def stamp(a, i):
    if i == 0 and PH[0] < 5: dbgw(a, 3 + PH[0])
    if not ASM.STAMPS: return
    _uid[0] += 1; u = _uid[0]
    k = PH[0] * 8 + i
    a(f"""
    s_cmp_lg_u32 s{S_W}, 0
    s_cbranch_scc1 st_skip_{u}
    {"s_memtime" if os.environ.get("STAMPCLK") else "s_memrealtime"} s[94:95]
    s_lshl_b32 s93, s{S_L}, 6
    s_add_u32 s93, s93, {k}
    s_lshl_b32 s93, s93, 11
    s_lshl_b32 s92, s2, 3
    s_add_u32 s93, s93, s92
    s_add_u32 s93, s93, {STAMP_OFF}
    s_waitcnt lgkmcnt(0)
    v_mov_b32 v252, s94
    v_mov_b32 v253, s95
    v_mov_b32 v254, s93
    global_store_dwordx2 v254, v[252:253], s[6:7]
    """)
    a.label(f"st_skip_{u}")

def arrive(a, idx_sgpr, first, vt=250):
    _uid[0] += 1; u = _uid[0]
    a(f"""
    s_waitcnt vmcnt(0) lgkmcnt(0)
    s_barrier
    s_cmp_lg_u32 s{S_W}, 0
    s_cbranch_scc1 arr_done_{u}
    s_add_u32 s100, {idx_sgpr}, {first}
    s_lshl_b32 s100, s100, 7
    s_add_u32 s100, s100, s{S_CL}
    v_mov_b32 v{vt}, s100
    v_mov_b32 v{vt+1}, 1
    s_mov_b64 exec, 1
    global_atomic_add v{vt}, v{vt+1}, s[{S_CB}:{S_CB+1}] sc1
    s_mov_b64 exec, -1
    """)
    a.label(f"arr_done_{u}")

def arrive_tree(a, idx_sgpr, first, per, top, vt=250):
    _uid[0] += 1; u = _uid[0]
    a(f"""
    s_waitcnt vmcnt(0) lgkmcnt(0)
    s_barrier
    s_cmp_lg_u32 s{S_W}, 0
    s_cbranch_scc1 art_done_{u}
    s_add_u32 s100, {idx_sgpr}, {first}
    s_lshl_b32 s100, s100, 7
    s_add_u32 s100, s100, s{S_CL}
    v_mov_b32 v{vt}, s100
    v_mov_b32 v{vt+1}, 1
    s_mov_b64 exec, 1
    global_atomic_add v{vt+2}, v{vt}, v{vt+1}, s[{S_CB}:{S_CB+1}] sc0 sc1
    s_waitcnt vmcnt(0)
    v_readfirstlane_b32 s100, v{vt+2}
    s_mov_b64 exec, -1
    s_cmp_lg_u32 s100, {per-1}
    s_cbranch_scc1 art_done_{u}
    v_and_b32 v{vt}, 7, v0
    v_lshlrev_b32 v{vt}, 7, v{vt}
    s_add_u32 s100, s{S_CL}, {top*128}
    v_add_u32 v{vt}, s100, v{vt}
    s_mov_b64 exec, 0xff
    global_atomic_add v{vt}, v{vt+1}, s[{S_CB}:{S_CB+1}] sc1
    s_mov_b64 exec, -1
    """)
    a.label(f"art_done_{u}")

def wait_tree(a, top, ngroups):
    a("s_and_b32 s101, s2, 7")
    wait(a, "s101", top, 1, ngroups)

def wait(a, idx_sgpr, first, nlanes, expected, prev_layer=False, vt=250):
    _uid[0] += 1; u = _uid[0]
    a(f"""
    s_cmp_lg_u32 s{S_W}, 0
    s_cbranch_scc1 wt_done_{u}
    s_add_u32 s100, {idx_sgpr}, {first}
    s_lshl_b32 s100, s100, 7
    s_add_u32 s100, s100, s{S_CL}
    """)
    if prev_layer: a(f"s_sub_u32 s100, s100, {NCNT*128}")
    a(f"""
    v_and_b32 v{vt}, {nlanes-1}, v0
    v_lshlrev_b32 v{vt}, 7, v{vt}
    v_add_u32 v{vt}, s100, v{vt}
    s_mov_b32 s101, 0
    s_mov_b64 exec, {hex((1 << nlanes) - 1)}
    """)
    a.label(f"wt_poll_{u}")
    a(f"""
    global_load_dword v{vt+1}, v{vt}, s[{S_CB}:{S_CB+1}] sc1
    s_add_u32 s101, s101, 1
    s_waitcnt vmcnt(0)
    v_cmp_le_u32 vcc, {expected}, v{vt+1}
    s_cmp_ge_u32 s101, {SPIN_MAX}
    s_cbranch_scc1 wt_ok_{u}
    s_cmp_eq_u64 vcc, exec
    s_cbranch_scc1 wt_ok_{u}
    s_sleep 1
    s_branch wt_poll_{u}
    """)
    a.label(f"wt_ok_{u}")
    a("s_mov_b64 exec, -1")
    a.label(f"wt_done_{u}")
    a("s_barrier")

LDS_X = 9 * 16384
LDS_MISC = LDS_X
class LN:
    V_LANE = 1; V_TOK = 2; V_H = 3; V_ST = 4; V_WOFF = 6
    V_R = 8; V_T = 20; V_XF = 32; V_ACC = 80; V_E = 144
    S_MB = 17; S_NB = 18; S_SL = 19
PW = int(os.environ.get("PW", "5"))

def ln_ids(a, mode):
    L = LN
    a(f"""
    s_and_b32 s20, s{S_X}, 3
    s_lshl_b32 s20, s20, 2
    s_and_b32 s21, s{S_JX}, 3
    s_add_u32 s{L.S_MB}, s20, s21
    s_lshr_b32 s20, s{S_X}, 2
    s_lshl_b32 s20, s20, 3
    s_lshr_b32 s21, s{S_JX}, 2
    s_add_u32 s{L.S_NB}, s20, s21
    """)

def ln_phase(a, mode, base, wait_fn, pre_done=0, pre_total=5, epi_hook=None):
    L = LN
    V_LANE, V_TOK, V_H, V_ST, V_WOFF, V_R, V_T, V_XF, V_ACC, V_E = (L.V_LANE, L.V_TOK, L.V_H, L.V_ST, L.V_WOFF, L.V_R, L.V_T, L.V_XF, L.V_ACC, L.V_E)
    S_MB, S_NB, S_SL = L.S_MB, L.S_NB, L.S_SL
    NB = 15 if mode == "qkv" else 14
    ln_ids(a, mode)
    a(f"""
    s_cmp_ge_u32 s{S_NB}, {NB}
    s_cbranch_scc1 {base}_idle
    s_lshl_b32 s{S_SL}, s{S_NB}, 2
    s_add_u32 s{S_SL}, s{S_SL}, s{S_W}          ; slice
    v_and_b32 v{V_LANE}, 63, v0
    v_and_b32 v{V_TOK}, 31, v0
    v_lshlrev_b32 v{V_WOFF}, 4, v{V_LANE}
    """)
    if mode == "qkv": wt, wtsz, cs, cssz = ws.WQKV, ws.WQKV_SZ, ws.CSQ, ws.CSQ_SZ
    else: wt, wtsz, cs, cssz = ws.W1, ws.W1_SZ, ws.CS1, ws.CS1_SZ
    ops = []
    PW = pre_total
    def w_bundle(n): return wln_bundle(mode, n)
    def d_bundle(g, j):
        slot = g % 9
        ld = f"buffer_load_dwordx4 v{V_WOFF}, s[20:23], s42 offen offset:{(j & 1)*1024} {SCL} lds"
        if j & 1: return ([ld], ("D", g))
        return ([f"s_add_u32 m0, s40, {slot*16384 + (j >> 1)*2048}", f"s_add_u32 s42, s38, {(8*g + (j >> 1))*CSTR}", ld], ("D", g))
    def emit(b):
        for l in b[0]: a(l)
        ops.append(b[1])
    NF = 1920 if mode == "qkv" else 1728
    for n in range(4*pre_done, 4*PW): emit(w_bundle(n))
    srd(a, 32, 6, cs, cssz)
    a(f"""
    v_bfe_u32 v{V_H}, v0, 5, 1
    s_lshl_b32 s37, s{S_SL}, 5
    v_add_u32 v{V_T+1}, s37, v{V_TOK}
    v_lshlrev_b32 v{V_T+1}, 2, v{V_T+1}
    v_mul_u32_u24 v{V_T+2}, {16*NF}, v{V_H}
    v_add_u32 v{V_T+1}, v{V_T+1}, v{V_T+2}
    s_movk_i32 s56, {4*NF}
    s_movk_i32 s57, {8*NF}
    s_movk_i32 s58, {12*NF}
    buffer_load_dword v{V_E+8}, v{V_T+1}, s[32:35], 0 offen {SCW}
    buffer_load_dword v{V_E+9}, v{V_T+1}, s[32:35], s56 offen {SCW}
    buffer_load_dword v{V_E+10}, v{V_T+1}, s[32:35], s57 offen {SCW}
    buffer_load_dword v{V_E+11}, v{V_T+1}, s[32:35], s58 offen {SCW}
    v_lshlrev_b32 v{V_T}, 11, v{V_H}
    v_lshl_add_u32 v{V_R}, v{V_TOK}, 4, v{V_T}
    v_add_u32 v{V_R+1}, 0x10000, v{V_R}
    v_add_u32 v{V_R+2}, 0x20000, v{V_R}
    """)
    ops.extend(["C"] * 4)
    if mode == "qkv":
        srd_sel(a, 20, 80*CSTR, 6, ws.X0, ws.XB)
        srd_sel(a, 28, ws.STB_SZ, 6, ws.ST0, ws.STB)
        a(f"""
        s_cmp_eq_u32 s{S_L}, 0
        s_cselect_b32 s30, {ws.ST0_SZ}, s30
        """)
    else:
        srd_s(a, 20, 6, ('L', ws.XA), 80*CSTR)
        srd_s(a, 28, 6, ('L', ws.STA), ws.STA_SZ)
    a(f"""
    s_lshl_b32 s36, s{S_MB}, 7
    s_lshl_b32 s37, s{S_W}, 5
    s_add_u32 s36, s36, s37
    v_add_u32 v{V_T}, s36, v{V_TOK}
    v_lshlrev_b32 v{V_T}, 3, v{V_T}
    v_lshlrev_b32 v{V_ST}, 16, v{V_H}
    v_add_u32 v{V_ST}, v{V_ST}, v{V_T}
    s_mul_i32 s38, s{S_W}, {2*CSTR}
    s_lshl_b32 s37, s{S_MB}, 11
    s_add_u32 s38, s38, s37
    s_lshl_b32 s40, s{S_W}, 12
    s_movk_i32 s56, 16384
    s_mov_b32 s57, 32768
    s_mov_b32 s58, 49152
    """)
    stamp(a, 1)
    wait_fn()
    stamp(a, 2)
    for j in range(4): emit(d_bundle(0, j))
    a(f"""
    buffer_load_dwordx2 v[{V_E}:{V_E+1}], v{V_ST}, s[28:31], 0 offen {SCL}
    buffer_load_dwordx2 v[{V_E+2}:{V_E+3}], v{V_ST}, s[28:31], s56 offen {SCL}
    buffer_load_dwordx2 v[{V_E+4}:{V_E+5}], v{V_ST}, s[28:31], s57 offen {SCL}
    buffer_load_dwordx2 v[{V_E+6}:{V_E+7}], v{V_ST}, s[28:31], s58 offen {SCL}
    """)
    ops += ["S"] * 4
    for j in range(4): emit(d_bundle(1, j))
    a(f"s_waitcnt vmcnt(4)")
    e = V_E
    a(f"""
    v_add_f32 v{e}, v{e}, v{e+2}
    v_add_f32 v{e+1}, v{e+1}, v{e+3}
    v_add_f32 v{e+4}, v{e+4}, v{e+6}
    v_add_f32 v{e+5}, v{e+5}, v{e+7}
    v_add_f32 v{e}, v{e}, v{e+4}
    v_add_f32 v{e+1}, v{e+1}, v{e+5}
    v_add_f32 v{e+8}, v{e+8}, v{e+9}
    v_add_f32 v{e+10}, v{e+10}, v{e+11}
    v_mov_b32 v{e+2}, v{e}
    v_mov_b32 v{e+3}, v{e+1}
    v_add_f32 v{e+12}, v{e+8}, v{e+10}
    v_add_f32 v{e+13}, v{e+8}, v{e+10}
    v_permlane32_swap_b32 v{e}, v{e+2}
    v_permlane32_swap_b32 v{e+1}, v{e+3}
    v_permlane32_swap_b32 v{e+12}, v{e+13}
    v_add_f32 v{e}, v{e}, v{e+2}
    v_add_f32 v{e+1}, v{e+1}, v{e+3}
    v_add_f32 v{e+12}, v{e+12}, v{e+13}
    v_mul_f32 v{e}, {f32hex(1.0/D)}, v{e}       ; mean
    v_mul_f32 v{e+1}, {f32hex(1.0/D)}, v{e+1}
    v_fma_f32 v{e+1}, -v{e}, v{e}, v{e+1}       ; var
    v_max_f32 v{e+1}, 0, v{e+1}
    v_add_f32 v{e+1}, {f32hex(EPS)}, v{e+1}
    v_rsq_f32 v{e+1}, v{e+1}                    ; rstd
    s_lshl_b32 s43, s{S_W}, 7
    v_lshl_add_u32 v{e+4}, v{V_TOK}, 2, s43     ; (32w+tok)*4
    v_mul_f32 v{e+2}, v{e}, v{e+1}
    v_sub_f32 v{e+2}, 0, v{e+2}
    v_add_u32 v{e+4}, {LDS_MISC}, v{e+4}
    ds_write_b32 v{e+4}, v{e+1}
    ds_write_b32 v{e+4}, v{e+2} offset:512
    ds_write_b32 v{e+4}, v{e+12} offset:1024
    s_waitcnt lgkmcnt(0)
    s_barrier
    """)
    stamp(a, 3)
    forms = ["ct", "c"] if mode == "qkv" else ["ct"]
    if mode == "qkv":
        a(f"s_cmp_ge_u32 s{S_NB}, 10")
        a(f"s_cbranch_scc1 {base}_loop_c")
    saved = list(ops)
    for form in forms:
        ops[:] = list(saved)
        a.label(f"{base}_loop_{form}")
        def wait_group(g):
            last = max(i for i, o in enumerate(ops) if o == ("D", g) or o == ("W", g))
            a(f"s_waitcnt vmcnt({len(ops) - 1 - last})")
        def read(n, t):
            g = n >> 2; sp = n & 3; slot = g % 9
            q = slot >> 2; so = (slot & 3) * 16384
            buf = V_XF + 16 * (n % 3)
            a(f"ds_read_b128 v[{buf+4*t}:{buf+4*t+3}], v{V_R+q} offset:{so + sp*4096 + t*512}")
        for t in range(4): read(0, t)
        for t in range(4): read(1, t)
        pending = []
        for g in range(2, 10):
            if g >= PW: pending += [w_bundle(4*g + i) for i in range(4)]
            pending += [d_bundle(g, j) for j in range(4)]
        for n in range(40):
            if n + 2 < 40 and (n + 2) % 4 == 0:
                wait_group((n + 2) >> 2)
                a("s_barrier")
            a(f"s_waitcnt lgkmcnt({4 if n + 1 < 40 else 0})")
            buf = V_XF + 16 * (n % 3)
            for t in range(4):
                acc = f"v[{V_ACC+16*t}:{V_ACC+16*t+15}]"
                c = "0" if n == 0 else acc
                wf = f"a[{A_W+4*n}:{A_W+4*n+3}]"; xf = f"v[{buf+4*t}:{buf+4*t+3}]"
                if form == "ct": a(f"v_mfma_f32_32x32x16_bf16 {acc}, {wf}, {xf}, {c}")
                else: a(f"v_mfma_f32_32x32x16_bf16 {acc}, {xf}, {wf}, {c}")
                if n + 2 < 40: read(n + 2, t)
                if (t in (0, 2) or n < 4) and pending: emit(pending.pop(0))
        assert not pending
        stamp(a, 4)
        if epi_hook: a("s_barrier")
        if form == "ct": ln_epilogue_ct(a, mode, list(epi_hook or []))
        else: ln_epilogue_v(a)
        if form != forms[-1] or epi_hook: a(f"s_branch {base}_fin")
    a.label(f"{base}_idle")
    for b in (epi_hook or []):
        for l in b[0]: a(l)
    a.label(f"{base}_fin")

def ln_epilogue_ct(a, mode, hook):
    L = LN
    V_TOK, V_H, V_T, V_ACC, e = L.V_TOK, L.V_H, L.V_T, L.V_ACC, L.V_E
    S_MB, S_SL = L.S_MB, L.S_SL
    a(f"""
    v_lshlrev_b32 v{V_T}, 2, v{V_TOK}
    v_add_u32 v{V_T}, {LDS_MISC}, v{V_T}
    s_lshl_b32 s43, s{S_W}, 7
    v_lshlrev_b32 v{V_T+1}, 4, v{V_H}
    v_add_u32 v{V_T+1}, s43, v{V_T+1}
    v_add_u32 v{V_T+1}, {LDS_MISC+1024}, v{V_T+1}
    """)
    for t in range(4):
        a(f"ds_read_b32 v{e+2*t}, v{V_T} offset:{t*128}")
        a(f"ds_read_b32 v{e+2*t+1}, v{V_T} offset:{512+t*128}")
    for jj in range(4):
        a(f"ds_read_b128 v[{e+8+4*jj}:{e+11+4*jj}], v{V_T+1} offset:{jj*32}")
    CS = e + 8
    if mode == "qkv":
        a(f"""
        s_cmp_ge_u32 s{S_SL}, 20
        s_mov_b32 s44, {ws.Q}
        s_cselect_b32 s44, {ws.K}, s44
        s_cselect_b32 s45, 20, 0
        s_cselect_b32 s46, 1.0, {f32hex(QSCALE)}
        s_add_u32 s44, s44, s{S_LOFF}
        s_add_u32 s48, s6, s44
        s_addc_u32 s49, s7, 0
        s_and_b32 s49, s49, 0xffff
        s_mov_b32 s50, {ws.Q_SZ}
        s_mov_b32 s51, 0x20000
        s_sub_u32 s45, s{S_SL}, s45
        s_lshl_b32 s45, s45, 2
        s_lshl_b32 s47, s{S_MB}, 2                  ; first T
        """)
        for u in range(2):
            t0 = V_T + 2
            a(f"""
            v_add_u32 v{t0}, s45, v{V_H}
            v_add_u32 v{t0}, {2*u}, v{t0}               ; chunk
            v_mul_u32_u24 v{t0+1}, 205, v{t0}
            v_lshrrev_b32 v{t0+1}, 10, v{t0+1}          ; p
            v_mul_u32_u24 v{t0+2}, 5, v{t0+1}
            v_sub_u32 v{t0+2}, v{t0}, v{t0+2}           ; r
            v_lshrrev_b32 v{t0+3}, 1, v{t0+2}
            v_lshl_add_u32 v{t0+3}, v{t0+1}, 1, v{t0+3} ; head
            v_lshlrev_b32 v{t0+3}, 6, v{t0+3}
            v_add_u32 v{t0+3}, s47, v{t0+3}             ; head*64+T0
            v_lshlrev_b32 v{t0+3}, 10, v{t0+3}
            v_and_b32 v{t0+4}, 1, v{t0+2}
            v_lshl_add_u32 v{t0+3}, v{t0+4}, 9, v{t0+3}
            v_lshl_add_u32 v{t0+3}, v{V_TOK}, 4, v{t0+3}
            v_lshlrev_b32 v{t0+4}, 6, v{t0+1}
            v_add_u32 v{t0+4}, s47, v{t0+4}
            v_lshlrev_b32 v{t0+4}, 9, v{t0+4}
            v_lshl_add_u32 v{t0+4}, v{V_TOK}, 4, v{t0+4}
            v_add_u32 v{t0+4}, {QK1_SZ}, v{t0+4}
            v_cmp_eq_u32 vcc, 4, v{t0+2}
            v_mov_b32 v{t0+5}, 1024
            v_mov_b32 v{t0+6}, 512
            v_cndmask_b32 v{e+24+2*u}, v{t0+3}, v{t0+4}, vcc
            v_cndmask_b32 v{e+25+2*u}, v{t0+5}, v{t0+6}, vcc
            """)
        a("s_waitcnt lgkmcnt(0)")
        for t in range(4):
            a(f"v_mul_f32 v{e+2*t}, s46, v{e+2*t}")
            a(f"v_mul_f32 v{e+2*t+1}, s46, v{e+2*t+1}")
    else:
        srd_s(a, 48, 6, ('L', ws.HH), ws.HH_SZ)
        a(f"""
        s_lshl_b32 s45, s{S_SL}, 2
        v_add_u32 v{V_T+2}, s45, v{V_H}             ; chunk (u=0)
        v_mov_b32 v{V_T+3}, {CSTR}
        v_mul_lo_u32 v{V_T+2}, v{V_T+2}, v{V_T+3}
        s_lshl_b32 s47, s{S_MB}, 11
        v_lshl_add_u32 v{V_T+2}, v{V_TOK}, 4, v{V_T+2}
        v_add_u32 v{e+24}, s47, v{V_T+2}
        v_add_u32 v{e+26}, {2*CSTR}, v{e+24}
        v_mov_b32 v{V_T+4}, {f32hex(-LOG2E)}
        v_mov_b32 v{V_T+6}, 1.0
        s_waitcnt lgkmcnt(0)
        """)
    a("s_nop 4")
    T = e + 32
    for t in range(4):
        A = e + 2*t
        for u in range(2):
            accb = V_ACC + 16*t + 8*u
            csb = CS + 8*u
            nblk = 8 - (2*t + u)
            take = min(len(hook), max(0, -(-len(hook) // max(1, nblk - 2)))) if nblk > 2 else len(hook)
            for _ in range(take):
                for l in hook.pop(0)[0]: a(l)
            for pr in range(4):
                a(f"v_pk_mul_f32 v[{T+2*pr}:{T+2*pr+1}], v[{csb+2*pr}:{csb+2*pr+1}], v[{A}:{A+1}] op_sel:[0,1] op_sel_hi:[1,1]")
            for pr in range(4):
                a(f"v_pk_fma_f32 v[{T+2*pr}:{T+2*pr+1}], v[{accb+2*pr}:{accb+2*pr+1}], v[{A}:{A+1}], v[{T+2*pr}:{T+2*pr+1}] op_sel_hi:[1,0,1]")
            if mode == "w1":
                NL = V_T + 4
                for pr in range(4): a(f"v_pk_mul_f32 v[{T+8+2*pr}:{T+9+2*pr}], v[{T+2*pr}:{T+2*pr+1}], v[{NL}:{NL+1}] op_sel_hi:[1,0]")
                for i in range(8): a(f"v_exp_f32 v{T+8+i}, v{T+8+i}")
                for pr in range(4): a(f"v_pk_add_f32 v[{T+8+2*pr}:{T+9+2*pr}], v[{T+8+2*pr}:{T+9+2*pr}], v[{NL+2}:{NL+3}] op_sel_hi:[1,0]")
                for i in range(8): a(f"v_rcp_f32 v{T+8+i}, v{T+8+i}")
                a("s_nop 0")
                for pr in range(4): a(f"v_pk_mul_f32 v[{T+2*pr}:{T+2*pr+1}], v[{T+2*pr}:{T+2*pr+1}], v[{T+8+2*pr}:{T+9+2*pr}]")
            P = T + 16 + 4 * ((2*t + u) & 1)
            for pr in range(4): a(f"v_cvt_pk_bf16_f32 v{P+pr}, v{T+2*pr}, v{T+2*pr+1}")
            if mode == "qkv":
                a(f"buffer_store_dwordx4 v[{P}:{P+3}], v{e+24+2*u}, s[48:51], 0 offen {SC}")
                if t < 3: a(f"v_add_u32 v{e+24+2*u}, v{e+24+2*u}, v{e+25+2*u}")
            else:
                a(f"buffer_store_dwordx4 v[{P}:{P+3}], v{e+24+2*u}, s[48:51], 0 offen offset:{t*512} {SC}")
    assert not hook

def ln_epilogue_v(a):
    L = LN
    V_TOK, V_H, V_T, V_ACC, e = L.V_TOK, L.V_H, L.V_T, L.V_ACC, L.V_E
    S_MB, S_SL = L.S_MB, L.S_SL
    srd_s(a, 48, 6, ('L', ws.V), ws.V_SZ)
    a(f"""
    s_sub_u32 s45, s{S_SL}, 40
    s_lshl_b32 s45, s45, 5
    v_add_u32 v{V_T}, s45, v{V_TOK}             ; f
    v_mul_u32_u24 v{V_T+1}, 3277, v{V_T}
    v_lshrrev_b32 v{V_T+1}, 16, v{V_T+1}        ; head = f/20
    v_mul_u32_u24 v{V_T+2}, 20, v{V_T+1}
    v_sub_u32 v{V_T+2}, v{V_T}, v{V_T+2}        ; d
    v_bfe_u32 v{V_T+3}, v{V_T+2}, 2, 1
    v_lshlrev_b32 v{V_T+3}, 3, v{V_T+3}
    v_bfe_u32 v{V_T+4}, v{V_T+2}, 3, 1
    v_lshl_add_u32 v{V_T+3}, v{V_T+4}, 2, v{V_T+3}
    v_and_b32 v{V_T+4}, 3, v{V_T+2}
    v_add_u32 v{V_T+3}, v{V_T+3}, v{V_T+4}
    v_cmp_le_u32 vcc, 16, v{V_T+2}
    s_lshl_b32 s47, s{S_MB}, 2
    v_lshlrev_b32 v{V_T+1}, 6, v{V_T+1}
    v_cndmask_b32 v{V_T+3}, v{V_T+3}, v{V_T+2}, vcc
    v_add_u32 v{V_T+1}, s47, v{V_T+1}           ; head*64 + T0
    v_mul_u32_u24 v{V_T+1}, 1280, v{V_T+1}
    v_mul_u32_u24 v{V_T+4}, 320, v{V_H}
    v_add_u32 v{V_T+1}, v{V_T+1}, v{V_T+4}
    v_lshl_add_u32 v{e+24}, v{V_T+3}, 4, v{V_T+1}
    v_lshlrev_b32 v{V_T+5}, 4, v{V_H}
    v_add_u32 v{V_T+5}, {LDS_MISC}, v{V_T+5}
    v_lshlrev_b32 v{V_T+6}, 2, v{V_TOK}
    s_lshl_b32 s43, s{S_W}, 7
    v_add_u32 v{V_T+6}, s43, v{V_T+6}
    v_add_u32 v{V_T+6}, {LDS_MISC+1024}, v{V_T+6}
    ds_read_b32 v{e+26}, v{V_T+6}
    """)
    T = e + 32; AB = e + 56
    for t in range(4):
        for m in range(2):
            for q in range(2):
                jj = 2*m + q
                a(f"ds_read_b128 v[{AB+4*q}:{AB+4*q+3}], v{V_T+5} offset:{(32*t+8*jj)*4}")
                a(f"ds_read_b128 v[{AB+8+4*q}:{AB+8+4*q+3}], v{V_T+5} offset:{512+(32*t+8*jj)*4}")
            a("s_waitcnt lgkmcnt(0)")
            if t == 0 and m == 0: a("s_nop 4")
            accb = V_ACC + 16*t + 8*m
            for pr in range(4):
                a(f"v_pk_mul_f32 v[{T+2*pr}:{T+2*pr+1}], v[{AB+8+2*pr}:{AB+9+2*pr}], v[{e+26}:{e+27}] op_sel_hi:[1,0]")
            for pr in range(4):
                a(f"v_pk_fma_f32 v[{T+2*pr}:{T+2*pr+1}], v[{accb+2*pr}:{accb+2*pr+1}], v[{AB+2*pr}:{AB+2*pr+1}], v[{T+2*pr}:{T+2*pr+1}]")
            P = T + 16 + 4 * m
            for pr in range(4): a(f"v_cvt_pk_bf16_f32 v{P+pr}, v{T+2*pr}, v{T+2*pr+1}")
            if m == 0: a(f"s_movk_i32 s52, {t*1280}")
            a(f"buffer_store_dwordx4 v[{P}:{P+3}], v{e+24}, s[48:51], s52 offen offset:{m*640} {SC}")

class RS:
    V_LANE = 1; V_TOK = 2; V_G = 3; V_WOFF = 4; V_AOFF = 5; V_XOFF = 6; V_XC = 7
    V_R = 8; V_T = 12; V_WS = 16; V_XO = 20; V_WF = 32; V_ACC = 92; V_E = 112
    S_RB = 17; S_J = 18; S_MBK = 19
SLOT = 20480; NSLOT = 7

RSMAP = os.environ.get("RSMAP", "4x8")
def rs_ids(a):
    R = RS
    if RSMAP == "4x8":
        a(f"""
        s_lshl_b32 s20, s{S_X}, 2
        s_and_b32 s21, s{S_JX}, 3
        s_add_u32 s{R.S_RB}, s20, s21
        s_lshr_b32 s{R.S_J}, s{S_JX}, 2
        s_lshr_b32 s{R.S_MBK}, s{R.S_RB}, 1
        """)
        return
    a(f"""
    s_and_b32 s20, s{S_X}, 3
    s_lshl_b32 s20, s20, 3
    s_and_b32 s21, s{S_JX}, 7
    s_add_u32 s{R.S_RB}, s20, s21
    s_lshr_b32 s20, s{S_X}, 2
    s_lshl_b32 s20, s20, 2
    s_lshr_b32 s21, s{S_JX}, 3
    s_add_u32 s{R.S_J}, s20, s21
    s_lshr_b32 s{R.S_MBK}, s{R.S_RB}, 1
    """)

def rs_phase(a, mode, base, wait_fn, pre_hook=None):
    R = RS
    V_LANE, V_TOK, V_G, V_WOFF, V_AOFF, V_XOFF, V_R, V_T, V_XO, V_WF, V_ACC, e = (R.V_LANE, R.V_TOK, R.V_G, R.V_WOFF, R.V_AOFF, R.V_XOFF, R.V_R, R.V_T, R.V_XO, R.V_WF, R.V_ACC, R.V_E)
    S_RB, S_J = R.S_RB, R.S_J
    NKS = 20 if mode == "wo" else 54
    NG = (NKS + 3) // 4
    rs_ids(a)
    if mode == "wo": act, actsz, wt, wtsz = ws.O, ws.O_SZ, ws.WO, ws.WO_SZ
    else: act, actsz, wt, wtsz = ws.HH, ws.HH_SZ, ws.W2, ws.W2_SZ
    a(f"""
    v_and_b32 v{V_LANE}, 63, v0
    v_lshlrev_b32 v{V_WOFF}, 4, v{V_LANE}
    """)
    ops = []
    NRING = 20 if mode == "wo" else 24
    def areg(n): return 4 * (n % NRING)
    def d_bundle(g, j): return w2dma_bundle(g, j)
    def a_bundle(n):
        return ([f"s_add_u32 s49, s44, {n*4*CSTR}",
                 f"buffer_load_dwordx4 a[{areg(n)}:{areg(n)+3}], v{V_AOFF}, s[32:35], s49 offen {SCL}"], ("A", n >> 2))
    def emit(b):
        skip = inloop[0] and ((b[1][0] == "A" and "rs_noA" in EXP) or (b[1][0] == "D" and "rs_noD" in EXP))
        for l in b[0]:
            if skip and (l.startswith("buffer_load") or "rs_nosalu" in EXP): continue
            a(l)
        if not skip: ops.append(b[1])
    inloop = [False]
    NPRE = min(NG, NSLOT)
    for b in (pre_hook or []): emit(b)
    a(f"""
    v_and_b32 v{V_TOK}, 15, v0
    v_bfe_u32 v{V_G}, v0, 4, 2
    v_mov_b32 v{V_R}, v{V_WOFF}
    v_add_u32 v{V_R+1}, 0x10000, v{V_WOFF}
    v_add_u32 v{V_R+2}, 0x20000, v{V_WOFF}
    v_add_u32 v{R.V_WS}, s{S_WSH}, v{V_WOFF}
    v_add_u32 v{R.V_WS+1}, 0x10000, v{R.V_WS}
    v_add_u32 v{R.V_WS+2}, 0x20000, v{R.V_WS}
    v_mul_u32_u24 v{V_AOFF}, {CSTR}, v{V_G}
    v_lshl_add_u32 v{V_AOFF}, v{V_TOK}, 4, v{V_AOFF}
    s_lshl_b32 s19, s{S_RB}, 6
    s_lshl_b32 s20, s{S_W}, 4
    s_add_u32 s22, s19, s20
    v_add_u32 v{V_T}, s22, v{V_TOK}             ; token
    s_mul_i32 s20, s{S_J}, 10
    v_add_u32 v{V_T+1}, s20, v{V_G}
    v_mul_u32_u24 v{V_T+1}, {CSTR}, v{V_T+1}
    v_lshl_add_u32 v{V_XOFF}, v{V_T}, 4, v{V_T+1}
    v_lshrrev_b32 v{V_T+1}, 1, v{V_G}
    v_add_u32 v{V_T+1}, s20, v{V_T+1}
    v_add_u32 v{V_T+1}, 8, v{V_T+1}
    v_mul_u32_u24 v{V_T+1}, {CSTR}, v{V_T+1}
    v_lshl_add_u32 v{V_T+1}, v{V_T}, 4, v{V_T+1}
    v_and_b32 v{V_T+2}, 1, v{V_G}
    v_lshl_add_u32 v{RS.V_XC}, v{V_T+2}, 3, v{V_T+1}
    s_mov_b32 s23, {4*CSTR}
    s_lshl_b32 s44, s22, 4
    s_lshr_b32 s{R.S_MBK}, s{S_RB}, 1
    """)
    if mode == "wo":
        srd_sel(a, 24, 80*CSTR, 6, ws.X0, ws.XB)
        srd_s(a, 28, 6, ('L', ws.XA), 80*CSTR)
        srd_s(a, 40, 6, ('L', ws.STA), ws.STA_SZ)
    else:
        srd_s(a, 24, 6, ('L', ws.XA), 80*CSTR)
        a(f"""
        s_add_u32 s28, s6, {ws.XB}
        s_addc_u32 s29, s7, 0
        s_cmp_eq_u32 s{S_L}, 0
        s_cselect_b32 s28, s28, s8
        s_cselect_b32 s29, s29, s9
        s_mov_b32 s30, {M*D*2}
        s_cselect_b32 s30, {80*CSTR}, s30
        s_and_b32 s29, s29, 0xffff
        s_mov_b32 s31, 0x20000
        """)
        srd(a, 40, 6, ws.STB, ws.STB_SZ)
    srd_s(a, 32, 6, ('L', act), actsz)
    a(f"""
    buffer_load_dwordx4 v[{V_XO}:{V_XO+3}], v{V_XOFF}, s[24:27], 0 offen {SCL}
    buffer_load_dwordx4 v[{V_XO+4}:{V_XO+7}], v{V_XOFF}, s[24:27], s23 offen {SCL}
    buffer_load_dwordx2 v[{V_XO+8}:{V_XO+9}], v{RS.V_XC}, s[24:27], 0 offen {SCL}
    """)
    ops += ["X", "X", "X"]
    stamp(a, 1)
    wait_fn()
    stamp(a, 2)
    NS = 4 * NG
    ADIST = int(os.environ.get("ADIST", "4"))
    for n in range(4*ADIST): emit(a_bundle(n))
    def wait_for(kind, g):
        cand = [i for i, o in enumerate(ops) if o == (kind, g)]
        if not cand: return
        last = max(cand)
        a(f"s_waitcnt vmcnt({len(ops) - 1 - last})")
    wait_for("A", 0)
    a("s_barrier")
    stamp(a, 3)
    def read(n, ft):
        g = n >> 2; slot = g % NSLOT
        o = slot*SLOT + (n & 3)*5120 + ft*1024
        buf = V_WF + 20*(n % 3)
        a(f"ds_read_b128 v[{buf+4*ft}:{buf+4*ft+3}], v{V_R+(o>>16)} offset:{o & 0xffff}")
    lops = []
    def rd(n, ft):
        read(n, ft); lops.append(("R", n))
    def wait_reads(n):
        last = max(i for i, o in enumerate(lops) if o == ("R", n))
        cnt = len(lops) - 1 - last
        assert cnt <= 15
        a(f"s_waitcnt lgkmcnt({cnt})")
    for ft in range(5): rd(0, ft)
    for ft in range(5): rd(1, ft)
    inloop[0] = True
    STG0, STG1 = 7, 7 + NSTG
    for n in range(NS):
        tau = n >> 2
        if n + 2 < NS and (n + 2) % 4 == 0:
            g = (n + 2) >> 2
            if g >= STG1 and NG > NPRE: wait_for("D", g)
            if STG0 <= g < STG1 and NG > NPRE:
                last = max(i for i, o in enumerate(lops) if o == ("W", g))
                cnt = len(lops) - 1 - last
                if cnt <= 15: a(f"s_waitcnt lgkmcnt({cnt})")
            if NG > NPRE: a("s_barrier")
        if n % 4 == 0 and n > 0: wait_for("A", tau)
        wait_reads(n)
        todo = []
        if tau + ADIST < NG and (n & 3) < 2:
            todo = [a_bundle(4*(tau+ADIST) + 2*(n & 3)), a_bundle(4*(tau+ADIST) + 2*(n & 3) + 1)]
        gg = tau + NSLOT - 1
        js = ((0, 1, 2) if (n & 3) == 2 else (3, 4)) if (n & 3) >= 2 else ()
        wr = []
        if NPRE <= gg < NG and js:
            if gg >= STG1: todo = [d_bundle(gg, j) for j in js]
            else: wr = list(js)
        buf = V_WF + 20*(n % 3)
        for ft in range(5):
            acc = f"v[{V_ACC+4*ft}:{V_ACC+4*ft+3}]"
            c = "0" if n == 0 else acc
            a(f"v_mfma_f32_16x16x32_bf16 {acc}, v[{buf+4*ft}:{buf+4*ft+3}], a[{areg(n)}:{areg(n)+3}], {c}")
            if n + 2 < NS: rd(n + 2, ft)
            if ft in (0, 2, 4) and todo: emit(todo.pop(0))
            if ft in (0, 2, 4) and wr:
                j = wr.pop(0); r = A_W + 4*(5*(gg - 7) + j)
                o = (gg % NSLOT)*SLOT + j*1024
                a(f"ds_write_b128 v{R.V_WS+(o >> 16)}, a[{r}:{r+3}] offset:{o & 0xffff}")
                lops.append(("W", gg))
        assert not todo and not wr
    stamp(a, 4)
    a("s_nop 7")
    for q in range(10):
        a(f"v_lshlrev_b32 v{e+2*q}, 16, v{V_XO+q}")
        a(f"v_and_b32 v{e+2*q+1}, 0xffff0000, v{V_XO+q}")
    for i in range(20): a(f"v_add_f32 v{e+i}, v{e+i}, v{V_ACC+i}")
    for q in range(10): a(f"v_cvt_pk_bf16_f32 v{e+24+q}, v{e+2*q}, v{e+2*q+1}")
    if mode == "w2":
        a(f"""
        s_cmp_lg_u32 s{S_L}, 0
        s_cbranch_scc1 {base}_last
        """)
    a(f"""
    buffer_store_dwordx4 v[{e+24}:{e+27}], v{V_XOFF}, s[28:31], 0 offen {SC}
    buffer_store_dwordx4 v[{e+28}:{e+31}], v{V_XOFF}, s[28:31], s23 offen {SC}
    buffer_store_dwordx2 v[{e+32}:{e+33}], v{RS.V_XC}, s[28:31], 0 offen {SC}
    """)
    for q in range(10):
        a(f"v_lshlrev_b32 v{e+2*q}, 16, v{e+24+q}")
        a(f"v_and_b32 v{e+2*q+1}, 0xffff0000, v{e+24+q}")
    a(f"v_mov_b32 v{e+40}, 0")
    a(f"v_mov_b32 v{e+41}, 0")
    for i in range(20):
        a(f"v_add_f32 v{e+40}, v{e+40}, v{e+i}")
        a(f"v_fmac_f32 v{e+41}, v{e+i}, v{e+i}")
    a(f"""
    v_mov_b32 v{e+42}, v{e+40}
    v_mov_b32 v{e+43}, v{e+41}
    s_nop 1
    v_permlane32_swap_b32 v{e+40}, v{e+42}
    v_permlane32_swap_b32 v{e+41}, v{e+43}
    v_add_f32 v{e+40}, v{e+40}, v{e+42}
    v_add_f32 v{e+41}, v{e+41}, v{e+43}
    v_mov_b32 v{e+42}, v{e+40}
    v_mov_b32 v{e+43}, v{e+41}
    s_nop 1
    v_permlane16_swap_b32 v{e+40}, v{e+42}
    v_permlane16_swap_b32 v{e+41}, v{e+43}
    v_add_f32 v{e+40}, v{e+40}, v{e+42}
    v_add_f32 v{e+41}, v{e+41}, v{e+43}
    v_add_u32 v{V_T}, s22, v{V_TOK}
    v_lshlrev_b32 v{V_T}, 3, v{V_T}
    s_lshl_b32 s49, s{S_J}, 14
    v_mov_b32 v{V_T+1}, 0x7ffffff0
    v_cmp_eq_u32 vcc, 0, v{V_G}
    s_nop 1
    v_cndmask_b32 v{V_T}, v{V_T+1}, v{V_T}, vcc
    buffer_store_dwordx2 v[{e+40}:{e+41}], v{V_T}, s[40:43], s49 offen {SC}
    """)
    if mode == "w2":
        a(f"s_branch {base}_done")
        a.label(f"{base}_last")
        a(f"""
        v_add_u32 v{V_T}, s22, v{V_TOK}
        v_mul_u32_u24 v{V_T}, 1280, v{V_T}
        s_mul_i32 s49, s{S_J}, 160
        v_lshl_add_u32 v{V_T+1}, v{V_G}, 4, v{V_T}
        v_lshl_add_u32 v{V_T+2}, v{V_G}, 3, v{V_T}
        buffer_store_dwordx4 v[{e+24}:{e+27}], v{V_T+1}, s[28:31], s49 offen
        buffer_store_dwordx4 v[{e+28}:{e+31}], v{V_T+1}, s[28:31], s49 offen offset:64
        buffer_store_dwordx2 v[{e+32}:{e+33}], v{V_T+2}, s[28:31], s49 offen offset:128
        """)
        if ASM.STAMPS: a("s_waitcnt vmcnt(0)")
        stamp(a, 5)
        dbgw(a, 8)
        a("s_endpgm")
        a.label(f"{base}_done")

P_WQKV = 60; P_WO = 62; P_W1 = 64; P_W2 = 66
LDS_R1 = 0; LDS_R2 = 32768

def unitA_load(a, n, which, vb):
    N = 1920 if which == "qkv" else 1728
    ptr = P_WQKV if which == "qkv" else P_W1
    srd(a, 20, ptr, 0, 640 * N * 2)
    a(f"""
    s_lshr_b32 s18, s17, 3                  ; nt
    s_and_b32 s19, s17, 7                   ; k8
    v_and_b32 v3, 31, v0
    v_lshrrev_b32 v4, 5, v0
    v_lshrrev_b32 v5, 3, v3
    v_and_b32 v6, 7, v3                     ; Q
    s_lshl_b32 s33, s18, 2
    v_add_u32 v7, s33, v5                   ; slice
    """)
    if which == "qkv":
        a(f"""
        s_cmp_ge_u32 s18, 10
        s_cbranch_scc1 {n}_vcol
        v_lshrrev_b32 v8, 2, v6
        v_lshlrev_b32 v8, 1, v8
        v_and_b32 v9, 1, v6
        v_add_u32 v8, v8, v9                    ; cidx
        v_bfe_u32 v9, v6, 1, 1                  ; eh
        v_cmp_le_u32 vcc, 20, v7
        s_nop 1
        v_cndmask_b32 v10, 0, 1, vcc            ; sec
        v_mul_u32_u24 v11, 20, v10
        v_sub_u32 v11, v7, v11
        v_lshl_add_u32 v11, v11, 2, v8          ; chunk
        v_mul_u32_u24 v12, 205, v11
        v_lshrrev_b32 v12, 10, v12              ; p
        v_mul_u32_u24 v13, 5, v12
        v_sub_u32 v13, v11, v13                 ; r
        v_lshrrev_b32 v14, 1, v13
        v_and_b32 v15, 1, v13
        v_lshlrev_b32 v15, 3, v15
        v_lshl_add_u32 v15, v9, 2, v15
        v_cmp_eq_u32 vcc, 4, v13
        v_mov_b32 v16, 16
        s_nop 0
        v_cndmask_b32 v14, v14, v9, vcc
        v_cndmask_b32 v15, v15, v16, vcc
        v_lshl_add_u32 v14, v12, 1, v14         ; head
        v_mul_u32_u24 v14, 20, v14
        v_add_u32 v14, v14, v15
        v_mul_u32_u24 v10, 640, v10
        v_add_u32 v8, v14, v10                  ; col
        s_branch {n}_go
        """)
        a.label(f"{n}_vcol")
        a("""
        v_lshlrev_b32 v8, 5, v7
        v_lshl_add_u32 v8, v6, 2, v8
        """)
        a.label(f"{n}_go")
    else:
        a("""
        v_lshlrev_b32 v8, 5, v7
        v_lshrrev_b32 v9, 2, v6
        v_lshl_add_u32 v8, v9, 4, v8
        v_and_b32 v9, 1, v6
        v_lshl_add_u32 v8, v9, 3, v8
        v_bfe_u32 v9, v6, 1, 1
        v_lshl_add_u32 v8, v9, 2, v8
        """)
    a(f"""
    v_mul_u32_u24 v9, {N}, v4
    v_add_u32 v9, v9, v8
    v_lshlrev_b32 v9, 1, v9
    s_mul_i32 s34, s19, {80*N*2}
    """)
    for p in range(10):
        a(f"buffer_load_dwordx2 v[{vb+2*p}:{vb+2*p+1}], v9, s[20:23], s34 offen")
        if p < 9: a(f"s_add_u32 s34, s34, {8*N*2}")

def unitA_proc(a, n, which, vb, lds, unit_sgpr):
    NF = 1920 if which == "qkv" else 1728
    wt, wtsz, cs, cssz = (ws.WQKV, ws.WQKV_SZ, ws.CSQ, ws.CSQ_SZ) if which == "qkv" else (ws.W1, ws.W1_SZ, ws.CS1, ws.CS1_SZ)
    a(f"""
    s_lshr_b32 s18, {unit_sgpr}, 3
    s_and_b32 s19, {unit_sgpr}, 7
    v_lshlrev_b32 v10, 3, v0
    v_add_u32 v10, {lds}, v10
    """)
    for p in range(10):
        a(f"ds_write_b64 v10, v[{vb+2*p}:{vb+2*p+1}] offset:{p*2048}")
    srd(a, 24, 6, wt, wtsz)
    srd(a, 28, 6, cs, cssz)
    a(f"""
    v_and_b32 v1, 63, v0
    v_lshrrev_b32 v11, 4, v1                ; G
    v_bfe_u32 v12, v1, 2, 2                 ; r
    v_and_b32 v13, 3, v1                    ; c'
    v_lshrrev_b32 v14, 1, v11
    v_lshl_add_u32 v14, v14, 3, v12
    v_lshlrev_b32 v14, 8, v14
    v_and_b32 v15, 1, v11
    v_lshl_add_u32 v15, v15, 2, v13
    s_lshl_b32 s33, s{S_W}, 3
    v_add_u32 v15, s33, v15
    v_lshl_add_u32 v14, v15, 3, v14
    v_add_u32 v14, {lds}, v14
    v_mov_b32 v16, 0x3f803f80
    v_mov_b32 v17, 0x3f803f80
    v_mov_b32 v18, 0x3f803f80
    v_mov_b32 v19, 0x3f803f80
    s_waitcnt lgkmcnt(0)
    s_barrier
    """)
    F = 70
    for ks in range(5):
        for u in range(2):
            a(f"ds_read_b64_tr_b16 v[{F+4*ks+2*u}:{F+4*ks+2*u+1}], v14 offset:{ks*4096+u*1024}")
    a(f"""
    s_lshl_b32 s33, s18, 2
    s_add_u32 s33, s33, s{S_W}
    s_mul_i32 s34, s33, 40
    s_mul_i32 s35, s19, 5
    s_add_u32 s34, s34, s35
    s_lshl_b32 s34, s34, 10
    v_lshlrev_b32 v10, 4, v1
    """)
    for ks in range(5):
        a(f"s_waitcnt lgkmcnt({8-2*ks})")
        a(f"buffer_store_dwordx4 v[{F+4*ks}:{F+4*ks+3}], v10, s[24:27], s34 offen {SC}")
        c = "0" if ks == 0 else "v[96:111]"
        a(f"v_mfma_f32_32x32x16_bf16 v[96:111], v[16:19], v[{F+4*ks}:{F+4*ks+3}], {c}")
        if ks < 4: a("s_add_u32 s34, s34, 1024")
    a(f"""
    v_and_b32 v11, 31, v1
    s_lshl_b32 s33, s33, 5
    v_add_u32 v11, s33, v11
    v_lshlrev_b32 v11, 2, v11
    v_mov_b32 v12, 0x7ffffff0
    v_cmp_gt_u32 vcc, {NF}, v11             ; byte offset < NF*4 checked below
    s_mul_i32 s35, s19, {NF*4}
    v_lshrrev_b32 v13, 2, v11
    v_cmp_gt_u32 vcc, {NF}, v13
    s_nop 7
    v_cndmask_b32 v11, v12, v11, vcc
    s_nop 3
    buffer_store_dword v96, v11, s[28:31], s35 offen {SC}
    """.replace(f"v_cmp_gt_u32 vcc, {NF}, v11             ; byte offset < NF*4 checked below\n", "").replace(f"v_cmp_gt_u32 vcc, {NF}, v13", f"v_mov_b32 v15, {NF}\n    v_cmp_gt_u32 vcc, v15, v13"))

def unitB_load(a, n, vb):
    a("""
    s_mul_i32 s35, s40, 160
    v_mov_b32 v19, 0x7ffffff0
    """)
    for p in range(7):
        a(f"""
        v_add_u32 v3, {256*p}, v0               ; i
        v_mul_u32_u24 v4, 6554, v3
        v_lshrrev_b32 v4, 16, v4                ; row
        v_mul_u32_u24 v5, 10, v4
        v_sub_u32 v5, v3, v5                    ; piece
        v_add_u32 v6, s41, v4                   ; k
        s_cmp_eq_u32 s43, 0
        s_cbranch_scc1 {n}_row{p}
        v_lshrrev_b32 v7, 3, v6                 ; chunk
        v_and_b32 v8, 7, v6
        v_mul_u32_u24 v9, 205, v7
        v_lshrrev_b32 v9, 10, v9
        v_mul_u32_u24 v10, 5, v9
        v_sub_u32 v10, v7, v10
        v_lshrrev_b32 v11, 1, v10
        v_and_b32 v12, 1, v10
        v_lshl_add_u32 v12, v12, 3, v8
        v_lshrrev_b32 v13, 2, v8
        v_and_b32 v14, 3, v8
        v_add_u32 v14, 16, v14
        v_cmp_eq_u32 vcc, 4, v10
        s_nop 1
        v_cndmask_b32 v11, v11, v13, vcc
        v_cndmask_b32 v12, v12, v14, vcc
        v_lshl_add_u32 v11, v9, 1, v11
        v_mul_u32_u24 v11, 20, v11
        v_add_u32 v6, v11, v12
        """)
        a.label(f"{n}_row{p}")
        a(f"""
        v_mul_u32_u24 v6, 1280, v6
        v_lshl_add_u32 v6, v5, 4, v6
        v_cmp_gt_u32 vcc, s42, v4
        s_nop 1
        v_cndmask_b32 v6, v19, v6, vcc
        buffer_load_dwordx4 v[{vb+4*p}:{vb+4*p+3}], v6, s[44:47], s35 offen
        """)

def unitB_proc(a, n, vb, lds):
    a(f"""
    v_lshlrev_b32 v10, 4, v0
    v_add_u32 v10, {lds}, v10
    """)
    for p in range(7):
        a(f"ds_write_b128 v10, v[{vb+4*p}:{vb+4*p+3}] offset:{p*4096}")
    a(f"""
    v_and_b32 v1, 63, v0
    v_lshrrev_b32 v11, 4, v1                ; kg
    v_bfe_u32 v12, v1, 2, 2                 ; r
    v_and_b32 v13, 3, v1                    ; c'
    v_lshl_add_u32 v12, v11, 3, v12
    v_mul_u32_u24 v12, 160, v12
    v_add_u32 v12, {lds}, v12
    v_lshl_add_u32 v14, v13, 4, v12
    v_lshl_add_u32 v15, v13, 3, v12
    v_lshlrev_b32 v10, 4, v1
    s_mov_b32 s50, s{S_W}
    s_waitcnt lgkmcnt(0)
    s_barrier
    """)
    a.label(f"{n}_ks")
    a(f"""
    s_add_u32 s33, s48, s50
    s_cmp_ge_u32 s33, s49
    s_cbranch_scc1 {n}_done
    s_mul_i32 s36, s50, {32*160}
    v_add_u32 v16, s36, v14
    v_add_u32 v17, s36, v15
    """)
    F = 70
    for ft in range(5):
        for u in range(2):
            if ft < 4: a(f"ds_read_b64_tr_b16 v[{F+4*ft+2*u}:{F+4*ft+2*u+1}], v16 offset:{u*640 + (0, 8, 64, 72)[ft]}")
            else: a(f"ds_read_b64_tr_b16 v[{F+4*ft+2*u}:{F+4*ft+2*u+1}], v17 offset:{u*640 + 128}")
    a(f"""
    s_mul_i32 s34, s40, s49
    s_add_u32 s34, s34, s33
    s_mul_i32 s34, s34, 5120
    """)
    for ft in range(5):
        a(f"s_waitcnt lgkmcnt({8-2*ft})")
        a(f"buffer_store_dwordx4 v[{F+4*ft}:{F+4*ft+3}], v10, s[24:27], s34 offen {SC}")
        if ft < 4: a("s_add_u32 s34, s34, 1024")
    a(f"""
    s_add_u32 s50, s50, 4
    s_mul_i32 s36, s50, 32
    s_cmp_lt_u32 s36, s42
    s_cbranch_scc1 {n}_ks
    """)
    a.label(f"{n}_done")

def unitC_load(a, vb):
    a(f"""
    s_sub_u32 s33, s2, 120
    s_lshl_b32 s33, s33, 4                  ; first token of the workgroup
    s_lshl_b32 s34, s{S_W}, 2
    s_add_u32 s34, s34, s33
    v_and_b32 v1, 63, v0
    v_lshrrev_b32 v3, 4, v1
    v_add_u32 v3, s34, v3                   ; row
    v_and_b32 v4, 15, v1
    v_mul_u32_u24 v5, 1280, v3
    v_lshl_add_u32 v5, v4, 4, v5
    """)
    srd(a, 20, 4, 0, M * D * 2)
    for i in range(5):
        a(f"buffer_load_dwordx4 v[{vb+4*i}:{vb+4*i+3}], v5, s[20:23], 0 offen offset:{256*i}")

def unitC_proc(a, vb, lds):
    a(f"""
    s_sub_u32 s33, s2, 120
    s_lshl_b32 s33, s33, 4
    v_and_b32 v1, 63, v0
    v_and_b32 v4, 15, v1                    ; sub
    v_lshrrev_b32 v3, 4, v0                 ; token in the workgroup (0..15)
    v_lshlrev_b32 v5, 8, v4
    v_lshl_add_u32 v5, v3, 4, v5
    v_add_u32 v5, {lds}, v5
    """)
    for i in range(5):
        a(f"ds_write_b128 v5, v[{vb+4*i}:{vb+4*i+3}] offset:{i*4096}")
    srd(a, 24, 6, ws.X0, ws.X0_SZ)
    srd(a, 28, 6, ws.ST0, ws.ST0_SZ)
    a("""
    v_mov_b32 v6, 0
    v_mov_b32 v7, 0
    """)
    for i in range(20):
        r = vb + i
        a(f"""
        v_lshlrev_b32 v8, 16, v{r}
        v_and_b32 v9, 0xffff0000, v{r}
        v_add_f32 v6, v6, v8
        v_fmac_f32 v7, v8, v8
        v_add_f32 v6, v6, v9
        v_fmac_f32 v7, v9, v9
        """)
    for rot in (8, 4, 2, 1):
        a(f"""
        s_nop 1
        v_add_f32_dpp v6, v6, v6 row_ror:{rot} row_mask:0xf bank_mask:0xf
        v_add_f32_dpp v7, v7, v7 row_ror:{rot} row_mask:0xf bank_mask:0xf
        """)
    a(f"""
    v_add_u32 v10, s33, v3
    v_lshlrev_b32 v10, 3, v10
    v_mov_b32 v11, 0x7ffffff0
    v_cmp_eq_u32 vcc, 0, v4
    v_lshlrev_b32 v12, 4, v0
    v_add_u32 v12, {lds}, v12
    v_cndmask_b32 v10, v11, v10, vcc
    buffer_store_dwordx2 v[6:7], v10, s[28:31], 0 offen {SC}
    s_waitcnt lgkmcnt(0)
    s_barrier
    """)
    F = 70
    for i in range(5):
        a(f"ds_read_b128 v[{F+4*i}:{F+4*i+3}], v12 offset:{i*4096}")
    a(f"""
    v_lshrrev_b32 v13, 4, v0
    v_mul_u32_u24 v13, {CSTR}, v13
    v_and_b32 v14, 15, v0
    v_add_u32 v14, s33, v14
    v_lshl_add_u32 v13, v14, 4, v13
    s_mov_b32 s34, 0
    """)
    for i in range(5):
        a(f"s_waitcnt lgkmcnt({4-i})")
        a(f"buffer_store_dwordx4 v[{F+4*i}:{F+4*i+3}], v13, s[24:27], s34 offen {SC}")
        if i < 4: a(f"s_add_u32 s34, s34, {16*CSTR}")

def p0_phase(a, n):
    V1 = 20; V2 = 40
    a(f"""
    s_cmp_lt_u32 s2, 120
    s_cbranch_scc1 {n}_l1a
    s_cmp_lt_u32 s2, 248
    s_cbranch_scc1 {n}_l1c
    s_cmp_lg_u32 s2, 255
    s_cbranch_scc1 {n}_l2
    """)
    srd(a, 20, 6, ws.CNT, ws.CNT_SZ)
    a("""
    v_mov_b32 v20, 0
    v_mov_b32 v21, 0
    v_mov_b32 v22, 0
    v_mov_b32 v23, 0
    v_lshlrev_b32 v5, 4, v0
    """)
    for i in range(ws.CNT_SZ // 4096):
        a(f"s_movk_i32 s36, {i*4096}")
        a(f"buffer_store_dwordx4 v[20:23], v5, s[20:23], s36 offen {SC}")
    a(f"""
    s_waitcnt vmcnt(0)
    s_barrier
    v_mov_b32 v5, 0
    v_mov_b32 v6, 1
    s_mov_b64 exec, 1
    global_store_dword v5, v6, s[10:11] sc1
    s_mov_b64 exec, -1
    s_branch {n}_l2
    """)
    a.label(f"{n}_l1a")
    a("s_mov_b32 s17, s2")
    unitA_load(a, f"{n}_a1", "qkv", V1)
    a(f"s_branch {n}_l2")
    a.label(f"{n}_l1c")
    unitC_load(a, V1)
    a.label(f"{n}_l2")
    a(f"""
    s_cmp_lt_u32 s2, 112
    s_cbranch_scc0 {n}_l2b
    s_mov_b32 s17, s2
    """)
    unitA_load(a, f"{n}_a2", "w1", V2)
    a(f"s_branch {n}_p1")
    a.label(f"{n}_l2b")
    a(f"""
    s_cmp_lt_u32 s2, 224
    s_cbranch_scc0 {n}_l2o
    s_sub_u32 s33, s2, 112
    s_mul_i32 s40, s33, 4682
    s_lshr_b32 s40, s40, 16                 ; j
    s_mul_i32 s34, s40, 14
    s_sub_u32 s34, s33, s34                 ; kr
    s_lshl_b32 s41, s34, 7
    s_movk_i32 s42, 128
    s_mov_b32 s43, 0
    s_lshl_b32 s48, s34, 2
    s_movk_i32 s49, 54
    """)
    srd(a, 44, P_W2, 0, 1728 * 640 * 2)
    a(f"s_branch {n}_l2g")
    a.label(f"{n}_l2o")
    a(f"""
    s_sub_u32 s33, s2, 224
    s_lshr_b32 s40, s33, 2                  ; j
    s_and_b32 s34, s33, 3
    s_mul_i32 s41, s34, 160
    s_movk_i32 s42, 160
    s_mov_b32 s43, 1
    s_mul_i32 s48, s34, 5
    s_movk_i32 s49, 20
    """)
    srd(a, 44, P_WO, 0, 640 * 640 * 2)
    a.label(f"{n}_l2g")
    unitB_load(a, f"{n}_b", V2)
    a.label(f"{n}_p1")
    stamp(a, 1)
    a(f"""
    s_waitcnt vmcnt(7)
    s_cmp_lt_u32 s2, 120
    s_cbranch_scc1 {n}_p1a
    s_cmp_lt_u32 s2, 248
    s_cbranch_scc0 {n}_arr
    """)
    unitC_proc(a, V1, LDS_R1)
    a(f"s_branch {n}_arr")
    a.label(f"{n}_p1a")
    unitA_proc(a, f"{n}_pa1", "qkv", V1, LDS_R1, "s2")
    a.label(f"{n}_arr")
    stamp(a, 2)
    dbgw(a, 2)
    a(f"""
    s_cmp_lg_u32 s{S_W}, 0
    s_cbranch_scc1 {n}_flag_ok
    v_mov_b32 v250, 0
    s_mov_b32 s101, 0
    """)
    a.label(f"{n}_flag")
    a(f"""
    global_load_dword v251, v250, s[10:11] sc1
    s_add_u32 s101, s101, 1
    s_waitcnt vmcnt(0)
    v_readfirstlane_b32 s100, v251
    s_cmp_ge_u32 s101, {SPIN_MAX}
    s_cbranch_scc1 {n}_flag_ok
    s_cmp_lg_u32 s100, 0
    s_cbranch_scc1 {n}_flag_ok
    s_sleep 1
    s_branch {n}_flag
    """)
    a.label(f"{n}_flag_ok")
    a("s_lshr_b32 s17, s2, 4")
    arrive_tree(a, "s17", C_P0, 16, T_P0)
    stamp(a, 3)
    a(f"""
    s_cmp_lt_u32 s2, 112
    s_cbranch_scc0 {n}_p2b
    """)
    unitA_proc(a, f"{n}_pa2", "w1", V2, LDS_R2, "s2")
    a(f"s_branch {n}_p2d")
    a.label(f"{n}_p2b")
    a(f"""
    s_add_u32 s24, s6, {ws.W2}
    s_addc_u32 s25, s7, 0
    s_add_u32 s100, s6, {ws.WO}
    s_addc_u32 s101, s7, 0
    s_cmp_eq_u32 s43, 0
    s_cselect_b32 s24, s24, s100
    s_cselect_b32 s25, s25, s101
    s_and_b32 s25, s25, 0xffff
    s_mov_b32 s26, {ws.WO_SZ}
    s_cselect_b32 s26, {ws.W2_SZ}, s26
    s_mov_b32 s27, 0x20000
    """)
    unitB_proc(a, f"{n}_pb", V2, LDS_R2)
    a.label(f"{n}_p2d")
    stamp(a, 4)
    wait_tree(a, T_P0, 16)
    stamp(a, 5)

LDS_MEGA = LDS_X + 1024 + 512

def gen_mega(a, name):
    kernel_header(a, name)
    n = name
    a(f"""
    s_cmp_ge_u32 s2, 256
    s_cbranch_scc1 {n}_end
    s_load_dwordx2 s[4:5], s[0:1], 0
    s_load_dwordx2 s[6:7], s[0:1], 64
    s_load_dwordx4 s[8:11], s[0:1], 48
    s_load_dwordx4 s[{P_WQKV}:{P_WQKV+3}], s[0:1], 8
    s_load_dwordx4 s[{P_W1}:{P_W1+3}], s[0:1], 32
    v_lshrrev_b32 v1, 6, v0
    s_and_b32 s{S_X}, s2, 7
    v_readfirstlane_b32 s{S_W}, v1
    s_lshr_b32 s{S_JX}, s2, 3
    s_mov_b32 s{S_L}, 0
    s_mov_b32 s{S_LOFF}, 0
    s_mov_b32 s{S_CL}, 0
    s_waitcnt lgkmcnt(0)
    s_add_u32 s{S_CB}, s6, {ws.CNT}
    s_addc_u32 s{S_CB+1}, s7, 0
    """)
    if not os.environ.get("NOCPF"):
        a(f"s_branch {n}_cpf")
        a.label(f"{n}_cpf_ret")
    stream_setup(a)
    PH[0] = 5; stamp(a, 0)
    dbgw(a, 1)
    p0_phase(a, f"{n}_p0")
    a.label(f"{n}_layer")
    def w_qkv():
        _uid[0] += 1; u = _uid[0]
        a(f"s_cmp_eq_u32 s{S_L}, 0")
        a(f"s_cbranch_scc1 skipw_{u}")
        wait(a, f"s{LN.S_MB}", C_DN, 1, 16, prev_layer=True)
        a.label(f"skipw_{u}")
    PH[0] = 0; stamp(a, 0)
    ln_phase(a, "qkv", f"{n}_qkv", w_qkv, 0, PWQ)
    stamp(a, 5)
    arrive_tree(a, f"s{LN.S_MB}", C_QKV, 16, T_QKV)
    PH[0] = 1; stamp(a, 0)
    dma = lambda o: f"buffer_load_dwordx4 v{V_L16}, s[{S_WT}:{S_WT+3}], s{S_T2} offen offset:{o} {SCW} lds"
    pf = {
        "setup": [f"s_mul_i32 m0, s{S_W}, 25600", f"s_mov_b32 s{S_T2}, s{S_WWO}", dma(0)],
        "reset": [f"s_add_u32 s{S_T2}, s{S_WWO}, 1024", f"s_mul_i32 s{S_T3}, s{S_W}, 25600", f"s_add_u32 s{S_T3}, s{S_T3}, 1024"],
        "nops": 3,
        "inloop": {(1, 1, 2): [f"s_mov_b32 m0, s{S_T3}"], (1, 1, 3): [dma(0)], (1, 2, 0): [dma(1024)], (1, 2, 1): [dma(2048)],
                   (1, 3, 0): [f"s_add_u32 s{S_T2}, s{S_T2}, 3072"], (1, 3, 1): [f"s_add_u32 s{S_T3}, s{S_T3}, 3072"]}}
    k_attn2.attn_phase(a, f"{n}_att", 6, ('L', ws.Q), ('L', ws.K), ('L', ws.V), ('L', ws.O), sc=SC, scl=SCL,
                       srd_fn=lambda d, off, size: srd_s(a, d, 6, off, size),
                       wait_fn=lambda: wait_tree(a, T_QKV, 16), stamp_fn=stamp, pf=pf)
    stamp(a, 5)
    arrive_tree(a, f"s{k_attn2.S_QB}", C_ATT, 32, T_ATT)
    PH[0] = 2; stamp(a, 0)
    def w_wo():
        wait_tree(a, T_ATT, 8)
    rs_phase(a, "wo", f"{n}_wo", w_wo, pre_hook=[wln_bundle("w1", k) for k in range(4*PWU1)])
    stamp(a, 5)
    arrive(a, f"s{RS.S_MBK}", C_WO)
    PH[0] = 3; stamp(a, 0)
    ln_phase(a, "w1", f"{n}_up", lambda: wait(a, f"s{LN.S_MB}", C_WO, 1, 16), PWU1, PWU,
             epi_hook=[w2dma_bundle(g, j) for g in range(W2E) for j in range(5)])
    stamp(a, 5)
    arrive(a, f"s{LN.S_MB}", C_UP)
    PH[0] = 4; stamp(a, 0)
    rs_phase(a, "w2", f"{n}_dn", lambda: wait(a, f"s{RS.S_MBK}", C_UP, 1, 16),
             pre_hook=[w2dma_bundle(g, j) for g in range(W2E, 7) for j in range(5)] +
                      [w2stage_bundle(g, j) for g in range(7, 7 + NSTG) for j in range(5)])
    stamp(a, 5)
    arrive(a, f"s{RS.S_MBK}", C_DN)
    a(f"""
    s_mov_b32 s{S_L}, 1
    s_mov_b32 s{S_LOFF}, {LAYER_SZ if os.environ.get("SEPL") else 0}
    s_mov_b32 s{S_CL}, {NCNT*128}
    s_branch {n}_layer
    """)
    a.label(f"{n}_end")
    a("s_endpgm")
    if not os.environ.get("NOCPF"):
        a.label(f"{n}_cpf")
        a(f"s_getpc_b64 s[20:21]")
        a.label(f"{n}_cpf_pc")
        a(f"""
        s_sub_u32 s20, s20, {n}_cpf_pc-{n}
        s_subb_u32 s21, s21, 0
        s_and_b32 s21, s21, 0xffff
        s_mov_b32 s22, {n}_cpf_pc-{n}
        s_mov_b32 s23, 0x20000
        s_lshl_b32 s24, s{S_JX}, 12
        v_lshlrev_b32 v2, 4, v0
        buffer_load_dwordx4 v[244:247], v2, s[20:23], s24 offen
        s_branch {n}_cpf_ret
        """)
    return kernel_desc(name, 256, 256, 102)
```

```python
import sys, os
sys.path.insert(0, os.path.dirname(os.path.abspath(__file__)))
from asm import *
from layout import *
import k_prep, k_lngemm, k_attn, k_attn2, k_resgemm

NAME = "interleave_layers__mha_block__dense_activation_silu__prompt"
HDR = """; Kernarg layout for this problem (72 bytes, ptrs only, base s[0:1]):
"""
def build_mega2():
    if os.environ.get("MEGA") == "3":
        import mega3 as mega2
    else:
        import mega2
    a = Asm()
    KN = NAME + "_kernel"
    descs = [mega2.gen_mega(a, KN)]
    hdr = HDR
    hdr += f"; @launch grid=(256,1,1) block=(256,1,1) lds={mega2.LDS_MEGA}\n"
    out = hdr + '.amdgcn_target "amdgcn-amd-amdhsa--gfx950"\n' + a.text()
    out += '.section .rodata,"a"\n'
    for d in descs:
        for blk in d.split(".amdhsa_kernel ")[1:]:
            out += ".p2align 6\n.amdhsa_kernel " + blk
    return out

def build_mega():
    if os.environ.get("MEGA") in ("2", "3"): return build_mega2()
    import mega
    a = Asm()
    descs = [k_prep.gen_prep(a, "prep_kernel"), mega.gen_mega(a, "mega_kernel")]
    hdr = HDR
    hdr += f"; @launch kernel=prep_kernel grid=({k_prep.NWG_PREP},1,1) block=(256,1,1) lds={k_prep.LDS_PREP}\n"
    hdr += f"; @launch kernel=mega_kernel grid=(256,1,1) block=(256,1,1) lds={mega.LDS_MEGA}\n"
    out = hdr + '.amdgcn_target "amdgcn-amd-amdhsa--gfx950"\n' + a.text()
    out += '.section .rodata,"a"\n'
    for d in descs:
        for blk in d.split(".amdhsa_kernel ")[1:]:
            out += ".p2align 6\n.amdhsa_kernel " + blk
    return out

def build(launches=None):
    if os.environ.get("MEGA"): return build_mega()
    a = Asm()
    descs = []
    descs.append(k_prep.gen_prep(a, "prep_kernel"))
    descs.append(k_lngemm.gen_lngemm(a, "qkv", [("qkv1_kernel", 0), ("qkv2_kernel", 1)]))
    ATT2 = not os.environ.get("ATT1")
    descs.append(k_attn2.gen_attn2(a, "attn_kernel") if ATT2 else k_attn.gen_attn(a, "attn_kernel"))
    descs.append(k_resgemm.gen_resgemm(a, "wo", [("wo1_kernel", 0), ("wo2_kernel", 1)]))
    descs.append(k_lngemm.gen_lngemm(a, "w1", [("up1_kernel", 0), ("up2_kernel", 1)]))
    descs.append(k_resgemm.gen_resgemm(a, "w2", [("down1_kernel", 0), ("down2_kernel", 1)]))
    L = {
     "prep": ("prep_kernel", k_prep.NWG_PREP, 256, k_prep.LDS_PREP),
     "qkv1": ("qkv1_kernel", 256, 256, k_lngemm.LDS_LN),
     "qkv2": ("qkv2_kernel", 256, 256, k_lngemm.LDS_LN),
     "attn": ("attn_kernel", 256, 256, k_attn2.LDS_ATT) if ATT2 else ("attn_kernel", 256, 512, k_attn.LDS_ATT),
     "wo1": ("wo1_kernel", 256, 256, k_resgemm.LDS_RES_WO),
     "wo2": ("wo2_kernel", 256, 256, k_resgemm.LDS_RES_WO),
     "up1": ("up1_kernel", 256, 256, k_lngemm.LDS_LN),
     "up2": ("up2_kernel", 256, 256, k_lngemm.LDS_LN),
     "down1": ("down1_kernel", 256, 256, k_resgemm.LDS_RES_W2),
     "down2": ("down2_kernel", 256, 256, k_resgemm.LDS_RES_W2),
    }
    if os.environ.get("NOOPS"):
        kernel_header(a, "noop_kernel"); a("s_endpgm")
        descs.append(kernel_desc("noop_kernel", 8, 0, 16))
        L["noop"] = ("noop_kernel", 256, 256, 0)
    order = launches or ["prep", "qkv1", "attn", "wo1", "up1", "down1", "qkv2", "attn", "wo2", "up2", "down2"]
    if os.environ.get("NOOPS"):
        nn = int(os.environ["NOOPS"]); order = order[:6] + ["noop"] * nn + order[6:]
    if os.environ.get("TWICE"): order = order + order
    if os.environ.get("PREPX"): order = ["prep"] * int(os.environ["PREPX"]) + order[1:]
    hdr = HDR
    for k in order:
        n, g, b, l = L[k]
        hdr += f"; @launch kernel={n} grid=({g},1,1) block=({b},1,1) lds={l}\n"
    body = a.text()
    if os.environ.get("DBGT"):
        import re
        idx = {"prep_kernel": 0, "qkv1_kernel": 1, "wo1_kernel": 3, "up1_kernel": 4, "down1_kernel": 5, "qkv2_kernel": 6,
               "wo2_kernel": 8, "up2_kernel": 9, "down2_kernel": 10}
        def st(i, tag):
            return f'''    s_cmp_lg_u32 s2, 0
    s_cbranch_scc1 dbgt_skip_{tag}
    s_load_dwordx2 s[60:61], s[0:1], 56
    s_memrealtime s[62:63]
    s_waitcnt lgkmcnt(0)
    s_sub_u32 s60, s60, {512*i - 4*i}
    s_subb_u32 s61, s61, 0
    v_mov_b32 v1, 0
    v_mov_b32 v2, s62
    global_store_dword v1, v2, s[60:61]
    s_add_u32 s60, s60, {512*11}
    s_addc_u32 s61, s61, 0
    global_store_dword v1, v2, s[60:61]
dbgt_skip_{tag}:
'''
        for k, i in idx.items():
            body = body.replace(f"\n{k}:\n", f"\n{k}:\n" + st(i, k))
        body = body.replace("\nattn_kernel:\n", "\nattn_kernel:\n" + st(2, "a1") + "attn_common:\n")
        body += ".text\n.globl attn2_kernel\n.p2align 8\n.type attn2_kernel,@function\nattn2_kernel:\n" + st(7, "a2") + "    s_branch attn_common\n"
        body += ".text\n.globl fin_kernel\n.p2align 8\n.type fin_kernel,@function\nfin_kernel:\n" + st(11, "fin") + "    s_endpgm\n"
        descs.append(descs[2].replace("attn_kernel", "attn2_kernel"))
        descs.append(kernel_desc("fin_kernel", 8, 0, 72))
        descs = [d.replace("next_free_sgpr 48", "next_free_sgpr 72").replace("next_free_sgpr 64", "next_free_sgpr 72") for d in descs]
        lines = hdr.split("\n")
        li = [i for i, l in enumerate(lines) if l.startswith("; @launch")]
        lines[li[7]] = lines[li[7]].replace("attn_kernel", "attn2_kernel")
        lines.insert(li[-1] + 1, "; @launch kernel=fin_kernel grid=(1,1,1) block=(64,1,1) lds=0")
        hdr = "\n".join(lines)
    out = hdr + '.amdgcn_target "amdgcn-amd-amdhsa--gfx950"\n' + body
    out += '.section .rodata,"a"\n'
    for d in descs:
        for blk in d.split(".amdhsa_kernel ")[1:]:
            out += ".p2align 6\n.amdhsa_kernel " + blk
    return out

if __name__ == "__main__":
    import asm as ASM
    if os.environ.get("STAMPS"): ASM.STAMPS = True
    dst = sys.argv[1] if len(sys.argv) > 1 else f"cdna_kernels/{NAME}.s"
    open(dst, "w").write(build())
    print("wrote", dst, os.path.getsize(dst))
```
